```python
import torch

def _softmax(x, axis=-1):
    return torch.softmax(x, dim=axis)
def _gelu(x):
    return torch.nn.functional.gelu(x, approximate="tanh")
def _silu(x):
    return torch.nn.functional.silu(x)
def _sigmoid(x):
    return torch.sigmoid(x)
def _layernorm(x, axis=-1, eps=1e-5):
    m = x.mean(dim=axis, keepdim=True)
    v = x.var(dim=axis, keepdim=True, unbiased=False)
    return (x - m) / torch.sqrt(v + eps)
def _scatter_add(tgt, idx, src, axis=0):
    return tgt.clone().index_add_(axis, idx, src)
def _segment_sum(src, seg, n):
    out = torch.zeros((n,) + src.shape[1:], dtype=src.dtype)
    return out.index_add_(0, seg, src)
def _pad(x, pw):
    flat = tuple(v for pair in reversed(pw) for v in pair)
    return torch.nn.functional.pad(x, flat)

kernel_name = 'parallel_sum__ssm_conv_s4__dense_activation_mish__prompt'

def setup_inputs():

    _w = (lambda a: (lambda t: t.to(torch.bfloat16) if t.is_floating_point() else t)(torch.as_tensor(a)))
    def _A_setup():
        B, L, D, N = 1, 2048, 640, 192
        A_re = -(lambda _x: torch.exp(torch.as_tensor(_x)))((lambda *s: torch.randn(*s, dtype=torch.bfloat16) * 3.2)(D, N))
        A_im = torch.pi * (lambda *s: torch.randn(*s, dtype=torch.bfloat16) * 0.05)(D, N)
        B_re = (lambda *s: torch.randn(*s, dtype=torch.bfloat16) * 0.1)(D, N)
        B_im = (lambda *s: torch.randn(*s, dtype=torch.bfloat16) * 0.1)(D, N)
        C_re = (lambda *s: torch.randn(*s, dtype=torch.bfloat16) * 0.1)(D, N)
        C_im = (lambda *s: torch.randn(*s, dtype=torch.bfloat16) * 0.1)(D, N)
        log_dt = (lambda *s: torch.randn(*s, dtype=torch.bfloat16) * 0.05)(D) * 0.5 - 4.0
        Dskip = (lambda *s: torch.randn(*s, dtype=torch.bfloat16) * 0.05)(D)
        return {
            "u": _w((lambda *s: torch.randn(*s, dtype=torch.bfloat16) * 0.05)(B, L, D)),
            "A_re": _w(A_re),
            "A_im": _w(A_im),
            "B_re": _w(B_re),
            "B_im": _w(B_im),
            "C_re": _w(C_re),
            "C_im": _w(C_im),
            "log_dt": _w(log_dt),
            "Dskip": _w(Dskip),
        }
    _A_in = _A_setup()

    def _B_setup():
        B, S, D, F = 1, 2048, 640, 1536
        return {
            "x": _w((lambda *s: torch.randn(*s, dtype=torch.bfloat16) * 0.05)(B, S, D)),
            "w1": _w((lambda *s: torch.randn(*s, dtype=torch.bfloat16) * 0.8)(D, F) * (D ** -0.5)),
            "b1": _w((lambda *s: torch.randn(*s, dtype=torch.bfloat16) * 0.4)(F)),
            "w2": _w((lambda *s: torch.randn(*s, dtype=torch.bfloat16) * 0.2)(F, D) * (F ** -0.5)),
        }
    _B_in = _B_setup()

    return {
        "A_u": _A_in["u"],
        "A_A_re": _A_in["A_re"],
        "A_A_im": _A_in["A_im"],
        "A_B_re": _A_in["B_re"],
        "A_B_im": _A_in["B_im"],
        "A_C_re": _A_in["C_re"],
        "A_C_im": _A_in["C_im"],
        "A_log_dt": _A_in["log_dt"],
        "A_Dskip": _A_in["Dskip"],
        "B_x": _B_in["x"],
        "B_w1": _B_in["w1"],
        "B_b1": _B_in["b1"],
        "B_w2": _B_in["w2"],
    }

def reference(A_u, A_A_re, A_A_im, A_B_re, A_B_im, A_C_re, A_C_im, A_log_dt, A_Dskip, B_x, B_w1, B_b1, B_w2):
    def _A_ref(u, A_re, A_im, B_re, B_im, C_re, C_im, log_dt, Dskip):
        Bsz, L, D = u.shape
        dt = torch.exp(log_dt)[:, None]
        A = A_re + 1j * A_im
        Bc = B_re + 1j * B_im
        Cc = C_re + 1j * C_im
        logdA = dt * A
        dB = dt * Bc
        l = (lambda x, dt: x.to(dt))(torch.arange(L), A_re.dtype)
        P = torch.exp(logdA[:, :, None] * l[None, None, :])
        K = torch.einsum("dn,dnl,dn->dl", Cc, P, dB).real
        L2 = 2 * L
        Kp = _pad(K, ((0, 0), (0, L)))
        up = (lambda x, *d: x.permute(*d))(u, 0, 2, 1)
        up = _pad(up, ((0, 0), (0, 0), (0, L)))
        Kf = (lambda x, axes=(-2,-1): torch.fft.rfft2(x.float(), dim=axes))(Kp[:, None, :], axes=(-2, -1))
        Uf = (lambda x, axes=(-2,-1): torch.fft.rfft2(x.float(), dim=axes))(up[:, :, None, :], axes=(-2, -1))
        Yf = Uf * Kf[None, :, :, :]
        y = (lambda x, s, axes=(-2,-1): torch.fft.irfft2(x, s=s, dim=axes).to(torch.bfloat16))(Yf, (1, L2), axes=(-2, -1))[:, :, 0, :L]
        y = (lambda x, *d: x.permute(*d))(y, 0, 2, 1) + u * Dskip[None, None, :]
        return y

    def _B_ref(x, w1, b1, w2):
        h = torch.einsum("bsd,df->bsf", x, w1) + b1
        sp = torch.log1p(torch.exp(-torch.abs(h))) + torch.where(h > 0, h, torch.zeros_like(h))
        act = h * torch.tanh(sp)
        return torch.einsum("bsf,fd->bsd", act, w2)

    x = A_u
    xn = _layernorm(x, axis=-1)
    return x + _A_ref(xn, A_A_re, A_A_im, A_B_re, A_B_im, A_C_re, A_C_im, A_log_dt, A_Dskip) + _B_ref(xn, B_w1, B_b1, B_w2)
```

```python
import re

TRANS = ("v_exp_f32","v_log_f32","v_rcp_f32","v_rsq_f32","v_sqrt_f32","v_sin_f32","v_cos_f32")

def regs_of(tok):
    tok = tok.strip()
    tok = tok.lstrip('-')
    m = re.fullmatch(r"(?:abs\()?\|?([vsa])(\d+)\|?\)?", tok)
    if m: return [(m.group(1), int(m.group(2)))]
    m = re.fullmatch(r"([vsa])\[(\d+):(\d+)\]", tok)
    if m: return [(m.group(1), i) for i in range(int(m.group(2)), int(m.group(3))+1)]
    if tok == "vcc": return [("s",106),("s",107)]
    if tok == "exec": return [("s",126),("s",127)]
    if tok == "m0": return [("s",124)]
    return []

def split_ops(s):
    out=[]; depth=0; cur=""
    for ch in s:
        if ch=='[': depth+=1
        if ch==']': depth-=1
        if ch==',' and depth==0:
            out.append(cur.strip()); cur=""
        else: cur+=ch
    if cur.strip(): out.append(cur.strip())
    return out

class Asm:
    def __init__(self, pfx=''):
        self.pfx=pfx
        self.lines=[]
        self.pos=0
        self.w={}
        self.mfmaC={}
        self.mfmaD={}
        self.stdata={}
        self.nlabel=0
        self.auto=True
    def raw(self, s):
        self.lines.append(s)
    def comment(self, s):
        self.lines.append("; "+s)
    def label(self, name):
        self.lines.append(name+":")
    def newlabel(self, p="L"):
        self.nlabel+=1
        return f"{p}_{self.pfx}{self.nlabel}"
    def nop(self, n):
        while n>0:
            k=min(n,16)
            self.lines.append(f"s_nop {k-1}")
            self.pos+=k; n-=k
    def fence(self, n=12):
        need=0
        for r,(p,k) in self.w.items():
            lim={"mfma8":12,"mfma4":8,"valu":5,"trans":5,"valu_s":5,"salu":1}.get(k,0)
            need=max(need, lim-(self.pos-p))
        if need>0: self.nop(need)
    def __call__(self, text):
        for line in text.strip().split("\n"):
            line=line.strip()
            if not line: continue
            if line.startswith(";"):
                self.lines.append(line); continue
            if line.endswith(":"):
                self.lines.append(line); continue
            self.emit(line)
    def emit(self, line):
        code=line.split(";")[0].strip()
        m=re.match(r"(\S+)\s*(.*)", code)
        op=m.group(1); rest=m.group(2)
        toks=split_ops(rest)
        ops=[]
        mods=""
        for i,t in enumerate(toks):
            parts=t.split()
            ops.append(parts[0] if parts else "")
            if len(parts)>1: mods+=" "+" ".join(parts[1:])
        dst=[];src=[]
        kind="other"
        isdpp = ("row_" in mods or "quad_perm" in mods or "wave_" in mods or "_dpp" in op)
        A=B=C=[]
        if op.startswith("v_mfma"):
            kind="mfma8" if "32x32" in op else "mfma4"
            dst=regs_of(ops[0]); A=regs_of(ops[1]); B=regs_of(ops[2]); C=regs_of(ops[3]); src=A+B+C
        elif op.startswith("v_cmp"):
            kind="valu_s"; dst=regs_of(ops[0]); src=sum((regs_of(o) for o in ops[1:]),[])
        elif op.startswith("v_readlane") or op.startswith("v_readfirstlane"):
            kind="valu_s"; dst=regs_of(ops[0]); src=sum((regs_of(o) for o in ops[1:]),[])
        elif op.startswith("v_add_co") or op.startswith("v_addc_co") or op.startswith("v_sub_co"):
            kind="valu"; dst=regs_of(ops[0])+regs_of(ops[1]); src=sum((regs_of(o) for o in ops[2:]),[])
        elif op.startswith("v_swap") or op.startswith("v_permlane"):
            kind="valu"; dst=regs_of(ops[0])+regs_of(ops[1]); src=list(dst)
        elif op.startswith("v_"):
            kind="trans" if op.replace("_e32","").replace("_e64","") in TRANS else "valu"
            dst=regs_of(ops[0]); src=sum((regs_of(o) for o in ops[1:]),[])
            if "fmac" in op or "writelane" in op or isdpp: src+=dst
        elif op.startswith("ds_read") or op.startswith("ds_bpermute") or op.startswith("ds_permute") or op.startswith("ds_swizzle"):
            kind="mem"; dst=regs_of(ops[0]); src=sum((regs_of(o) for o in ops[1:]),[])
        elif op.startswith("ds_"):
            kind="mem"; src=sum((regs_of(o) for o in ops),[])
        elif op.startswith("buffer_load"):
            kind="mem"
            if re.search(r"\blds\b", mods):
                src=sum((regs_of(o) for o in ops),[])+[("s",124)]
            else:
                dst=regs_of(ops[0]); src=sum((regs_of(o) for o in ops[1:]),[])
        elif op.startswith("global_load"):
            kind="mem"; dst=regs_of(ops[0]); src=sum((regs_of(o) for o in ops[1:]),[])
        elif op.startswith("buffer_store") or op.startswith("global_store") or op.startswith("buffer_atomic") or op.startswith("global_atomic"):
            kind="mem"; src=sum((regs_of(o) for o in ops),[])
        elif op.startswith("s_nop"):
            self.lines.append(line); self.pos+=int(ops[0],0)+1; return
        elif op.startswith("s_"):
            kind="salu"
            if op.startswith("s_cmp") or op.startswith("s_cbranch") or op in("s_branch","s_barrier","s_waitcnt","s_endpgm","s_sleep","s_setprio","s_bitcmp1_b32","s_bitcmp0_b32"):
                src=sum((regs_of(o) for o in ops),[])
            else:
                dst=regs_of(ops[0]); src=sum((regs_of(o) for o in ops[1:]),[])
                if "saveexec" in op: dst+=regs_of("exec")
        else:
            self.lines.append(line); self.pos+=1; return
        isvalu = kind in("valu","trans","valu_s")
        ismfma = kind.startswith("mfma")
        if op.startswith("v_cndmask") and len(ops)==3: src+=regs_of("vcc")
        need=0
        def req(p,n):
            nonlocal need
            need=max(need, n-(self.pos-p))
        for r in src:
            if r in self.w:
                p,k=self.w[r]
                if r[0] in "va":
                    if k in("valu","trans") and ismfma: req(p,3)
                    if k=="trans" and isvalu and kind!="trans": req(p,2)
                    if k=="trans" and kind=="mem": req(p,2)
                    if k in("valu","trans") and (op.startswith("v_readlane") or op.startswith("v_readfirstlane")): req(p,2)
                    if k in("valu","trans") and (isdpp or op.startswith("v_permlane")): req(p,3)
                    if k in("mfma4","mfma8"):
                        big = 9 if k=="mfma4" else 13
                        if ismfma:
                            if r in A or r in B: req(p,big)
                            else:
                                exact = (self.mfmaD.get(r)==(C[0],C[-1])) and k==kind
                                if not exact: req(p, 7 if k=="mfma4" else 11)
                        else: req(p,big)
                else:
                    if k=="valu_s" or (k=="valu"):
                        if isvalu or ismfma:
                            if (op.startswith("v_readlane") or op.startswith("v_writelane")) and r in regs_of(ops[2]): req(p,5)
                            else: req(p,3)
                        if kind=="mem": req(p,6)
                    if k=="salu" and r==("s",124) and kind=="mem": req(p,2)
        for r in dst:
            if r in self.w and r[0] in "va":
                p,k=self.w[r]
                if k in("mfma4","mfma8") and not ismfma:
                    req(p, 9 if k=="mfma4" else 13)
                if k in("mfma4","mfma8") and ismfma:
                    exact = (self.mfmaD.get(r)==(dst[0],dst[-1])) and k==kind and C==dst
                    if not exact: req(p, 7 if k=="mfma4" else 11)
            if r in self.mfmaC and isvalu:
                p,n=self.mfmaC[r]; req(p,n+1)
            if r in self.stdata:
                req(self.stdata[r], 3 if isvalu else 2)
        if need>0 and self.auto:
            self.nop(need)
        self.lines.append(line)
        for r in dst:
            self.w[r]=(self.pos,kind)
            if ismfma: self.mfmaD[r]=(dst[0],dst[-1])
        if ismfma:
            for r in C: self.mfmaC[r]=(self.pos, 3 if kind=="mfma4" else 7)
        if kind=="mem" and ("store_dwordx4" in op or "store_dwordx3" in op):
            data = regs_of(ops[0]) if op.startswith("buffer") else regs_of(ops[1])
            for r in data: self.stdata[r]=self.pos
        self.pos+=1
    def text(self):
        return "\n".join(self.lines)+"\n"

class VM:
    def __init__(self, a):
        self.a=a; self.q=[]
    def issue(self, tag): self.q.append(tag)
    def wait_for(self, tags):
        if not isinstance(tags,(list,tuple,set)) or isinstance(tags,tuple): tags=[tags]
        idx=-1
        for i,t in enumerate(self.q):
            if t in tags: idx=i
        if idx<0: return
        n=len(self.q)-1-idx
        assert n<=63
        self.a(f"s_waitcnt vmcnt({n})")
        self.q=self.q[idx+1:]
    def wait_all(self):
        self.a("s_waitcnt vmcnt(0)"); self.q=[]
```

```python
import sys, struct
from asmlib import Asm, VM

def f2u(x): return struct.unpack("<I", struct.pack("<f", x))[0]

GS      = 4160
G_OFF   = 4096
ST_OFF  = 0x2A0000
Y_OFF   = 0x2B0000
W2F_OFF = 0x540000
ACT_OFF = 0x720000
WS_END  = 0xD20000
TROW = 272
REG  = 17408
KC1  = 4576
YB   = 9120
U0   = 3*REG
UCH  = 8448
UC1  = 4224
LDS_A = 81920
LOG2E = 0x3fb8aa3b; LOG2E_LO = 0x32a5705f; LN2 = 0x3f317218

S_X=4; S_ARE=6; S_AIM=8; S_BRE=10; S_BIM=12; S_CRE=14; S_CIM=16; S_LDT=18
S_DSK=20; S_W1=24; S_B1=26; S_W2=28; S_OUT=30; S_DBG=32; S_WS=34
SRD_WS=36; SRD_X=40; SRD_W=44; SRD_DBG=48
S_WAVE=52

def srd(a, dst, ptr, nbytes):
    a(f"""s_mov_b32 s{dst}, s{ptr}
s_and_b32 s{dst+1}, s{ptr+1}, 0xffff
s_mov_b32 s{dst+2}, {nbytes}
s_mov_b32 s{dst+3}, 0x00020000""")

def cmul(a, dst, z, m, t, conj=False):
    if not conj:
        a(f"v_pk_mul_f32 v[{t}:{t+1}], v[{z}:{z+1}], v[{m}:{m+1}] op_sel:[0,0] op_sel_hi:[0,1]")
        a(f"v_pk_fma_f32 v[{dst}:{dst+1}], v[{z}:{z+1}], v[{m}:{m+1}], v[{t}:{t+1}] op_sel:[1,1,0] op_sel_hi:[1,0,1] neg_lo:[0,1,0]")
    else:
        a(f"v_pk_mul_f32 v[{t}:{t+1}], v[{z}:{z+1}], v[{m}:{m+1}] op_sel:[0,0] op_sel_hi:[0,1] neg_hi:[0,1]")
        a(f"v_pk_fma_f32 v[{dst}:{dst+1}], v[{z}:{z+1}], v[{m}:{m+1}], v[{t}:{t+1}] op_sel:[1,1,0] op_sel_hi:[1,0,1]")

def gen_kgen(a):
    RAW=2
    P=14
    A2=20; B2=21; DT=22; VT=23
    Z=24; C=26; T=28; T2=30; E1=32; E2=34; E4=36; E8=38; E248=40; X=42; Y=43; S_=44; CO=45; PK=46; PK2=47
    FA=48; FB=49
    ACC=52
    FR=68
    arrs=[S_ARE,S_AIM,S_BRE,S_BIM,S_CRE,S_CIM]
    a(f"""s_mul_i32 s56, s54, 384
v_lshlrev_b32 v{X}, 2, v1
v_add_u32 v{X}, s56, v{X}
v_lshlrev_b32 v{Y}, 1, v1
v_add_u32 v{Y}, s56, v{Y}
s_lshr_b32 s57, s54, 1
s_lshl_b32 s57, s57, 2
s_load_dword s58, s[{S_LDT}:{S_LDT+1}], s57
s_load_dword s59, s[{S_DSK}:{S_DSK+1}], s57""")
    for i in range(6): a(f"v_mov_b32 v{RAW+6+i}, 0")
    for i,s in enumerate(arrs):
        a(f"global_load_dword v{RAW+i}, v{X}, s[{s}:{s+1}]")
    for i,s in enumerate(arrs):
        a(f"global_load_short_d16_hi v{RAW+6+i}, v{Y}, s[{s}:{s+1}] offset:256")
    a(f"""v_lshlrev_b32 v{VT}, 2, v1
v_add_u32 v{VT}, s55, v{VT}
v_and_b32 v{FB}, 31, v1
v_mul_u32_u24 v{FB}, {TROW}, v{FB}
v_lshrrev_b32 v{FA}, 5, v1
v_lshlrev_b32 v{FA}, 4, v{FA}
v_add_u32 v{FB}, v{FB}, v{FA}
v_add_u32 v{FB}, s55, v{FB}
v_add_u32 v{FA}, {32*TROW}, v{FB}""")
    for i in range(16): a(f"v_mov_b32 v{ACC+i}, 0")
    a(f"""s_waitcnt lgkmcnt(0)
s_and_b32 s57, s54, 1
s_lshl_b32 s57, s57, 4
s_lshr_b32 s58, s58, s57
s_lshl_b32 s58, s58, 16
s_lshr_b32 s59, s59, s57
s_lshl_b32 s59, s59, 16
s_mov_b32 s60, 0x{LOG2E:08x}
s_mov_b32 s61, 0x{LOG2E_LO:08x}
s_mov_b32 s62, 0x{LN2:08x}
v_mov_b32 v{X}, s58
v_mul_f32 v{Y}, s60, v{X}
v_fma_f32 v{S_}, v{X}, s60, -v{Y}
v_fma_f32 v{S_}, v{X}, s61, v{S_}
v_exp_f32 v{Y}, v{Y}
v_mul_f32 v{S_}, s62, v{S_}
v_fma_f32 v{Y}, v{Y}, v{S_}, v{Y}
v_cvt_pk_bf16_f32 v{Y}, v{Y}, v{Y}
v_lshlrev_b32 v{DT}, 16, v{Y}
v_mov_b32 v{PK2}, 0x3f80
s_waitcnt vmcnt(0)""")
    def direct(dst, lam):
        if lam==1:
            a(f"v_fract_f32 v{Y}, v{B2}\nv_exp_f32 v{X}, v{A2}")
        else:
            a(f"v_mul_f32 v{Y}, 0x{f2u(float(lam)):08x}, v{B2}\nv_mul_f32 v{X}, 0x{f2u(float(lam)):08x}, v{A2}\nv_fract_f32 v{Y}, v{Y}\nv_exp_f32 v{X}, v{X}")
        a(f"""v_sin_f32 v{S_}, v{Y}
v_cos_f32 v{CO}, v{Y}
v_mul_f32 v{dst+1}, v{X}, v{S_}
v_mul_f32 v{dst}, v{X}, v{CO}""")
    def wr(src, rows):
        a(f"v_cvt_pk_bf16_f32 v{PK}, v{src}, v{src+1}")
        for r in rows:
            a(f"ds_write_b32 v{VT}, v{PK} offset:{r*TROW}")
    rowseq=[(E1,[1]),(E1,[2]),(E1,[3]),(E1,[4]),(E1,[5]),(E1,[6]),(E1,[7]),(E1,[]),
            (E248,[8]),(E2,[9]),(E2,[10,12]),(E2,[13]),(E2,[14]),
            (E248,[16]),(E4,[17,20]),(E4,[21]),(E248,[18]),(E4,[19,22]),(E4,[23]),
            (E248,[24]),(E8,[28]),(E248,[25]),(E8,[29]),(E248,[26]),(E8,[30]),(E248,[27]),(E8,[31])]
    pend=[]
    for g in range(3):
        for i in range(6):
            if g==0: a(f"v_lshlrev_b32 v{P+i}, 16, v{RAW+i}")
            elif g==1: a(f"v_and_b32 v{P+i}, 0xffff0000, v{RAW+i}")
        src=[(P+i) if g<2 else (RAW+6+i) for i in range(6)]
        ar,ai,br,bi,cr,ci=src
        def popm(n=1):
            for _ in range(n):
                if pend: a(pend.pop(0))
        a(f"""v_mul_f32 v{A2}, v{ar}, v{DT}
v_mul_f32 v{B2}, v{ai}, v{DT}
v_mul_f32 v{A2}, s60, v{A2}
v_mul_f32 v{B2}, 0.15915494, v{B2}""")
        popm()
        a(f"""v_mul_f32 v{Z}, v{cr}, v{br}
v_mul_f32 v{Z+1}, v{cr}, v{bi}
v_fma_f32 v{Z}, -v{ci}, v{bi}, v{Z}
v_fma_f32 v{Z+1}, v{ci}, v{br}, v{Z+1}
v_mul_f32 v{Z}, v{Z}, v{DT}
v_mul_f32 v{Z+1}, -v{Z+1}, v{DT}""")
        popm()
        direct(E1,1); popm()
        direct(E8,8); popm()
        direct(E248,248); popm()
        cmul(a,E2,E1,E1,T); popm(); cmul(a,E4,E2,E2,T); popm(2)
        assert not pend
        a(f"ds_write_b32 v{VT}, v{PK2}")
        wr(Z,[32+0]); wr(E8,[1])
        cur=E8
        for j in range(2,32):
            cmul(a,C,cur,E8,T); cur=C
            wr(C,[j])
            k=j-2
            if k<len(rowseq):
                m,rows=rowseq[k]
                cmul(a,Z,Z,m,T2,conj=True)
                if rows: wr(Z,[32+r for r in rows])
        a("s_waitcnt lgkmcnt(0)")
        for q in range(8):
            a(f"ds_read_b128 v[{FR+8*q}:{FR+8*q+3}], v{FA} offset:{32*q}")
            a(f"ds_read_b128 v[{FR+8*q+4}:{FR+8*q+7}], v{FB} offset:{32*q}")
        a("s_waitcnt lgkmcnt(0)")
        pend=[f"v_mfma_f32_32x32x16_bf16 v[{ACC}:{ACC+15}], v[{FR+8*q}:{FR+8*q+3}], v[{FR+8*q+4}:{FR+8*q+7}], v[{ACC}:{ACC+15}]" for q in range(8)]
    for m in pend: a(m)
    ZR=FR
    for i in range(4): a(f"v_mov_b32 v{ZR+i}, 0")
    a(f"""v_lshlrev_b32 v{X}, 4, v1
v_add_u32 v{X}, s55, v{X}""")
    for i in range(8): a(f"ds_write_b128 v{X}, v[{ZR}:{ZR+3}] offset:{YB+1024*i}")
    a(f"""s_mov_b32 exec_hi, 0
ds_write_b128 v{X}, v[{ZR}:{ZR+3}]
ds_write_b128 v{X}, v[{ZR}:{ZR+3}] offset:{KC1}
s_mov_b64 exec, 1
v_add_f32 v{ACC}, s59, v{ACC}
s_mov_b64 exec, -1""")
    a(f"""v_and_b32 v{X}, 31, v1
v_lshlrev_b32 v{X}, 4, v{X}
v_lshrrev_b32 v{Y}, 5, v1
v_lshlrev_b32 v{Y}, 3, v{Y}
v_add_u32 v{X}, v{X}, v{Y}
v_add_u32 v{X}, s55, v{X}
v_cmp_lt_u32 vcc, 31, v1""")
    ac=lambda i: ACC+i
    Q=FR+4
    def block(base, e):
        p0,p1,pm=Q,Q+1,Q+2
        a(f"v_cvt_pk_bf16_f32 v{p0}, v{e[0]}, v{e[1]}")
        a(f"v_cvt_pk_bf16_f32 v{p1}, v{e[2]}, v{e[3]}")
        a(f"v_alignbit_b32 v{pm}, v{p1}, v{p0}, 16")
        a(f"ds_write_b64 v{X}, v[{p0}:{p1}] offset:{KC1+2*(base+224)}")
        a(f"ds_write_b16 v{X}, v{p0} offset:{2*(base+225)}")
        a(f"ds_write_b32 v{X}, v{pm} offset:{2*(base+226)}")
        a(f"ds_write_b16_d16_hi v{X}, v{p1} offset:{2*(base+228)}")
    block(0,[ac(0),ac(1),ac(2),ac(3)])
    block(256,[ac(4),ac(4),ac(5),ac(6)])
    a(f"v_cndmask_b32 v{S_}, v{ac(8)}, v{ac(9)}, vcc")
    a(f"v_cndmask_b32 v{CO}, v{ac(10)}, v{ac(11)}, vcc")
    block(512,[ac(8),ac(8),S_,ac(9)])
    block(768,[ac(10),ac(10),CO,ac(11)])
    for b in range(4):
        r=ac(12+b); block(1024+256*b,[r,r,r,r])
    a("s_mov_b64 exec, 0x55555555")
    for b in range(4):
        a(f"v_cvt_pk_bf16_f32 v{Q}, v{ac(12+b)}, v{ac(12+b)}")
        a(f"ds_write_b16 v{X}, v{Q} offset:{KC1+2*(1024+256*b+4+224)}")
        a(f"ds_write_b16 v{X}, v{Q} offset:{2*(1024+256*b+4+225)}")
    a("s_mov_b64 exec, -1")

def wave_sum8(a, regs, tmp):
    for mod in ("row_shr:1","row_shr:2","row_shr:4","row_shr:8"):
        for r in regs:
            a(f"v_add_f32_dpp v{r}, v{r}, v{r} {mod} row_mask:0xf bank_mask:0xf bound_ctrl:1")
    for r in regs:
        a(f"v_add_f32_dpp v{r}, v{r}, v{r} row_bcast:15 row_mask:0xa bank_mask:0xf")
    for r in regs:
        a(f"v_add_f32_dpp v{r}, v{r}, v{r} row_bcast:31 row_mask:0xc bank_mask:0xf")

def gen_ln(a):
    RAW=2
    XF=42
    SM=122
    TP=130
    VA=146; VB=147; VC=148; VD=149
    OUT=150
    a(f"""s_and_b32 s54, s53, 7
s_lshl_b32 s54, s54, 5
s_lshr_b32 s55, s53, 3
s_add_u32 s54, s54, s55          ; rb
s_mul_i32 s55, s54, {8*1280}
v_mul_u32_u24 v{VA}, 20, v1""")
    for r in range(8):
        a(f"s_add_u32 s56, s55, {r*1280}")
        a(f"buffer_load_dwordx4 v[{RAW+4*r}:{RAW+4*r+3}], v{VA}, s[{SRD_X}:{SRD_X+3}], s56 offen")
        a(f"buffer_load_dword v{RAW+32+r}, v{VA}, s[{SRD_X}:{SRD_X+3}], s56 offen offset:16")
    lw=a.newlabel("L_now2")
    a(f"""s_mul_i32 s57, s53, 13108
s_lshr_b32 s57, s57, 16          ; j
s_mul_i32 s58, s57, 5
s_sub_u32 s58, s53, s58          ; grp
v_lshrrev_b32 v{VB}, 4, v1
v_mul_u32_u24 v{VB}, 1280, v{VB}
v_and_b32 v{VC}, 15, v1
v_lshlrev_b32 v{VC}, 4, v{VC}
v_add_u32 v{VB}, v{VB}, v{VC}
s_mul_i32 s59, s57, {32*1280}
s_lshl_b32 s60, s58, 8
s_add_u32 s59, s59, s60
s_cmp_ge_u32 s53, 240
s_cbranch_scc1 {lw}""")
    for i in range(8):
        a(f"s_mov_b32 m0, {U0+1024*i}")
        a(f"s_add_u32 s60, s59, {4*i*1280}")
        a(f"buffer_load_dwordx4 v{VB}, s[{SRD_W}:{SRD_W+3}], s60 offen lds")
    a(f"s_waitcnt vmcnt(8)")
    l2=a.newlabel("L_w2j")
    a(f"s_branch {l2}\n{lw}:\ns_waitcnt vmcnt(0)\n{l2}:")
    for r in range(8):
        for k in range(5):
            s = RAW+4*r+k if k<4 else RAW+32+r
            a(f"v_lshlrev_b32 v{XF+10*r+2*k}, 16, v{s}")
            a(f"v_and_b32 v{XF+10*r+2*k+1}, 0xffff0000, v{s}")
    for r in range(8):
        b=XF+10*r; t=TP+2*r
        a(f"v_pk_add_f32 v[{t}:{t+1}], v[{b}:{b+1}], v[{b+2}:{b+3}]")
    for k in (4,6,8):
        for r in range(8):
            b=XF+10*r; t=TP+2*r
            a(f"v_pk_add_f32 v[{t}:{t+1}], v[{t}:{t+1}], v[{b+k}:{b+k+1}]")
    for r in range(8):
        a(f"v_add_f32 v{SM+r}, v{TP+2*r}, v{TP+2*r+1}")
    wave_sum8(a,[SM+r for r in range(8)],None)
    for r in range(8): a(f"v_mul_f32 v{SM+r}, 0x{f2u(-1.0/640):08x}, v{SM+r}")
    for r in range(8): a(f"v_readlane_b32 s{64+2*r}, v{SM+r}, 63")
    for r in range(8):
        for k in range(5):
            b=XF+10*r+2*k
            a(f"v_pk_add_f32 v[{b}:{b+1}], v[{b}:{b+1}], s[{64+2*r}:{65+2*r}] op_sel_hi:[1,0]")
    for r in range(8):
        b=XF+10*r; t=TP+2*r
        a(f"v_pk_mul_f32 v[{t}:{t+1}], v[{b}:{b+1}], v[{b}:{b+1}]")
    for k in (2,4,6,8):
        for r in range(8):
            b=XF+10*r+k; t=TP+2*r
            a(f"v_pk_fma_f32 v[{t}:{t+1}], v[{b}:{b+1}], v[{b}:{b+1}], v[{t}:{t+1}]")
    for r in range(8):
        a(f"v_add_f32 v{SM+r}, v{TP+2*r}, v{TP+2*r+1}")
    wave_sum8(a,[SM+r for r in range(8)],None)
    a(f"s_mov_b32 s80, 0x{f2u(1.0/640):08x}\nv_mov_b32 v{VC}, 0x{f2u(1e-5):08x}")
    for r in range(8): a(f"v_fma_f32 v{SM+r}, v{SM+r}, s80, v{VC}")
    for r in range(8): a(f"v_rsq_f32 v{SM+r}, v{SM+r}")
    for r in range(8): a(f"v_readlane_b32 s{82+2*r}, v{SM+r}, 63")
    for r in range(8):
        for k in range(5):
            b=XF+10*r+2*k
            a(f"v_pk_mul_f32 v[{b}:{b+1}], v[{b}:{b+1}], s[{82+2*r}:{83+2*r}] op_sel_hi:[1,0]")
    a(f"""v_mul_u32_u24 v{VA}, {10*GS}, v1
s_lshl_b32 s56, s54, 4
s_sub_u32 s56, {G_OFF+4080}, s56""")
    for i in range(10):
        o=OUT+4*i
        for k in range(4):
            a(f"v_cvt_pk_bf16_f32 v{o+k}, v{XF+10*(7-2*k)+i}, v{XF+10*(6-2*k)+i}")
        a(f"buffer_store_dwordx4 v[{o}:{o+3}], v{VA}, s[{SRD_WS}:{SRD_WS+3}], s56 offen sc0 sc1")
        if i<9: a(f"s_add_u32 s56, s56, {GS}")
    for r in range(8):
        a(f"v_mov_b32 v{VD}, s{64+2*r}")
        a(f"v_mul_f32 v{VD}, s{82+2*r}, v{VD}")
        a(f"v_readfirstlane_b32 s{65+2*r}, v{VD}")
    for r in range(8):
        a(f"v_writelane_b32 v{VC}, s{82+2*r}, {2*r}")
        a(f"v_writelane_b32 v{VC}, s{65+2*r}, {2*r+1}")
    a(f"""v_lshlrev_b32 v{VD}, 2, v1
s_lshl_b32 s56, s54, 6
s_add_u32 s56, s56, {ST_OFF}
s_mov_b64 exec, 0xffff
buffer_store_dword v{VC}, v{VD}, s[{SRD_WS}:{SRD_WS+3}], s56 offen sc0 sc1
s_mov_b64 exec, 1
v_mov_b32 v{VC}, 1
v_mov_b32 v{VD}, s54
s_waitcnt vmcnt(0)
buffer_store_byte v{VC}, v{VD}, s[{SRD_DBG}:{SRD_DBG+3}], 0 offen sc0 sc1
s_mov_b64 exec, -1""")
    lw=a.newlabel("L_now2b")
    a(f"""s_cmp_ge_u32 s53, 240
s_cbranch_scc1 {lw}
v_lshrrev_b32 v{VA}, 2, v1
v_lshlrev_b32 v{VA}, 8, v{VA}
v_and_b32 v{VB}, 3, v1
v_lshlrev_b32 v{VB}, 3, v{VB}
v_add_u32 v{VA}, v{VA}, v{VB}
v_add_u32 v{VA}, {U0}, v{VA}
v_lshlrev_b32 v{VB}, 4, v1""")
    for n in range(8):
        a(f"ds_read_b64_tr_b16 v[{RAW+4*n}:{RAW+4*n+1}], v{VA} offset:{32*n}")
        a(f"ds_read_b64_tr_b16 v[{RAW+4*n+2}:{RAW+4*n+3}], v{VA} offset:{32*n+4096}")
    for n in range(8):
        a(f"""s_lshl_b32 s59, s58, 3
s_add_u32 s59, s59, {n}
s_mul_i32 s60, s59, 13108
s_lshr_b32 s60, s60, 16        ; db
s_mul_i32 s61, s60, 5
s_sub_u32 s61, s59, s61        ; nt%5
s_mul_i32 s60, s60, 48
s_add_u32 s60, s60, s57
s_mul_i32 s60, s60, 5
s_add_u32 s60, s60, s61
s_lshl_b32 s60, s60, 10
s_add_u32 s60, s60, {W2F_OFF}
s_waitcnt lgkmcnt({2*(7-n)})
buffer_store_dwordx4 v[{RAW+4*n}:{RAW+4*n+3}], v{VB}, s[{SRD_WS}:{SRD_WS+3}], s60 offen""")
    a(f"{lw}:")
    lp=a.newlabel("L_poll"); ld=a.newlabel("L_polld")
    a(f"""v_lshlrev_b32 v{VA}, 2, v1
v_mov_b32 v{VB}, 0x01010101
s_mov_b32 s98, 100000
{lp}:
buffer_load_dword v{VC}, v{VA}, s[{SRD_DBG}:{SRD_DBG+3}], 0 offen sc0 sc1
s_waitcnt vmcnt(0)
v_cmp_ne_u32 vcc, v{VB}, v{VC}
s_nop 1
s_cmp_eq_u64 vcc, 0
s_cbranch_scc1 {ld}
s_sleep 4
s_sub_u32 s98, s98, 1
s_cmp_lg_u32 s98, 0
s_cbranch_scc1 {lp}
{ld}:""")
    UR=2
    a(f"v_lshlrev_b32 v{VA}, 4, v1\nv_mov_b32 v{VB}, 0")
    lskip=a.newlabel("L_u2")
    for k in range(3):
        if k==2: a(f"s_cmp_lt_u32 s63, 3\ns_cbranch_scc1 {lskip}")
        a(f"s_add_u32 s56, s53, {256*k}\ns_mul_i32 s56, s56, {GS}\ns_add_u32 s56, s56, {G_OFF}\ns_sub_u32 s57, s56, 4")
        for i in range(4):
            r=UR+32*k+4*i
            a(f"buffer_load_dwordx4 v[{r}:{r+3}], v{VA}, s[{SRD_WS}:{SRD_WS+3}], s57 offen offset:{1024*i} sc0 sc1")
        for i in range(4):
            r=UR+32*k+16+4*i
            a(f"buffer_load_dwordx4 v[{r}:{r+3}], v{VA}, s[{SRD_WS}:{SRD_WS+3}], s56 offen offset:{1024*i} sc0 sc1")
        a(f"buffer_load_dword v{98+k}, v{VB}, s[{SRD_WS}:{SRD_WS+3}], s56 offen offset:4092 sc0 sc1")
    a(f"{lskip}:")
    a(f"v_add_u32 v{VA}, {U0}, v{VA}")
    for i in range(4): a(f"v_mov_b32 v{104+i}, 0")
    a(f"v_cmp_eq_u32 vcc, 0, v1")
    a("s_waitcnt vmcnt(0)")
    lskip=a.newlabel("L_u3")
    for k in range(3):
        if k==2: a(f"s_cmp_lt_u32 s63, 3\ns_cbranch_scc1 {lskip}")
        for i in range(4):
            r=UR+32*k+4*i
            a(f"ds_write_b128 v{VA}, v[{r}:{r+3}] offset:{k*UCH+1024*i}")
        for i in range(4):
            r=UR+32*k+16+4*i
            a(f"ds_write_b128 v{VA}, v[{r}:{r+3}] offset:{k*UCH+UC1+1024*i}")
        a(f"""s_mov_b64 exec, 0xf
ds_write_b128 v{VA}, v[104:107] offset:{k*UCH+UC1+4096}
v_cndmask_b32 v108, v104, v{98+k}, vcc
v_mov_b32 v109, 0
v_mov_b32 v110, 0
v_mov_b32 v111, 0
ds_write_b128 v{VA}, v[108:111] offset:{k*UCH+4096}
s_mov_b64 exec, -1""")
    a(f"{lskip}:")

def gen_conv(a):
    VA0=2; VB0=3; VF=4; VAu=5; VBu=6; VFu=7; T=8
    ACC=12
    FA=44
    FB=76
    a(f"""v_and_b32 v{T}, 15, v1          ; i / col
v_lshrrev_b32 v{T+1}, 4, v1          ; g
v_and_b32 v{T+2}, 1, v1              ; parity
v_mul_u32_u24 v{VA0}, {KC1}, v{T+2}
v_lshrrev_b32 v{T+3}, 1, v{T}
v_lshlrev_b32 v{T+3}, 6, v{T+3}
v_add_u32 v{VA0}, v{VA0}, v{T+3}
v_lshlrev_b32 v{T+3}, 4, v{T+1}
v_add_u32 v{VA0}, v{VA0}, v{T+3}
v_mul_u32_u24 v{VB0}, {UC1}, v{T+2}
v_add_u32 v{VB0}, v{VB0}, v{T+3}
v_add_u32 v{T+3}, v{T}, v{T+2}
v_lshlrev_b32 v{T+3}, 2, v{T+3}
v_sub_u32 v{VB0}, v{VB0}, v{T+3}
v_add_u32 v{VB0}, {U0+2*(1824-1792)}, v{VB0}
v_lshlrev_b32 v{VF}, 2, v1
v_add_u32 v{VF}, {YB}, v{VF}
s_lshl_b32 s54, s63, 1
s_mul_i32 s55, s54, s{S_WAVE}    ; u
s_add_u32 s56, s55, s54          ; end""")
    for i in range(32): a(f"v_mov_b32 v{ACC+i}, 0")
    lloop=a.newlabel("L_cv"); lfl=a.newlabel("L_fl"); lnext=a.newlabel("L_cvn"); ldone=a.newlabel("L_cvd")
    a(f"""{lloop}:
s_lshr_b32 s57, s55, 3           ; ch
s_and_b32 s58, s55, 7            ; m0
s_lshl_b32 s58, s58, 6
s_mul_i32 s59, s57, {REG}
s_mul_i32 s60, s57, {UCH}
s_add_u32 s61, s59, s58
s_add_u32 s60, s60, s58
v_add_u32 v{VAu}, s61, v{VA0}
v_add_u32 v{VBu}, s60, v{VB0}
v_add_u32 v{VFu}, s59, v{VF}""")
    for k in range(8):
        a(f"ds_read_b128 v[{FA+4*k}:{FA+4*k+3}], v{VAu} offset:{512*k}")
        a(f"ds_read_b64 v[{FB+4*k}:{FB+4*k+1}], v{VBu} offset:{512*(7-k)}")
        a(f"ds_read_b64 v[{FB+4*k+2}:{FB+4*k+3}], v{VBu} offset:{512*(7-k)+8}")
    for k in range(8):
        rem=3*(7-k)
        a(f"s_waitcnt lgkmcnt({min(rem,15)})")
        for ip in range(k+1):
            prs={(ip,k),(k,ip)}
            for (i_,c_) in sorted(prs):
                if i_+c_<=7:
                    c=i_+c_
                    a(f"v_mfma_f32_16x16x32_bf16 v[{ACC+4*c}:{ACC+4*c+3}], v[{FA+4*i_}:{FA+4*i_+3}], v[{FB+4*c_}:{FB+4*c_+3}], v[{ACC+4*c}:{ACC+4*c+3}]")
    a(f"""s_add_u32 s55, s55, 1
s_cmp_eq_u32 s55, s56
s_cbranch_scc1 {lfl}
s_and_b32 s58, s55, 7
s_cmp_lg_u32 s58, 0
s_cbranch_scc1 {lloop}
{lfl}:""")
    a.nop(9)
    for i in range(32):
        a(f"ds_add_f32 v{VFu}, v{ACC+i} offset:{256*i}")
    for i in range(32): a(f"v_mov_b32 v{ACC+i}, 0")
    a(f"""s_cmp_lt_u32 s55, s56
s_cbranch_scc1 {lloop}
s_waitcnt lgkmcnt(0)
s_barrier""")
    a(f"""v_lshrrev_b32 v{T+1}, 4, v1
v_lshlrev_b32 v{T+1}, 7, v{T+1}
v_and_b32 v{T}, 15, v1
v_lshlrev_b32 v{T}, 2, v{T}
v_add_u32 v{T}, v{T}, v{T+1}
s_lshl_b32 s54, s{S_WAVE}, 10
v_add_u32 v{VF}, s54, v{VF}
s_lshl_b32 s54, s{S_WAVE}, 9
s_mul_i32 s55, s53, {GS}
s_add_u32 s55, s55, s54
s_add_u32 s55, s55, {Y_OFF}""")
    lsk=a.newlabel("L_fin")
    for k in range(3):
        if k==2: a(f"s_cmp_lt_u32 s63, 3\ns_cbranch_scc1 {lsk}")
        for h in range(2):
            r=ACC+16*(k%2)+8*h
            base=(k*REG+4096*h)
            a(f"v_add_u32 v{VFu}, {base}, v{VF}")
            a(f"ds_read2st64_b32 v[{r}:{r+1}], v{VFu} offset0:0 offset1:1")
            a(f"ds_read2st64_b32 v[{r+2}:{r+3}], v{VFu} offset0:2 offset1:3")
        for h in range(2):
            r=ACC+16*(k%2)+8*h
            a(f"s_waitcnt lgkmcnt({2*(1-h)})")
            a(f"v_cvt_pk_bf16_f32 v{r+4}, v{r}, v{r+1}")
            a(f"v_cvt_pk_bf16_f32 v{r+5}, v{r+2}, v{r+3}")
            a(f"buffer_store_dword v{r+4}, v{T}, s[{SRD_WS}:{SRD_WS+3}], s55 offen offset:{2048*h}")
            a(f"buffer_store_dword v{r+5}, v{T}, s[{SRD_WS}:{SRD_WS+3}], s55 offen offset:{2048*h+64}")
        a(f"s_add_u32 s55, s55, {256*GS}")
    a(f"{lsk}:")

def gen_gemm1(a, opt):
    NX=14
    WR=5
    XL=WR*12288
    ACC=0
    XG0=2; XG1=3; XW=4; XR=5; WS=6; WRD=9; T=12
    ONES=16
    ACC=20
    CS=68
    FR=80
    XS=136
    BB=248
    vm=VM(a)
    a("s_sub_u32 s53, s2, 256\ns_and_b32 s54, s53, 7\ns_lshr_b32 s55, s53, 3")
    if opt.get("map1","loc")=="loc":
        a("s_lshl_b32 s56, s54, 1\ns_lshr_b32 s57, s55, 4\ns_add_u32 s56, s56, s57\ns_and_b32 s57, s55, 15")
    else:
        a("""s_and_b32 s56, s54, 3
s_lshl_b32 s56, s56, 2
s_lshr_b32 s57, s55, 3
s_add_u32 s56, s56, s57
s_lshr_b32 s57, s54, 2
s_lshl_b32 s57, s57, 3
s_and_b32 s58, s55, 7
s_add_u32 s57, s57, s58""")
    a(f"""s_and_b32 s58, s{S_WAVE}, 1
s_lshr_b32 s59, s{S_WAVE}, 1
s_lshl_b32 s60, s56, 7
s_lshl_b32 s61, s{S_WAVE}, 5
s_add_u32 s60, s60, s61
v_lshrrev_b32 v{T}, 2, v1
v_add_u32 v{T+1}, s60, v{T}
v_mul_u32_u24 v{XG0}, 1280, v{T+1}
v_and_b32 v{T+2}, 3, v1
v_lshlrev_b32 v{T+3}, 4, v{T+2}
v_add_u32 v{XG0}, v{XG0}, v{T+3}
v_add_u32 v{XG1}, 20480, v{XG0}""")
    a(f"s_mul_i32 s62, s57, 192\ns_mul_i32 s63, s{S_WAVE}, {16*3072}\ns_add_u32 s62, s62, s63")
    for i in range(3):
        a(f"""v_add_u32 v{T}, {64*i}, v1
v_mul_u32_u24 v{T+1}, 5462, v{T}
v_lshrrev_b32 v{T+1}, 16, v{T+1}
v_mul_u32_u24 v{T+2}, 12, v{T+1}
v_sub_u32 v{T+2}, v{T}, v{T+2}
v_lshrrev_b32 v{T+3}, 3, v{T+1}
v_lshlrev_b32 v{T+3}, 1, v{T+3}
v_xor_b32 v{T+2}, v{T+2}, v{T+3}
v_lshlrev_b32 v{T+2}, 4, v{T+2}
v_mul_u32_u24 v{T+1}, 3072, v{T+1}
v_add_u32 v{T+1}, v{T+1}, v{T+2}
v_add_u32 v{WS+i}, s62, v{T+1}""")
    a(f"s_mul_i32 s64, s{S_WAVE}, 3072")
    def ldx(s):
        r=XS+8*(s%NX)
        a(f"buffer_load_dwordx4 v[{r}:{r+3}], v{XG0}, s[{SRD_X}:{SRD_X+3}], 0 offen offset:{64*s}")
        a(f"buffer_load_dwordx4 v[{r+4}:{r+7}], v{XG1}, s[{SRD_X}:{SRD_X+3}], 0 offen offset:{64*s}")
        vm.issue(("x",s)); vm.issue(("x",s))
    def ldw(S):
        a(f"s_mov_b32 s65, {S*64*3072}")
        for i in range(3):
            a(f"s_add_u32 m0, s64, {(S%WR)*12288+1024*i}")
            a(f"buffer_load_dwordx4 v{WS+i}, s[{SRD_W}:{SRD_W+3}], s65 offen lds")
            vm.issue(("w",S))
    ldx(0); ldw(0); ldx(1); ldx(2); ldw(1); ldx(3); ldx(4); ldw(2); ldx(5); ldx(6); ldw(3); ldx(7); ldx(8); ldw(4)
    for s in range(9,NX): ldx(s)
    a(f"""v_lshrrev_b32 v{T}, 2, v1
v_add_u32 v{T}, s61, v{T}
v_lshlrev_b32 v{T}, 6, v{T}           ; row*64
v_lshrrev_b32 v{T+1}, 5, v1
v_mul_u32_u24 v{T+1}, 3, v{T+1}
v_and_b32 v{T+2}, 3, v1
v_xor_b32 v{T+1}, v{T+1}, v{T+2}
v_lshlrev_b32 v{T+1}, 4, v{T+1}
v_add_u32 v{XW}, v{T}, v{T+1}
v_add_u32 v{XW}, {XL}, v{XW}
v_and_b32 v{T}, 15, v1                ; i
v_lshrrev_b32 v{T+1}, 4, v1           ; g
v_lshrrev_b32 v{T+2}, 3, v{T}
v_mul_u32_u24 v{T+2}, 3, v{T+2}
v_xor_b32 v{T+2}, v{T+2}, v{T+1}
v_lshlrev_b32 v{T+2}, 4, v{T+2}
v_lshlrev_b32 v{T+3}, 6, v{T}
v_add_u32 v{XR}, v{T+2}, v{T+3}
s_lshl_b32 s66, s59, 12
s_add_u32 s66, s66, {XL}
v_add_u32 v{XR}, s66, v{XR}""")
    a("""s_lshl_b32 s67, s58, 2
s_add_u32 s68, s67, 1
s_add_u32 s69, s58, 2""")
    a(f"""v_lshlrev_b32 v{T+2}, 3, v{T+1}       ; 8g
v_lshrrev_b32 v{T+3}, 2, v{T}           ; lam>>2
v_add_u32 v{T+2}, v{T+2}, v{T+3}
v_mul_u32_u24 v{T+2}, 192, v{T+2}
v_and_b32 v{T+3}, 3, v{T}
v_lshlrev_b32 v{T+3}, 3, v{T+3}
v_add_u32 v{T+2}, v{T+2}, v{T+3}
v_and_b32 v{T+3}, 1, v{T+1}""")
    for ft in range(3):
        a(f"""v_xor_b32 v{WRD+ft}, s{67+ft}, v{T+3}
v_lshlrev_b32 v{WRD+ft}, 5, v{WRD+ft}
v_add_u32 v{WRD+ft}, v{WRD+ft}, v{T+2}""")
    for i in range(4): a(f"v_mov_b32 v{ONES+i}, 0x3f803f80")
    for i in range(60): a(f"v_mov_b32 v{ACC+i}, 0")
    def wrx(s):
        vm.wait_for(("x",s))
        r=XS+8*(s%NX)
        a(f"ds_write_b128 v{XW}, v[{r}:{r+3}] offset:{(s&1)*8192}")
        a(f"ds_write_b128 v{XW}, v[{r+4}:{r+7}] offset:{(s&1)*8192+1024}")
    def frag_reads(s):
        fb=FR+28*(s&1); S=s//2; hs=s&1
        out=[]
        wo=(S%WR)*12288+hs*6144
        order=[("a",0),("b",0),("b",1),("a",1),("b",2),("b",3),("a",2)]
        for kind,i in order:
            if kind=="a":
                out.append(f"ds_read_b64_tr_b16 v[{fb+4*i}:{fb+4*i+1}], v{WRD+i} offset:{wo}")
                out.append(f"ds_read_b64_tr_b16 v[{fb+4*i+2}:{fb+4*i+3}], v{WRD+i} offset:{wo+768}")
            else:
                out.append(f"ds_read_b128 v[{fb+12+4*i}:{fb+12+4*i+3}], v{XR} offset:{(s&1)*8192+1024*i}")
        return out
    def mfmas(s):
        fb=FR+28*(s&1); out=[]
        for ft in range(3):
            for tt in range(4):
                c=ACC+(ft*4+tt)*4
                out.append(f"v_mfma_f32_16x16x32_bf16 v[{c}:{c+3}], v[{fb+4*ft}:{fb+4*ft+3}], v[{fb+12+4*tt}:{fb+12+4*tt+3}], v[{c}:{c+3}]")
            c=CS+4*ft
            out.append(f"v_mfma_f32_16x16x32_bf16 v[{c}:{c+3}], v[{fb+4*ft}:{fb+4*ft+3}], v[{ONES}:{ONES+3}], v[{c}:{c+3}]")
        return out
    wrx(0); ldx(NX); wrx(1); ldx(NX+1)
    vm.wait_for(("w",0))
    a("s_waitcnt lgkmcnt(0)\ns_barrier")
    for l in frag_reads(0): a(l)
    for s in range(20):
        if s+1<20: vm.wait_for(("w",(s+1)//2))
        a("s_waitcnt lgkmcnt(0)\ns_barrier")
        mf=mfmas(s)
        rd=frag_reads(s+1) if s+1<20 else []
        k=0
        a(mf[0]); mf=mf[1:]
        if s%2==1 and (s//2+WR)<10: ldw(s//2+WR)
        while rd:
            a(rd.pop(0));
            if rd: a(rd.pop(0))
            if mf: a(mf.pop(0))
        if s+2<20:
            wrx(s+2)
            if s+2+NX<20: ldx(s+2+NX)
        if s==16:
            a(f"""v_lshrrev_b32 v{T}, 4, v1
v_lshlrev_b32 v{T}, 3, v{T}
s_mul_i32 s70, s57, 192""")
            for ft in range(3):
                a(f"s_lshl_b32 s71, s{67+ft}, 5\ns_add_u32 s71, s71, s70\nv_add_u32 v{T+1}, s71, v{T}")
                a(f"global_load_dwordx2 v[{BB+2*ft}:{BB+2*ft+1}], v{T+1}, s[{S_B1}:{S_B1+1}]")
                vm.issue(("b",ft))
        for m in mf: a(m)
    lp=a.newlabel("L_gp"); ld=a.newlabel("L_gpd")
    ST=XS
    B1=XS+8
    H=XS+20
    a(f"""v_and_b32 v{T}, 3, v1
v_lshlrev_b32 v{T}, 2, v{T}
s_lshl_b32 s70, s56, 4
v_add_u32 v{T}, s70, v{T}
v_mov_b32 v{T+1}, 0x01010101
s_mov_b32 s98, 100000
{lp}:
buffer_load_dword v{T+2}, v{T}, s[{SRD_DBG}:{SRD_DBG+3}], 0 offen sc0 sc1
s_waitcnt vmcnt(0)
v_cmp_ne_u32 vcc, v{T+1}, v{T+2}
s_nop 1
s_cmp_eq_u64 vcc, 0
s_cbranch_scc1 {ld}
s_sleep 4
s_sub_u32 s98, s98, 1
s_cmp_lg_u32 s98, 0
s_cbranch_scc1 {lp}
{ld}:
v_and_b32 v{T}, 15, v1
v_lshlrev_b32 v{T}, 3, v{T}
s_lshl_b32 s70, s56, 10
s_lshl_b32 s71, s59, 9
s_add_u32 s70, s70, s71
s_add_u32 s70, s70, {ST_OFF}""")
    vm.q=[]
    for tt in range(4):
        a(f"buffer_load_dwordx2 v[{ST+2*tt}:{ST+2*tt+1}], v{T}, s[{SRD_WS}:{SRD_WS+3}], s70 offen offset:{128*tt} sc0 sc1")
    for ft in range(3):
        for k in range(2):
            a(f"v_lshlrev_b32 v{B1+4*ft+2*k}, 16, v{BB+2*ft+k}")
            a(f"v_and_b32 v{B1+4*ft+2*k+1}, 0xffff0000, v{BB+2*ft+k}")
    a(f"""s_lshl_b32 s70, s56, 1
s_add_u32 s70, s70, s59
s_mul_i32 s70, s70, 48
s_mul_i32 s71, s57, 3
s_add_u32 s70, s70, s71
s_lshl_b32 s71, s58, 1
s_add_u32 s71, s71, s70
s_lshl_b32 s71, s71, 12
s_add_u32 s71, s71, {ACT_OFF}      ; pair
s_add_u32 s72, s70, 1
s_lshl_b32 s72, s72, 12
s_lshl_b32 s73, s58, 3
s_add_u32 s72, s72, s73
s_add_u32 s72, s72, {ACT_OFF}      ; single
v_lshlrev_b32 v{T}, 4, v1
s_mov_b32 s74, 0x{LOG2E:08x}
s_mov_b32 s75, 0x{LOG2E:08x}
s_mov_b32 s76, 0x{f2u(28.0):08x}
s_waitcnt vmcnt(0)""")
    OUT=H+16
    for tt in range(4):
        r_=ST+2*tt
        o=OUT+8*(tt&1)
        for ft in range(3):
            for k in range(2):
                c=ACC+(ft*4+tt)*4+2*k
                h=H+ (ft*2+k)%2*8
                e=h+2; d=h+4
                a(f"v_pk_fma_f32 v[{h}:{h+1}], v[{CS+4*ft+2*k}:{CS+4*ft+2*k+1}], v[{r_}:{r_+1}], v[{B1+4*ft+2*k}:{B1+4*ft+2*k+1}] op_sel:[0,1,0] op_sel_hi:[1,1,1]")
                a(f"v_pk_fma_f32 v[{h}:{h+1}], v[{c}:{c+1}], v[{r_}:{r_+1}], v[{h}:{h+1}] op_sel:[0,0,0] op_sel_hi:[1,0,1]")
                a(f"v_pk_mul_f32 v[{e}:{e+1}], v[{h}:{h+1}], s[74:75]")
                a(f"v_min_f32 v{e}, s76, v{e}")
                a(f"v_min_f32 v{e+1}, s76, v{e+1}")
                a(f"v_exp_f32 v{e}, v{e}")
                a(f"v_exp_f32 v{e+1}, v{e+1}")
                a(f"v_pk_add_f32 v[{d}:{d+1}], v[{e}:{e+1}], 2.0 op_sel_hi:[1,0]")
                a(f"v_pk_fma_f32 v[{d}:{d+1}], v[{e}:{e+1}], v[{d}:{d+1}], 2.0 op_sel_hi:[1,1,0]")
                a(f"v_rcp_f32 v{d}, v{d}")
                a(f"v_rcp_f32 v{d+1}, v{d+1}")
                a(f"v_pk_mul_f32 v[{d}:{d+1}], v[{d}:{d+1}], v[{h}:{h+1}]")
                a(f"v_pk_fma_f32 v[{h}:{h+1}], v[{d}:{d+1}], -2.0, v[{h}:{h+1}] op_sel_hi:[1,0,1]")
                a(f"v_cvt_pk_bf16_f32 v{o+2*ft+k}, v{h}, v{h+1}")
        a(f"buffer_store_dwordx4 v[{o}:{o+3}], v{T}, s[{SRD_WS}:{SRD_WS+3}], s71 offen offset:{1024*tt}")
        a(f"buffer_store_dwordx2 v[{o+4}:{o+5}], v{T}, s[{SRD_WS}:{SRD_WS+3}], s72 offen offset:{1024*tt}")

def gen_kernelA(opt):
    a=Asm()
    a(f"""s_cmp_ge_u32 s2, 512
s_cbranch_scc1 L_A_end
s_load_dwordx16 s[4:19], s[0:1], 0
s_load_dwordx16 s[20:35], s[0:1], 64
v_and_b32 v1, 63, v0
v_lshrrev_b32 v2, 6, v0
v_readfirstlane_b32 s{S_WAVE}, v2
s_waitcnt lgkmcnt(0)""")
    srd(a,SRD_WS,S_WS,WS_END); srd(a,SRD_X,S_X,2048*1280); srd(a,SRD_DBG,S_DBG,256)
    a("s_cmp_ge_u32 s2, 256\ns_cbranch_scc1 L_A_gemm")
    srd(a,SRD_W,S_W2,1536*1280)
    a(f"""s_mov_b32 s53, s2
s_cmp_lt_u32 s53, 128
s_cselect_b32 s63, 3, 2
s_cmp_eq_u32 s{S_WAVE}, 3
s_cbranch_scc1 L_A_ln
s_cmp_ge_u32 s{S_WAVE}, s63
s_cbranch_scc1 L_A_conv
s_lshl_b32 s54, s{S_WAVE}, 8
s_add_u32 s54, s54, s53
s_mul_i32 s55, s{S_WAVE}, {REG}""")
    gen_kgen(a)
    a("s_branch L_A_conv\nL_A_ln:")
    gen_ln(a)
    a("L_A_conv:\ns_waitcnt lgkmcnt(0)\ns_barrier")
    gen_conv(a)
    a("s_endpgm\nL_A_gemm:")
    srd(a,SRD_W,S_W1,640*3072)
    gen_gemm1(a,opt)
    a("L_A_end:\ns_endpgm")
    return a.text()

def gen_kernelB(opt):
    a=Asm(); vm=VM(a)
    NS=6
    T=2; VL=6; VL2=7; XA=8; ID=10
    XV=18
    YF=28
    ACC=48
    RD=128
    a(f"""s_cmp_ge_u32 s2, 256
s_cbranch_scc1 L_B_end
s_load_dwordx2 s[4:5], s[0:1], 0
s_load_dwordx2 s[6:7], s[0:1], 104
s_load_dwordx2 s[8:9], s[0:1], 120
v_and_b32 v1, 63, v0
v_lshrrev_b32 v2, 6, v0
v_readfirstlane_b32 s{S_WAVE}, v2
s_and_b32 s54, s2, 7
s_lshr_b32 s55, s2, 3
s_lshl_b32 s56, s54, 2
s_lshr_b32 s57, s55, 3
s_add_u32 s56, s56, s57         ; tb
s_and_b32 s57, s55, 7           ; db
v_lshlrev_b32 v{VL}, 4, v1
v_add_u32 v{VL2}, 4096, v{VL}
s_mul_i32 s58, s{S_WAVE}, 12
s_mul_i32 s59, s56, 48
s_add_u32 s59, s59, s58
s_lshl_b32 s59, s59, 12
s_add_u32 s59, s59, {ACT_OFF}
s_mul_i32 s60, s57, 48
s_add_u32 s60, s60, s58
s_mul_i32 s60, s60, 5120
s_add_u32 s60, s60, {W2F_OFF}   ; w2f base
s_waitcnt lgkmcnt(0)""")
    srd(a,SRD_WS,8,WS_END); srd(a,SRD_X,4,2048*1280); srd(a,SRD_W,6,2048*1280)
    def ld(j):
        b=36*(j%NS)
        a(f"s_add_u32 s61, s60, {5120*j}\ns_add_u32 s62, s59, {4096*j}")
        for n in range(5):
            if n<4: a(f"buffer_load_dwordx4 a[{b+4*n}:{b+4*n+3}], v{VL}, s[{SRD_WS}:{SRD_WS+3}], s61 offen offset:{1024*n}")
            else:   a(f"buffer_load_dwordx4 a[{b+16}:{b+19}], v{VL2}, s[{SRD_WS}:{SRD_WS+3}], s61 offen")
            vm.issue(("s",j))
        for m in range(4):
            a(f"buffer_load_dwordx4 a[{b+20+4*m}:{b+23+4*m}], v{VL}, s[{SRD_WS}:{SRD_WS+3}], s62 offen offset:{1024*m}")
            vm.issue(("s",j))
    ld(0); ld(1)
    a(f"""v_and_b32 v{T}, 15, v1
v_lshrrev_b32 v{T+1}, 4, v1
v_mul_u32_u24 v{T+2}, {GS}, v{T}
v_lshlrev_b32 v{T+3}, 4, v{T+1}
v_add_u32 v{T+2}, v{T+2}, v{T+3}
s_mul_i32 s63, s57, {80*GS}
s_lshl_b32 s64, s56, 7
s_add_u32 s63, s63, s64
s_lshr_b32 s64, s{S_WAVE}, 1
s_lshl_b32 s64, s64, 6
s_add_u32 s63, s63, s64
s_add_u32 s63, s63, {Y_OFF}""")
    for dt in range(5):
        a(f"buffer_load_dwordx4 v[{YF+4*dt}:{YF+4*dt+3}], v{T+2}, s[{SRD_WS}:{SRD_WS+3}], s63 offen")
        vm.issue("y")
        if dt<4: a(f"s_add_u32 s63, s63, {16*GS}")
    a(f"""v_lshrrev_b32 v{XA}, 2, v1
v_mul_u32_u24 v{XA}, 1280, v{XA}
v_and_b32 v{T+3}, 3, v1
v_mul_u32_u24 v{T+3}, 40, v{T+3}
v_add_u32 v{XA}, v{XA}, v{T+3}
s_lshl_b32 s64, s56, 2
s_add_u32 s64, s64, s{S_WAVE}
s_mul_i32 s64, s64, {16*1280}
s_mul_i32 s65, s57, 160
s_add_u32 s64, s64, s65
buffer_load_dwordx4 v[{XV}:{XV+3}], v{XA}, s[{SRD_X}:{SRD_X+3}], s64 offen
buffer_load_dwordx4 v[{XV+4}:{XV+7}], v{XA}, s[{SRD_X}:{SRD_X+3}], s64 offen offset:16
buffer_load_dwordx2 v[{XV+8}:{XV+9}], v{XA}, s[{SRD_X}:{SRD_X+3}], s64 offen offset:32""")
    for _ in range(3): vm.issue("x")
    for j in range(2,NS): ld(j)
    a(f"""s_and_b32 s65, s{S_WAVE}, 1
s_lshl_b32 s65, s65, 4
v_add_u32 v{T+2}, s65, v{T}
v_lshlrev_b32 v{T+3}, 3, v{T+1}
v_sub_u32 v{T+2}, v{T+2}, v{T+3}       ; e
v_mov_b32 v{ID+4}, 0x3f80
v_mov_b32 v{ID+5}, 0x3f800000""")
    for k in range(4):
        a(f"""v_cmp_eq_u32 vcc, {2*k}, v{T+2}
v_cndmask_b32 v{ID+k}, 0, v{ID+4}, vcc
v_cmp_eq_u32 vcc, {2*k+1}, v{T+2}
v_cndmask_b32 v{ID+k}, v{ID+k}, v{ID+5}, vcc""")
    for i in range(80): a(f"v_mov_b32 v{ACC+i}, 0")
    vm.wait_for("y")
    labs=[a.newlabel("L_y") for _ in range(5)]
    for w in range(4):
        a(f"{labs[w]}:")
        if w<3: a(f"s_cmp_lg_u32 s{S_WAVE}, {w}\ns_cbranch_scc1 {labs[w+1]}")
        a.nop(2)
        for dt in range(5):
            c=ACC+(dt*4+w)*4
            a(f"v_mfma_f32_16x16x32_bf16 v[{c}:{c+3}], v[{YF+4*dt}:{YF+4*dt+3}], v[{ID}:{ID+3}], v[{c}:{c+3}]")
        if w<3: a(f"s_branch {labs[4]}")
    a(f"{labs[4]}:")
    for j in range(12):
        vm.wait_for(("s",j))
        b=36*(j%NS)
        for dt in range(5):
            for mt in range(4):
                c=ACC+(dt*4+mt)*4
                a(f"v_mfma_f32_16x16x32_bf16 v[{c}:{c+3}], a[{b+4*dt}:{b+4*dt+3}], a[{b+20+4*mt}:{b+23+4*mt}], v[{c}:{c+3}]")
        if j+NS<12: ld(j+NS)
    RS=336; PW=64*RS
    a(f"""v_and_b32 v{T}, 15, v1
v_mul_u32_u24 v{T}, {RS}, v{T}
v_lshrrev_b32 v{T+1}, 4, v1
v_lshlrev_b32 v{T+1}, 4, v{T+1}
v_add_u32 v{T}, v{T}, v{T+1}
s_mul_i32 s65, s{S_WAVE}, {PW}
v_add_u32 v{T}, s65, v{T}
v_lshrrev_b32 v{T+1}, 2, v1
v_mul_u32_u24 v{T+1}, {RS}, v{T+1}
v_and_b32 v{T+2}, 3, v1
v_mul_u32_u24 v{T+2}, 80, v{T+2}
v_add_u32 v{T+1}, v{T+1}, v{T+2}
s_mul_i32 s65, s{S_WAVE}, {16*RS}
v_add_u32 v{T+1}, s65, v{T+1}
v_add_u32 v{T+2}, {2*PW}, v{T+1}""")
    for dt in range(5):
        for mt in range(4):
            c=ACC+(dt*4+mt)*4
            a(f"ds_write_b128 v{T}, v[{c}:{c+3}] offset:{mt*16*RS+dt*64}")
    a("s_waitcnt lgkmcnt(0)\ns_barrier")
    for p in range(4):
        for i in range(5):
            r=RD+20*p+4*i
            a(f"ds_read_b128 v[{r}:{r+3}], v{T+1+(p>>1)} offset:{(p&1)*PW+16*i}")
    for k in range(10):
        a(f"v_lshlrev_b32 v{ACC+2*k}, 16, v{XV+k}")
        a(f"v_and_b32 v{ACC+2*k+1}, 0xffff0000, v{XV+k}")
    for p in range(4):
        a(f"s_waitcnt lgkmcnt({5*(3-p)})")
        for k in range(10):
            a(f"v_pk_add_f32 v[{ACC+2*k}:{ACC+2*k+1}], v[{ACC+2*k}:{ACC+2*k+1}], v[{RD+20*p+2*k}:{RD+20*p+2*k+1}]")
    for k in range(10):
        a(f"v_cvt_pk_bf16_f32 v{XV+k}, v{ACC+2*k}, v{ACC+2*k+1}")
    a(f"""buffer_store_dwordx4 v[{XV}:{XV+3}], v{XA}, s[{SRD_W}:{SRD_W+3}], s64 offen
buffer_store_dwordx4 v[{XV+4}:{XV+7}], v{XA}, s[{SRD_W}:{SRD_W+3}], s64 offen offset:16
buffer_store_dwordx2 v[{XV+8}:{XV+9}], v{XA}, s[{SRD_W}:{SRD_W+3}], s64 offen offset:32
L_B_end:
s_endpgm""")
    return a.text(), 4*PW

HEADER = open("parallel_sum__ssm_conv_s4__dense_activation_mish__prompt.s.ref").read().split("; Override launch")[0]

def kd(name, vgpr, accum, sgpr=102):
    return f""".amdhsa_kernel {name}
  .amdhsa_next_free_vgpr {vgpr}
  .amdhsa_next_free_sgpr {sgpr}
  .amdhsa_accum_offset {accum}
  .amdhsa_group_segment_fixed_size 0
  .amdhsa_kernarg_size 128
  .amdhsa_user_sgpr_count 2
  .amdhsa_user_sgpr_kernarg_segment_ptr 1
  .amdhsa_system_sgpr_workgroup_id_x 1
.end_amdhsa_kernel
"""

def build(opt):
    A=gen_kernelA(opt); B,ldsB=gen_kernelB(opt)
    s=HEADER
    s+=f"; @launch kernel=stage_a_kernel grid=(512,1,1) block=(256,1,1) lds={LDS_A}\n"
    s+=f"; @launch kernel=stage_b_kernel grid=(256,1,1) block=(256,1,1) lds={ldsB}\n"
    s+='.amdgcn_target "amdgcn-amd-amdhsa--gfx950"\n.text\n'
    for name,body in (("stage_a_kernel",A),("stage_b_kernel",B)):
        s+=f".globl {name}\n.p2align 8\n.type {name},@function\n{name}:\n{body}"
    s+='.section .rodata,"a"\n.p2align 6\n'+kd("stage_a_kernel",256,256)+".p2align 6\n"+kd("stage_b_kernel",208+216,208)
    return s

if __name__=="__main__":
    opt={}
    out=sys.argv[1] if len(sys.argv)>1 else "parallel_sum__ssm_conv_s4__dense_activation_mish__prompt.s"
    for kv in sys.argv[2:]:
        k,v=kv.split("="); opt[k]=v
    open(out,"w").write(build(opt))
    print("wrote",out)
```

```python
import sys, struct
from asmlib import Asm, VM

def f2u(x): return struct.unpack("<I", struct.pack("<f", x))[0]

GS      = 4160
G_OFF   = 0
ST_OFF  = 0x280000
FL_OFF  = 0x290000
Y_OFF   = 0x2B0000
W2F_OFF = 0x540000
ACT_OFF = 0x720000
WS_END  = 0xF00000
TS_OFF  = 0xE00000
TROW = 272
REG  = 17408
KC1  = 4576
YB   = 9120
U0   = 3*REG
UCH  = 8448
UC1  = 4224
LDS_A = 81920
LOG2E = 0x3fb8aa3b; LOG2E_LO = 0x32a5705f; LN2 = 0x3f317218

S_X=4; S_ARE=6; S_AIM=8; S_BRE=10; S_BIM=12; S_CRE=14; S_CIM=16; S_LDT=18
S_DSK=20; S_W1=24; S_B1=26; S_W2=28; S_OUT=30; S_DBG=32; S_WS=34
SRD_WS=36; SRD_X=40; SRD_W=44; SRD_DBG=48
S_WAVE=52
PROF=False
NOWAIT=False

def srd(a, dst, ptr, nbytes):
    a(f"""s_mov_b32 s{dst}, s{ptr}
s_and_b32 s{dst+1}, s{ptr+1}, 0xffff
s_mov_b32 s{dst+2}, {nbytes}
s_mov_b32 s{dst+3}, 0x00020000""")

def cmul(dst, z, m, t, conj=False):
    if not conj:
        return [f"v_pk_mul_f32 v[{t}:{t+1}], v[{z}:{z+1}], v[{m}:{m+1}] op_sel:[0,0] op_sel_hi:[0,1]",
                f"v_pk_fma_f32 v[{dst}:{dst+1}], v[{z}:{z+1}], v[{m}:{m+1}], v[{t}:{t+1}] op_sel:[1,1,0] op_sel_hi:[1,0,1] neg_lo:[0,1,0]"]
    return [f"v_pk_mul_f32 v[{t}:{t+1}], v[{z}:{z+1}], v[{m}:{m+1}] op_sel:[0,0] op_sel_hi:[0,1] neg_hi:[0,1]",
            f"v_pk_fma_f32 v[{dst}:{dst+1}], v[{z}:{z+1}], v[{m}:{m+1}], v[{t}:{t+1}] op_sel:[1,1,0] op_sel_hi:[1,0,1]"]

def stamp(a, idx, reg=255):
    if not PROF: return
    a(f"""s_memrealtime s[100:101]
s_waitcnt lgkmcnt(0)
v_writelane_b32 v{reg}, s100, {idx}""")
def stampc(a, idx, reg=255):
    if not PROF: return
    a(f"""s_memtime s[100:101]
s_waitcnt lgkmcnt(0)
v_writelane_b32 v{reg}, s100, {idx}""")
def stamp_flush(a, kern=0, reg=255, tmp=254):
    if not PROF: return
    stampc(a,15,reg)
    a(f"""s_lshl_b32 s100, s2, 2
s_add_u32 s100, s100, s{S_WAVE}
s_lshl_b32 s100, s100, 6
s_add_u32 s100, s100, {TS_OFF+kern*0x40000}
v_lshlrev_b32 v{tmp}, 2, v1
s_mov_b64 exec, 0xffff
buffer_store_dword v{reg}, v{tmp}, s[{SRD_WS}:{SRD_WS+3}], s100 offen
s_mov_b64 exec, -1""")

def get_epoch(a, vz, vt, sdst):
    lp=a.newlabel("L_ep"); ld=a.newlabel("L_epd")
    a(f"""s_mov_b32 s98, {1 if NOWAIT else 200000}
{lp}:
buffer_load_dword v{vt}, v{vz}, s[{SRD_DBG}:{SRD_DBG+3}], 0 offen sc0 sc1
s_waitcnt vmcnt(0)
v_readfirstlane_b32 s{sdst}, v{vt}
s_cmp_lg_u32 s{sdst}, 0
s_cbranch_scc1 {ld}
s_sleep 2
s_sub_u32 s98, s98, 1
s_cmp_lg_u32 s98, 0
s_cbranch_scc1 {lp}
{ld}:""")

def gen_kgen(a):
    RAW=2; P=14
    A2=20; B2=21; DT=22; VT=23
    Z=24; C=26; T=28; T2=30; E1=32; E2=34; E4=36; E8=38; E248=40; X=42; Y=43; S_=44; CO=45
    PKS=[46,47,48,49]; ONE=50
    FA=51; FB=52
    ACC=56
    FR=72
    arrs=[S_ARE,S_AIM,S_BRE,S_BIM,S_CRE,S_CIM]
    a(f"""s_mul_i32 s56, s54, 384
v_lshlrev_b32 v{X}, 2, v1
v_add_u32 v{X}, s56, v{X}
v_lshlrev_b32 v{Y}, 1, v1
v_add_u32 v{Y}, s56, v{Y}
s_lshr_b32 s57, s54, 1
s_lshl_b32 s57, s57, 2
s_load_dword s58, s[{S_LDT}:{S_LDT+1}], s57
s_load_dword s59, s[{S_DSK}:{S_DSK+1}], s57""")
    for i,s in enumerate(arrs):
        a(f"global_load_dword v{RAW+i}, v{X}, s[{s}:{s+1}]")
    for i in range(6): a(f"v_mov_b32 v{RAW+6+i}, 0")
    for i,s in enumerate(arrs):
        a(f"global_load_short_d16_hi v{RAW+6+i}, v{Y}, s[{s}:{s+1}] offset:256")
    a(f"""s_mov_b32 m0, s55
v_and_b32 v{FB}, 31, v1
v_mul_u32_u24 v{FB}, {TROW}, v{FB}
v_lshrrev_b32 v{FA}, 5, v1
v_lshlrev_b32 v{FA}, 4, v{FA}
v_add_u32 v{FB}, v{FB}, v{FA}
v_add_u32 v{FB}, s55, v{FB}
v_add_u32 v{FA}, {32*TROW}, v{FB}""")
    for i in range(16): a(f"v_mov_b32 v{ACC+i}, 0")
    a(f"""s_waitcnt lgkmcnt(0)
s_and_b32 s57, s54, 1
s_lshl_b32 s57, s57, 4
s_lshr_b32 s58, s58, s57
s_lshl_b32 s58, s58, 16
s_lshr_b32 s59, s59, s57
s_lshl_b32 s59, s59, 16
s_mov_b32 s60, 0x{LOG2E:08x}
s_mov_b32 s61, 0x{LOG2E_LO:08x}
s_mov_b32 s62, 0x{LN2:08x}
v_mov_b32 v{X}, s58
v_mul_f32 v{Y}, s60, v{X}
v_fma_f32 v{S_}, v{X}, s60, -v{Y}
v_fma_f32 v{S_}, v{X}, s61, v{S_}
v_exp_f32 v{Y}, v{Y}
v_mul_f32 v{S_}, s62, v{S_}
v_fma_f32 v{Y}, v{Y}, v{S_}, v{Y}
v_cvt_pk_bf16_f32 v{Y}, v{Y}, v{Y}
v_lshlrev_b32 v{DT}, 16, v{Y}
v_mov_b32 v{ONE}, 0x3f80
s_waitcnt vmcnt(6)""")
    stamp(a,1); stampc(a,2)
    DX=[136,137,138]; DY=[139,140,141]; DS=[142,143,144]; DC=[145,146,147]
    def setup(g):
        L=[]
        for i in range(6):
            if g==0: L.append(f"v_lshlrev_b32 v{P+i}, 16, v{RAW+i}")
            elif g==1: L.append(f"v_and_b32 v{P+i}, 0xffff0000, v{RAW+i}")
        src=[(P+i) if g<2 else (RAW+6+i) for i in range(6)]
        ar,ai,br,bi,cr,ci=src
        L+=[f"v_mul_f32 v{A2}, v{ar}, v{DT}", f"v_mul_f32 v{B2}, v{ai}, v{DT}",
            f"v_mul_f32 v{A2}, s60, v{A2}", f"v_mul_f32 v{B2}, 0.15915494, v{B2}"]
        lam=[1,8,248]; dst=[E1,E8,E248]
        for k in (1,2):
            L+=[f"v_mul_f32 v{DY[k]}, 0x{f2u(float(lam[k])):08x}, v{B2}", f"v_mul_f32 v{DX[k]}, 0x{f2u(float(lam[k])):08x}, v{A2}"]
        L+=[f"v_fract_f32 v{DY[0]}, v{B2}", f"v_fract_f32 v{DY[1]}, v{DY[1]}", f"v_fract_f32 v{DY[2]}, v{DY[2]}",
            f"v_exp_f32 v{DX[0]}, v{A2}", f"v_exp_f32 v{DX[1]}, v{DX[1]}", f"v_exp_f32 v{DX[2]}, v{DX[2]}"]
        for k in range(3): L+=[f"v_sin_f32 v{DS[k]}, v{DY[k]}", f"v_cos_f32 v{DC[k]}, v{DY[k]}"]
        L+=[f"v_mul_f32 v{Z}, v{cr}, v{br}", f"v_mul_f32 v{Z+1}, v{cr}, v{bi}",
            f"v_fma_f32 v{Z}, -v{ci}, v{bi}, v{Z}", f"v_fma_f32 v{Z+1}, v{ci}, v{br}, v{Z+1}",
            f"v_mul_f32 v{Z}, v{Z}, v{DT}", f"v_mul_f32 v{Z+1}, -v{Z+1}, v{DT}"]
        for k in range(3): L+=[f"v_mul_f32 v{dst[k]+1}, v{DX[k]}, v{DS[k]}", f"v_mul_f32 v{dst[k]}, v{DX[k]}, v{DC[k]}"]
        L+=cmul(E2,E1,E1,T)+cmul(E4,E2,E2,T)
        return L
    rowseq=[(E1,[1]),(E1,[2]),(E1,[3]),(E1,[4]),(E1,[5]),(E1,[6]),(E1,[7]),(E1,[]),
            (E248,[8]),(E2,[9]),(E2,[10,12]),(E2,[13]),(E2,[14]),
            (E248,[16]),(E4,[17,20]),(E4,[21]),(E248,[18]),(E4,[19,22]),(E4,[23]),
            (E248,[24]),(E8,[28]),(E248,[25]),(E8,[29]),(E248,[26]),(E8,[30]),(E248,[27]),(E8,[31])]
    for l in setup(0): a(l)
    pend=[]
    for g in range(3):
        if g==0: stampc(a,9)
        wq=[]
        pk=0
        def cvt(src, rows):
            nonlocal pk
            r=PKS[pk%4]; pk+=1
            a(f"v_cvt_pk_bf16_f32 v{r}, v{src}, v{src+1}")
            return [f"ds_write_addtid_b32 v{r} offset:{x*TROW}" for x in rows]
        a(f"ds_write_addtid_b32 v{ONE}")
        wq=cvt(Z,[32])+cvt(E8,[1])
        cur=E8
        for j in range(2,32):
            k=j-2
            c1=cmul(C,cur,E8,T); cur=C
            c2=cmul(Z,Z,rowseq[k][0],T2,conj=True) if k<len(rowseq) else []
            a(c1[0])
            if c2: a(c2[0])
            a(c1[1])
            if c2: a(c2[1])
            nq=cvt(C,[j])
            if c2 and rowseq[k][1]: nq+=cvt(Z,[32+r for r in rowseq[k][1]])
            while wq: a(wq.pop(0))
            if pend and j%3==0: a(pend.pop(0))
            wq=nq
        for w in wq: a(w)
        assert not pend
        if g==0: stampc(a,10)
        if g==1: a("s_waitcnt vmcnt(0)")
        a("s_waitcnt lgkmcnt(0)")
        for q in range(8):
            a(f"ds_read_b128 v[{FR+8*q}:{FR+8*q+3}], v{FA} offset:{32*q}")
            a(f"ds_read_b128 v[{FR+8*q+4}:{FR+8*q+7}], v{FB} offset:{32*q}")
        if g<2:
            for l in setup(g+1): a(l)
        else:
            a(f"""v_mov_b32 v{T}, 0
v_mov_b32 v{T+1}, 0
v_mov_b32 v{T2}, 0
v_mov_b32 v{T2+1}, 0
v_lshlrev_b32 v{S_}, 4, v1
v_add_u32 v{S_}, s55, v{S_}
v_and_b32 v{X}, 31, v1
v_lshlrev_b32 v{X}, 4, v{X}
v_lshrrev_b32 v{Y}, 5, v1
v_lshlrev_b32 v{Y}, 3, v{Y}
v_add_u32 v{X}, v{X}, v{Y}
v_add_u32 v{X}, s55, v{X}
v_cmp_lt_u32 vcc, 31, v1""")
        a("s_waitcnt lgkmcnt(0)")
        stampc(a,11 if g==0 else (12 if g==1 else 13))
        pend=[f"v_mfma_f32_32x32x16_bf16 v[{ACC}:{ACC+15}], v[{FR+8*q}:{FR+8*q+3}], v[{FR+8*q+4}:{FR+8*q+7}], v[{ACC}:{ACC+15}]" for q in range(8)]
    for m in pend[:4]: a(m)
    a(f"""s_mov_b32 exec_hi, 0
ds_write_b128 v{S_}, v[{T}:{T+3}]
ds_write_b128 v{S_}, v[{T}:{T+3}] offset:{KC1}
s_mov_b64 exec, -1""")
    for m in pend[4:]: a(m)
    a(f"""s_mov_b64 exec, 1
v_add_f32 v{ACC}, s59, v{ACC}
s_mov_b64 exec, -1""")
    ac=lambda i: ACC+i
    a(f"v_cndmask_b32 v{S_}, v{ac(8)}, v{ac(9)}, vcc")
    a(f"v_cndmask_b32 v{CO}, v{ac(10)}, v{ac(11)}, vcc")
    blocks=[(0,[ac(0),ac(1),ac(2),ac(3)]),(256,[ac(4),ac(4),ac(5),ac(6)]),(512,[ac(8),ac(8),S_,ac(9)]),(768,[ac(10),ac(10),CO,ac(11)])]
    Q=FR
    for n,(base,e) in enumerate(blocks):
        p=Q+4*n
        a(f"v_cvt_pk_bf16_f32 v{p}, v{e[0]}, v{e[1]}")
        a(f"v_cvt_pk_bf16_f32 v{p+1}, v{e[2]}, v{e[3]}")
        a(f"v_cvt_pk_bf16_f32 v{p+2}, v{e[1]}, v{e[2]}")
    for b in range(4):
        p=Q+16+2*b
        a(f"v_cvt_pk_bf16_f32 v{p}, v{ac(12+b)}, v{ac(12+b)}")
        a(f"v_mov_b32 v{p+1}, v{p}")
    for n,(base,e) in enumerate(blocks):
        p=Q+4*n
        a(f"ds_write_b64 v{X}, v[{p}:{p+1}] offset:{KC1+2*(base+224)}")
        a(f"ds_write_b16 v{X}, v{p} offset:{2*(base+225)}")
        a(f"ds_write_b32 v{X}, v{p+2} offset:{2*(base+226)}")
        a(f"ds_write_b16_d16_hi v{X}, v{p+1} offset:{2*(base+228)}")
    for b in range(4):
        p=Q+16+2*b; base=1024+256*b
        a(f"ds_write_b64 v{X}, v[{p}:{p+1}] offset:{KC1+2*(base+224)}")
        a(f"ds_write_b16 v{X}, v{p} offset:{2*(base+225)}")
        a(f"ds_write_b32 v{X}, v{p} offset:{2*(base+226)}")
        a(f"ds_write_b16 v{X}, v{p} offset:{2*(base+228)}")
    a("s_mov_b64 exec, 0x55555555")
    for b in range(4):
        p=Q+16+2*b
        a(f"ds_write_b16 v{X}, v{p} offset:{KC1+2*(1024+256*b+4+224)}")
        a(f"ds_write_b16 v{X}, v{p} offset:{2*(1024+256*b+4+225)}")
    a("s_mov_b64 exec, -1")

def gen_aux(a):
    RAW=2
    XC=130
    VA=200; VB=201; VC=202; VD=203; VZ=204; VX=205
    le=a.newlabel("L_noep")
    a(f"""v_mov_b32 v{VZ}, 0
s_cmp_lg_u32 s53, 0
s_cbranch_scc1 {le}
s_memrealtime s[56:57]
s_waitcnt lgkmcnt(0)
s_or_b32 s56, s56, 1
v_mov_b32 v{VA}, s56
s_mov_b64 exec, 1
buffer_store_dword v{VA}, v{VZ}, s[{SRD_DBG}:{SRD_DBG+3}], 0 offen sc0 sc1
s_mov_b64 exec, -1
{le}:""")
    lw=a.newlabel("L_now2")
    a(f"""s_cmp_ge_u32 s53, 240
s_cbranch_scc1 {lw}
s_mul_i32 s57, s53, 13108
s_lshr_b32 s57, s57, 16          ; j
s_mul_i32 s58, s57, 5
s_sub_u32 s58, s53, s58          ; grp
s_lshl_b32 s59, s58, 3
s_mul_i32 s59, s59, 13108
s_lshr_b32 s59, s59, 16
s_min_u32 s59, s59, 5
v_lshrrev_b32 v{VB}, 5, v1
v_mul_u32_u24 v{VB}, 1280, v{VB}
v_and_b32 v{VC}, 31, v1
v_min_u32 v{VC}, 29, v{VC}
v_lshlrev_b32 v{VC}, 4, v{VC}
v_add_u32 v{VB}, v{VB}, v{VC}
s_mul_i32 s60, s57, {32*1280}
s_mul_i32 s61, s59, 160
s_add_u32 s60, s60, s61""")
    for i in range(16):
        a(f"s_mov_b32 m0, {U0+1024*i}")
        a(f"s_add_u32 s61, s60, {2*i*1280}")
        a(f"buffer_load_dwordx4 v{VB}, s[{SRD_W}:{SRD_W+3}], s61 offen lds")
    a(f"""v_lshrrev_b32 v{VA}, 2, v1
v_lshlrev_b32 v{VA}, 9, v{VA}
v_and_b32 v{VB}, 3, v1
v_mul_u32_u24 v{VB}, 40, v{VB}
v_add_u32 v{VA}, v{VA}, v{VB}
v_add_u32 v{VA}, {U0}, v{VA}
v_lshlrev_b32 v{VB}, 4, v1
s_waitcnt vmcnt(0)""")
    for n in range(8):
        a(f"""s_lshl_b32 s60, s58, 3
s_add_u32 s60, s60, {n}
s_mul_i32 s61, s60, 13108
s_lshr_b32 s61, s61, 16
s_mul_i32 s62, s61, 5
s_sub_u32 s62, s60, s62
s_sub_u32 s65, s61, s59
s_mul_i32 s65, s65, 160
s_lshl_b32 s66, s62, 3
s_add_u32 s65, s65, s66
v_add_u32 v{VC}, s65, v{VA}
ds_read_b64_tr_b16 v[{RAW+4*n}:{RAW+4*n+1}], v{VC}
ds_read_b64_tr_b16 v[{RAW+4*n+2}:{RAW+4*n+3}], v{VC} offset:8192
s_mul_i32 s61, s61, 48
s_add_u32 s61, s61, s57
s_mul_i32 s61, s61, 5
s_add_u32 s61, s61, s62
s_lshl_b32 s61, s61, 10
s_add_u32 s{68+n}, s61, {W2F_OFF}""")
    for n in range(8):
        a(f"""s_waitcnt lgkmcnt({2*(7-n)})
buffer_store_dwordx4 v[{RAW+4*n}:{RAW+4*n+3}], v{VB}, s[{SRD_WS}:{SRD_WS+3}], s{68+n} offen""")
    a(f"{lw}:")
    stamp(a,2)
    get_epoch(a,VZ,VC,67)
    a(f"v_lshlrev_b32 v{VA}, 4, v1\nv_add_u32 v{VA}, {U0}, v{VA}")
    for i in range(4): a(f"v_mov_b32 v{196+i}, 0")
    a("s_mov_b64 exec, 0xf")
    for k in range(3):
        a(f"ds_write_b128 v{VA}, v[196:199] offset:{k*UCH+UC1+4096}")
        a(f"ds_write_b128 v{VA}, v[196:199] offset:{k*UCH+4096}")
    a("s_mov_b64 exec, -1")
    a(f"""s_mul_i32 s56, s64, 1639
s_lshr_b32 s56, s56, 16
s_add_u32 s57, s64, s63
s_sub_u32 s57, s57, 1
s_mul_i32 s57, s57, 1639
s_lshr_b32 s57, s57, 16
s_lshl_b32 s56, s56, 11
s_lshl_b32 s57, s57, 11
v_mov_b32 v{VB}, s56
v_mov_b32 v{VC}, s57
v_and_b32 v{VD}, 16, v1
v_cmp_eq_u32 vcc, 0, v{VD}
v_cndmask_b32 v{VB}, v{VC}, v{VB}, vcc
v_and_b32 v{VD}, 15, v1
v_lshlrev_b32 v{VD}, 7, v{VD}
v_add_u32 v{VB}, v{VB}, v{VD}
s_mov_b32 s56, {FL_OFF}
v_sub_u32 v{VA}, 63, v1
v_lshlrev_b32 v{VX}, 2, v{VA}
v_lshlrev_b32 v{VA}, 5, v{VA}
s_mov_b32 m0, {U0}
s_mov_b32 s98, {1 if NOWAIT else 200000}""")
    lp=a.newlabel("L_poll"); ld=a.newlabel("L_polld")
    a(f"""{lp}:
buffer_load_dwordx4 v[{RAW}:{RAW+3}], v{VB}, s[{SRD_WS}:{SRD_WS+3}], s56 offen sc0 sc1
s_waitcnt vmcnt(0)""")
    for i in range(4): a(f"v_xor_b32 v{RAW+i}, s67, v{RAW+i}")
    a(f"""v_or_b32 v{RAW}, v{RAW}, v{RAW+1}
v_or3_b32 v{RAW}, v{RAW}, v{RAW+2}, v{RAW+3}
v_cmp_ne_u32 vcc, 0, v{RAW}
s_nop 1
s_cmp_eq_u64 vcc, 0
s_cbranch_scc1 {ld}
s_sleep 4
s_sub_u32 s98, s98, 1
s_cmp_lg_u32 s98, 0
s_cbranch_scc1 {lp}
{ld}:""")
    stamp(a,3)
    a(f"s_lshl_b32 s57, s64, 12\ns_add_u32 s57, s57, {G_OFF}\ns_add_u32 s58, s57, 4096\ns_add_u32 s59, s57, 8192")
    def loads(j):
        a(f"s_mov_b32 s56, {ST_OFF+2048*(15-j)}")
        a(f"buffer_load_dwordx4 v[{RAW+8*j}:{RAW+8*j+3}], v{VA}, s[{SRD_WS}:{SRD_WS+3}], s56 offen sc0 sc1")
        a(f"buffer_load_dwordx4 v[{RAW+8*j+4}:{RAW+8*j+7}], v{VA}, s[{SRD_WS}:{SRD_WS+3}], s56 offen offset:16 sc0 sc1")
        for k in range(3):
            a(f"buffer_load_dword v{XC+16*k+j}, v{VX}, s[{SRD_WS}:{SRD_WS+3}], s{57+k} offen offset:{256*(15-j)} sc0 sc1")
    AH=12
    for j in range(AH): loads(j)
    TT=206
    stubs=[]
    for j in range(16):
        r=RAW+8*j
        t=TT+9*(j%2)
        last=min(15,j+AH-1)
        a(f"s_waitcnt vmcnt({5*(last-j)})")
        if j==0: stamp(a,4)
        lr=a.newlabel("L_rt"); lb=a.newlabel("L_rb")
        a(f"""{lb}:
v_xor_b32 v{VC}, s67, v{r+1}
v_xor_b32 v{VD}, s67, v{r+3}
v_xor_b32 v{VB}, s67, v{r+5}
v_or3_b32 v{VC}, v{VC}, v{VD}, v{VB}
v_xor_b32 v{VD}, s67, v{r+7}
v_or_b32 v{VC}, v{VC}, v{VD}
v_cmp_ne_u32 vcc, 0, v{VC}""")
        for k in range(3):
            a(f"v_lshlrev_b32 v{t+2*k}, 16, v{XC+16*k+j}")
            a(f"v_and_b32 v{t+2*k+1}, 0xffff0000, v{XC+16*k+j}")
        a(f"s_cmp_lg_u64 vcc, 0\ns_cbranch_scc1 {lr}")
        lc=a.newlabel("L_rc")
        a(f"{lc}:")
        stubs.append((lr,lb,lc,j))
        if j+AH<16: loads(j+AH)
        for k in range(3):
            a(f"v_fma_f32 v{t+2*k}, v{t+2*k}, v{r}, v{r+2}")
            a(f"v_fma_f32 v{t+2*k+1}, v{t+2*k+1}, v{r+4}, v{r+6}")
        for k in range(3):
            a(f"v_cvt_pk_bf16_f32 v{t+6+k}, v{t+2*k+1}, v{t+2*k}")
        if j>0:
            tp=TT+9*((j-1)%2)
            for k in range(3):
                a(f"ds_write_addtid_b32 v{tp+6+k} offset:{k*UCH+UC1+256*(j-1)}")
                a(f"ds_write_addtid_b32 v{tp+6+k} offset:{k*UCH+256*(j-1)+4}")
    tp=TT+9
    for k in range(3):
        a(f"ds_write_addtid_b32 v{tp+6+k} offset:{k*UCH+UC1+256*15}")
        a(f"ds_write_addtid_b32 v{tp+6+k} offset:{k*UCH+256*15+4}")
    a("s_branch L_A_conv")
    for lr,lb,lc,j in stubs:
        a(f"""{lr}:
s_sub_u32 s98, s98, 1
s_cmp_eq_u32 s98, 0
s_cbranch_scc1 {lc}
s_sleep 4
s_mov_b32 s56, {ST_OFF+2048*(15-j)}
buffer_load_dwordx4 v[{RAW+8*j}:{RAW+8*j+3}], v{VA}, s[{SRD_WS}:{SRD_WS+3}], s56 offen sc0 sc1
buffer_load_dwordx4 v[{RAW+8*j+4}:{RAW+8*j+7}], v{VA}, s[{SRD_WS}:{SRD_WS+3}], s56 offen offset:16 sc0 sc1
s_waitcnt vmcnt(0)
s_branch {lb}""")

def gen_conv(a):
    VA0=2; VB0=3; VF=4; VAu=5; VBu=6; T=8
    ACC=12
    F=[44,108]
    a(f"""v_and_b32 v{T}, 15, v1
v_lshrrev_b32 v{T+1}, 4, v1
v_and_b32 v{T+2}, 1, v1
v_mul_u32_u24 v{VA0}, {KC1}, v{T+2}
v_lshrrev_b32 v{T+3}, 1, v{T}
v_lshlrev_b32 v{T+3}, 6, v{T+3}
v_add_u32 v{VA0}, v{VA0}, v{T+3}
v_lshlrev_b32 v{T+3}, 4, v{T+1}
v_add_u32 v{VA0}, v{VA0}, v{T+3}
v_mul_u32_u24 v{VB0}, {UC1}, v{T+2}
v_add_u32 v{VB0}, v{VB0}, v{T+3}
v_add_u32 v{T+3}, v{T}, v{T+2}
v_lshlrev_b32 v{T+3}, 2, v{T+3}
v_sub_u32 v{VB0}, v{VB0}, v{T+3}
v_add_u32 v{VB0}, {U0+2*(1824-1792)}, v{VB0}
v_lshlrev_b32 v{VF}, 4, v1
v_add_u32 v{VF}, {YB}, v{VF}
s_lshl_b32 s54, s63, 1
s_mul_i32 s55, s54, s{S_WAVE}
s_add_u32 s56, s55, s54""")
    for i in range(32): a(f"v_mov_b32 v{ACC+i}, 0")
    def addr(su):
        return f"""s_lshr_b32 s57, s{su}, 3
s_and_b32 s58, s{su}, 7
s_lshl_b32 s58, s58, 6
s_mul_i32 s59, s57, {REG}
s_mul_i32 s60, s57, {UCH}
s_add_u32 s59, s59, s58
s_add_u32 s60, s60, s58
v_add_u32 v{VAu}, s59, v{VA0}
v_add_u32 v{VBu}, s60, v{VB0}"""
    def reads(b):
        L=[]
        for k in range(8):
            L.append(f"ds_read_b128 v[{F[b]+4*k}:{F[b]+4*k+3}], v{VAu} offset:{512*k}")
            L.append(f"ds_read_b64 v[{F[b]+32+4*k}:{F[b]+32+4*k+1}], v{VBu} offset:{512*(7-k)}")
            L.append(f"ds_read_b64 v[{F[b]+32+4*k+2}:{F[b]+32+4*k+3}], v{VBu} offset:{512*(7-k)+8}")
        return L
    def mfmas(b):
        prs=[(i,c-i) for c in range(8) for i in range(c+1)]
        prs.sort(key=lambda p:(p[0], p[1]))
        return [f"v_mfma_f32_16x16x32_bf16 v[{ACC+4*(i+c)}:{ACC+4*(i+c)+3}], v[{F[b]+4*i}:{F[b]+4*i+3}], v[{F[b]+32+4*c}:{F[b]+32+4*c+3}], v[{ACC+4*(i+c)}:{ACC+4*(i+c)+3}]" for i,c in prs]
    a("s_waitcnt lgkmcnt(0)")
    stamp(a,5)
    a("s_barrier")
    stamp(a,6)
    a(addr(55))
    for l in reads(0): a(l)
    lloop=a.newlabel("L_cv"); lfl=a.newlabel("L_fl"); lend=a.newlabel("L_cve"); lnofl=a.newlabel("L_nofl")
    a(f"{lloop}:")
    for b in range(2):
        a("s_add_u32 s55, s55, 1")
        a(addr(55))
        a("s_waitcnt lgkmcnt(0)")
        rd=reads(1-b); mf=mfmas(b)
        while mf:
            a(mf.pop(0))
            if rd: a(rd.pop(0))
            if mf and len(rd)<=12:
                a(mf.pop(0))
    a(f"""s_cmp_eq_u32 s55, s56
s_cbranch_scc1 {lend}
s_and_b32 s58, s55, 7
s_cmp_lg_u32 s58, 0
s_cbranch_scc1 {lloop}
s_lshr_b32 s57, s55, 3
s_sub_u32 s57, s57, 1
s_mul_i32 s57, s57, {REG}
v_add_u32 v{T}, s57, v{VF}""")
    a.nop(6)
    for c in range(8): a(f"ds_write_b128 v{T}, v[{ACC+4*c}:{ACC+4*c+3}] offset:{1024*c}")
    for i in range(32): a(f"v_mov_b32 v{ACC+i}, 0")
    a(f"""s_branch {lloop}
{lend}:
s_sub_u32 s57, s56, 1
s_lshr_b32 s57, s57, 3
s_mul_i32 s58, s57, {REG}
v_add_u32 v{T}, s58, v{VF}
s_and_b32 s59, s{S_WAVE}, 1
s_cmp_eq_u32 s{S_WAVE}, 2
s_cselect_b32 s60, 1, 0
s_cmp_eq_u32 s63, 3
s_cselect_b32 s59, s60, s59
s_cmp_eq_u32 s59, 0
s_cbranch_scc1 {lnofl}""")
    a.nop(9)
    for c in range(8): a(f"ds_write_b128 v{T}, v[{ACC+4*c}:{ACC+4*c+3}] offset:{1024*c}")
    a(f"""{lnofl}:
s_waitcnt lgkmcnt(0)""")
    stamp(a,7)
    lx=a.newlabel("L_cvx")
    a(f"""s_barrier
s_cmp_lg_u32 s59, 0
s_cbranch_scc1 {lx}""")
    P=F[0]
    for c in range(8): a(f"ds_read_b128 v[{P+4*c}:{P+4*c+3}], v{T} offset:{1024*c}")
    a(f"""v_lshrrev_b32 v{T+1}, 4, v1
v_lshlrev_b32 v{T+1}, 7, v{T+1}
v_and_b32 v{T+2}, 15, v1
v_lshlrev_b32 v{T+2}, 2, v{T+2}
v_add_u32 v{T+1}, v{T+2}, v{T+1}
s_add_u32 s57, s57, s64
s_mul_i32 s57, s57, {GS}
s_add_u32 s57, s57, {Y_OFF}""")
    for c in range(8):
        a(f"s_waitcnt lgkmcnt({7-c})")
        a(f"v_pk_add_f32 v[{P+4*c}:{P+4*c+1}], v[{P+4*c}:{P+4*c+1}], v[{ACC+4*c}:{ACC+4*c+1}]")
        a(f"v_pk_add_f32 v[{P+4*c+2}:{P+4*c+3}], v[{P+4*c+2}:{P+4*c+3}], v[{ACC+4*c+2}:{ACC+4*c+3}]")
        a(f"v_cvt_pk_bf16_f32 v{ACC+4*c}, v{P+4*c}, v{P+4*c+1}")
        a(f"v_cvt_pk_bf16_f32 v{ACC+4*c+1}, v{P+4*c+2}, v{P+4*c+3}")
        if c>0:
            a(f"buffer_store_dword v{ACC+4*(c-1)}, v{T+1}, s[{SRD_WS}:{SRD_WS+3}], s57 offen offset:{512*(c-1)}")
            a(f"buffer_store_dword v{ACC+4*(c-1)+1}, v{T+1}, s[{SRD_WS}:{SRD_WS+3}], s57 offen offset:{512*(c-1)+64}")
    a(f"buffer_store_dword v{ACC+28}, v{T+1}, s[{SRD_WS}:{SRD_WS+3}], s57 offen offset:{512*7}")
    a(f"buffer_store_dword v{ACC+29}, v{T+1}, s[{SRD_WS}:{SRD_WS+3}], s57 offen offset:{512*7+64}")
    a(f"{lx}:")

def wave_sum(a, regs):
    for mod in ("row_shr:1","row_shr:2","row_shr:4","row_shr:8"):
        for r in regs:
            a(f"v_add_f32_dpp v{r}, v{r}, v{r} {mod} row_mask:0xf bank_mask:0xf bound_ctrl:1")
    for r in regs:
        a(f"v_add_f32_dpp v{r}, v{r}, v{r} row_bcast:15 row_mask:0xa bank_mask:0xf")
    for r in regs:
        a(f"v_add_f32_dpp v{r}, v{r}, v{r} row_bcast:31 row_mask:0xc bank_mask:0xf")

def gen_gemm1(a, opt):
    NX=13; WR=5
    XL=WR*12288
    LNS=4*12288
    XG0=2; XG1=3; XW=4; XR=5; WS=6; WRD=9; T=12
    ONES=16; ACC=20; CS=68; FR=80; XS=136; BB=240
    vm=VM(a)
    a("s_sub_u32 s53, s2, 256\ns_and_b32 s54, s53, 7\ns_lshr_b32 s55, s53, 3")
    if opt.get("map1","loc")=="loc":
        a("s_lshl_b32 s56, s54, 1\ns_lshr_b32 s57, s55, 4\ns_add_u32 s56, s56, s57\ns_and_b32 s57, s55, 15")
    else:
        a("""s_and_b32 s56, s54, 3
s_lshl_b32 s56, s56, 2
s_lshr_b32 s57, s55, 3
s_add_u32 s56, s56, s57
s_lshr_b32 s57, s54, 2
s_lshl_b32 s57, s57, 3
s_and_b32 s58, s55, 7
s_add_u32 s57, s57, s58""")
    LR=FR; LF=FR+10; LT=FR+30
    a(f"""s_lshl_b32 s77, s56, 4
s_add_u32 s77, s77, s57
s_lshl_b32 s72, s77, 2
s_add_u32 s72, s72, s{S_WAVE}
s_mul_i32 s72, s72, 2560
v_lshlrev_b32 v{LT}, 2, v1""")
    for r in range(2):
        for i in range(5):
            a(f"buffer_load_dword v{LR+5*r+i}, v{LT}, s[{SRD_X}:{SRD_X+3}], s72 offen offset:{1280*r+256*i}")
            vm.issue("ln")
    a(f"""s_and_b32 s58, s{S_WAVE}, 1
s_lshr_b32 s59, s{S_WAVE}, 1
s_lshl_b32 s60, s56, 7
s_lshl_b32 s61, s{S_WAVE}, 5
s_add_u32 s60, s60, s61
s_mul_i32 s72, s60, 1280
s_mul_i32 s73, s57, 80
s_add_u32 s72, s72, s73
s_mul_i32 s74, s{S_WAVE}, 3072
s_add_u32 s74, s74, {LNS}""")
    for i in range(3):
        a(f"""v_add_u32 v{T}, {64*i}, v1
v_mul_u32_u24 v{T+1}, 10923, v{T}
v_lshrrev_b32 v{T+1}, 16, v{T+1}
v_mul_u32_u24 v{T+2}, 6, v{T+1}
v_sub_u32 v{T+2}, v{T}, v{T+2}
v_lshlrev_b32 v{T+2}, 4, v{T+2}
v_mul_u32_u24 v{T+1}, 1280, v{T+1}
v_add_u32 v{T+1}, v{T+1}, v{T+2}
s_add_u32 m0, s74, {1024*i}
buffer_load_dwordx4 v{T+1}, s[{SRD_X}:{SRD_X+3}], s72 offen lds""")
        vm.issue("xt")
    a(f"""v_lshrrev_b32 v{T}, 2, v1
v_add_u32 v{T+1}, s60, v{T}
v_mul_u32_u24 v{XG0}, 1280, v{T+1}
v_and_b32 v{T+2}, 3, v1
v_lshlrev_b32 v{T+3}, 4, v{T+2}
v_add_u32 v{XG0}, v{XG0}, v{T+3}
v_add_u32 v{XG1}, 20480, v{XG0}""")
    items=[]
    for S in range(10):
        for s_ in (2*S,2*S+1):
            items+= [("x",s_,0),("x",s_,1)]
        items+= [("w",S,0),("w",S,1),("w",S,2)]
    st={"wr":-1,"bar":-2}
    def can(it):
        k,n,_=it
        if k=="x": return n-NX<=st["wr"]
        if n<4: return True
        if n==4: return st["bar"]>=-1
        return st["bar"]>=2*(n-WR)+1
    def pump(n=1):
        c=0
        while c<n:
            idx=next((i for i,it in enumerate(items) if can(it)),None)
            if idx is None: return
            k,m,h=items.pop(idx)
            if k=="x":
                r=XS+8*(m%NX)+4*h
                a(f"buffer_load_dwordx4 v[{r}:{r+3}], v{XG0+h}, s[{SRD_X}:{SRD_X+3}], 0 offen offset:{64*m}")
            else:
                a(f"s_mov_b32 s65, {m*64*3072}")
                a(f"s_add_u32 m0, s64, {(m%WR)*12288+1024*h}")
                a(f"buffer_load_dwordx4 v{WS+h}, s[{SRD_W}:{SRD_W+3}], s65 offen lds")
            vm.issue((k,m)); c+=1
    def spaced(lines, every):
        for i,l in enumerate(lines):
            a(l)
            if every and i%every==every-1: pump(1)
    pump(4)
    a(f"s_mul_i32 s62, s57, 192\ns_mul_i32 s63, s{S_WAVE}, {16*3072}\ns_add_u32 s62, s62, s63\ns_mul_i32 s64, s{S_WAVE}, 3072")
    for i in range(3):
        a(f"""v_add_u32 v{T}, {64*i}, v1
v_mul_u32_u24 v{T+1}, 5462, v{T}
v_lshrrev_b32 v{T+1}, 16, v{T+1}
v_mul_u32_u24 v{T+2}, 12, v{T+1}
v_sub_u32 v{T+2}, v{T}, v{T+2}
v_lshrrev_b32 v{T+3}, 3, v{T+1}
v_lshlrev_b32 v{T+3}, 1, v{T+3}
v_xor_b32 v{T+2}, v{T+2}, v{T+3}
v_lshlrev_b32 v{T+2}, 4, v{T+2}
v_mul_u32_u24 v{T+1}, 3072, v{T+1}
v_add_u32 v{T+1}, v{T+1}, v{T+2}
v_add_u32 v{WS+i}, s62, v{T+1}""")
        pump(1)
    a(f"v_mov_b32 v{BB+6}, 0")
    setup=f"""v_lshrrev_b32 v{T}, 2, v1
v_add_u32 v{T}, s61, v{T}
v_lshlrev_b32 v{T}, 6, v{T}
v_lshrrev_b32 v{T+1}, 5, v1
v_mul_u32_u24 v{T+1}, 3, v{T+1}
v_and_b32 v{T+2}, 3, v1
v_xor_b32 v{T+1}, v{T+1}, v{T+2}
v_lshlrev_b32 v{T+1}, 4, v{T+1}
v_add_u32 v{XW}, v{T}, v{T+1}
v_add_u32 v{XW}, {XL}, v{XW}
v_and_b32 v{T}, 15, v1
v_lshrrev_b32 v{T+1}, 4, v1
v_lshrrev_b32 v{T+2}, 3, v{T}
v_mul_u32_u24 v{T+2}, 3, v{T+2}
v_xor_b32 v{T+2}, v{T+2}, v{T+1}
v_lshlrev_b32 v{T+2}, 4, v{T+2}
v_lshlrev_b32 v{T+3}, 6, v{T}
v_add_u32 v{XR}, v{T+2}, v{T+3}
s_lshl_b32 s66, s59, 12
s_add_u32 s66, s66, {XL}
v_add_u32 v{XR}, s66, v{XR}
s_lshl_b32 s67, s58, 2
s_add_u32 s68, s67, 1
s_add_u32 s69, s58, 2
v_lshlrev_b32 v{T+2}, 3, v{T+1}
v_lshrrev_b32 v{T+3}, 2, v{T}
v_add_u32 v{T+2}, v{T+2}, v{T+3}
v_mul_u32_u24 v{T+2}, 192, v{T+2}
v_and_b32 v{T+3}, 3, v{T}
v_lshlrev_b32 v{T+3}, 3, v{T+3}
v_add_u32 v{T+2}, v{T+2}, v{T+3}
v_and_b32 v{T+3}, 1, v{T+1}""".split("\n")
    for ft in range(3):
        setup+=[f"v_xor_b32 v{WRD+ft}, s{67+ft}, v{T+3}", f"v_lshlrev_b32 v{WRD+ft}, 5, v{WRD+ft}", f"v_add_u32 v{WRD+ft}, v{WRD+ft}, v{T+2}"]
    setup+=[f"v_mov_b32 v{ONES+i}, 0x3f803f80" for i in range(4)]+[f"v_mov_b32 v{ACC+i}, 0" for i in range(60)]
    spaced(setup, int(opt.get("e1",16)))
    vm.wait_for("ln")
    a(f"buffer_load_dword v{BB+7}, v{BB+6}, s[{SRD_DBG}:{SRD_DBG+3}], 0 offen sc0 sc1"); vm.issue("ep")
    stamp(a,5)
    E2=int(opt.get("e2",24))
    L=[]
    for r in range(2):
        for i in range(5):
            L+=[f"v_lshlrev_b32 v{LF+10*r+2*i}, 16, v{LR+5*r+i}", f"v_and_b32 v{LF+10*r+2*i+1}, 0xffff0000, v{LR+5*r+i}"]
    tp=[LT+2,LT+4]; sm=[LT+6,LT+7]
    for r in range(2): L.append(f"v_pk_add_f32 v[{tp[r]}:{tp[r]+1}], v[{LF+10*r}:{LF+10*r+1}], v[{LF+10*r+2}:{LF+10*r+3}]")
    for k in (4,6,8):
        for r in range(2): L.append(f"v_pk_add_f32 v[{tp[r]}:{tp[r]+1}], v[{tp[r]}:{tp[r]+1}], v[{LF+10*r+k}:{LF+10*r+k+1}]")
    for r in range(2): L.append(f"v_add_f32 v{sm[r]}, v{tp[r]}, v{tp[r]+1}")
    spaced(L,E2)
    wave_sum(a,sm)
    for r in range(2): a(f"v_mul_f32 v{sm[r]}, 0x{f2u(-1.0/640):08x}, v{sm[r]}")
    for r in range(2): a(f"v_readlane_b32 s{80+2*r}, v{sm[r]}, 63")
    L=[]
    for r in range(2):
        for k in range(5):
            b=LF+10*r+2*k
            L.append(f"v_pk_add_f32 v[{b}:{b+1}], v[{b}:{b+1}], s[{80+2*r}:{81+2*r}] op_sel_hi:[1,0]")
    for r in range(2): L.append(f"v_pk_mul_f32 v[{tp[r]}:{tp[r]+1}], v[{LF+10*r}:{LF+10*r+1}], v[{LF+10*r}:{LF+10*r+1}]")
    for k in (2,4,6,8):
        for r in range(2):
            b=LF+10*r+k
            L.append(f"v_pk_fma_f32 v[{tp[r]}:{tp[r]+1}], v[{b}:{b+1}], v[{b}:{b+1}], v[{tp[r]}:{tp[r]+1}]")
    for r in range(2): L.append(f"v_add_f32 v{sm[r]}, v{tp[r]}, v{tp[r]+1}")
    spaced(L,E2)
    wave_sum(a,sm)
    a(f"s_mov_b32 s84, 0x{f2u(1.0/640):08x}\nv_mov_b32 v{LT+8}, 0x{f2u(1e-5):08x}")
    for r in range(2): a(f"v_fma_f32 v{sm[r]}, v{sm[r]}, s84, v{LT+8}")
    for r in range(2): a(f"v_rsq_f32 v{sm[r]}, v{sm[r]}")
    for r in range(2): a(f"v_readlane_b32 s{86+2*r}, v{sm[r]}, 63")
    lk=a.newlabel("L_pubk")
    vm.wait_for("ep")
    a(f"""v_readfirstlane_b32 s76, v{BB+7}
s_cmp_lg_u32 s76, 0
s_cbranch_scc1 {lk}""")
    get_epoch(a,BB+6,BB+7,76)
    a(f"""{lk}:
v_mov_b32 v{LT+2}, s86
v_mov_b32 v{LT+4}, s80
v_writelane_b32 v{LT+2}, s88, 1
v_writelane_b32 v{LT+4}, s82, 1
v_mov_b32 v{LT+3}, s76
v_mov_b32 v{LT+5}, s76
v_mul_f32 v{LT+4}, v{LT+4}, v{LT+2}
v_lshlrev_b32 v{LT}, 4, v1
s_lshl_b32 s72, s77, 2
s_add_u32 s72, s72, s{S_WAVE}
s_lshl_b32 s72, s72, 5
s_add_u32 s72, s72, {ST_OFF}
s_mov_b64 exec, 3
buffer_store_dwordx4 v[{LT+2}:{LT+5}], v{LT}, s[{SRD_WS}:{SRD_WS+3}], s72 offen sc0 sc1
s_mov_b64 exec, -1""")
    vm.issue("g")
    XR0=FR
    a(f"""v_lshrrev_b32 v{LT}, 2, v1
v_mul_u32_u24 v{LT}, 96, v{LT}
v_and_b32 v{LT+1}, 3, v1
v_lshlrev_b32 v{LT+9}, 3, v{LT+1}
v_add_u32 v{LT}, v{LT}, v{LT+9}
v_add_u32 v{LT}, s74, v{LT}""")
    for hh in range(2):
        for ct in range(3):
            a(f"ds_read_b64_tr_b16 v[{XR0+2*(3*hh+ct)}:{XR0+2*(3*hh+ct)+1}], v{LT} offset:{hh*1536+ct*32}")
    a(f"""v_and_b32 v{LT+9}, 15, v1
v_lshlrev_b32 v{LT+9}, 6, v{LT+9}
v_lshrrev_b32 v{LT+10}, 4, v1
v_lshlrev_b32 v{LT+10}, 3, v{LT+10}
v_add_u32 v{LT+9}, v{LT+9}, v{LT+10}
v_add_u32 v{LT+9}, s74, v{LT+9}
v_lshlrev_b32 v{LT+10}, 4, v1
v_add_u32 v{LT+10}, s74, v{LT+10}
v_lshrrev_b32 v{LT+11}, 2, v1
v_lshlrev_b32 v{LT+11}, 12, v{LT+11}
v_lshlrev_b32 v{LT+1}, 4, v{LT+1}
v_add_u32 v{LT+11}, v{LT+11}, v{LT+1}
s_mul_i32 s72, s57, {40*4096}
s_lshl_b32 s73, s60, 1
s_add_u32 s72, s72, s73
s_add_u32 s72, s72, {G_OFF}
s_add_u32 s73, s72, {16*4096}
s_add_u32 s75, s72, {32*4096}
s_waitcnt lgkmcnt(0)""")
    for hh in range(2):
        for ct in range(3):
            a(f"ds_write_b64 v{LT+9}, v[{XR0+2*(3*hh+ct)}:{XR0+2*(3*hh+ct)+1}] offset:{ct*1024+hh*32}")
    a("s_waitcnt lgkmcnt(0)")
    for ct in range(3):
        a(f"ds_read_b128 v[{XR0+12+4*ct}:{XR0+15+4*ct}], v{LT+10} offset:{ct*1024}")
    def wrx(s,h):
        if h==0: vm.wait_for(("x",s))
        r=XS+8*(s%NX)+4*h
        a(f"ds_write_b128 v{XW}, v[{r}:{r+3}] offset:{(s&1)*8192+1024*h}")
        if h==1: st["wr"]=s
    wrx(0,0); wrx(0,1)
    a(f"""s_waitcnt lgkmcnt(2)
buffer_store_dwordx4 v[{XR0+12}:{XR0+15}], v{LT+11}, s[{SRD_WS}:{SRD_WS+3}], s72 offen sc0 sc1
buffer_store_dwordx4 v[{XR0+16}:{XR0+19}], v{LT+11}, s[{SRD_WS}:{SRD_WS+3}], s73 offen sc0 sc1
s_mov_b32 exec_hi, 0
buffer_store_dwordx4 v[{XR0+20}:{XR0+23}], v{LT+11}, s[{SRD_WS}:{SRD_WS+3}], s75 offen sc0 sc1
s_mov_b64 exec, -1""")
    for _ in range(3): vm.issue("g")
    wrx(1,0); wrx(1,1)
    vm.wait_for(("w",0))
    a("s_waitcnt lgkmcnt(0)\ns_barrier")
    st["bar"]=-1
    stamp(a,1)
    def frag_reads(s):
        fb=FR+28*(s&1); S=s//2; hs=s&1
        out=[]
        wo=(S%WR)*12288+hs*6144
        order=[("a",0),("b",0),("b",1),("a",1),("b",2),("b",3),("a",2)]
        for kind,i in order:
            if kind=="a":
                out.append(f"ds_read_b64_tr_b16 v[{fb+4*i}:{fb+4*i+1}], v{WRD+i} offset:{wo}")
                out.append(f"ds_read_b64_tr_b16 v[{fb+4*i+2}:{fb+4*i+3}], v{WRD+i} offset:{wo+768}")
            else:
                out.append(f"ds_read_b128 v[{fb+12+4*i}:{fb+12+4*i+3}], v{XR} offset:{(s&1)*8192+1024*i}")
        return out
    def mfmas(s):
        fb=FR+28*(s&1); out=[]
        for ft in range(3):
            for tt in range(4):
                c=ACC+(ft*4+tt)*4
                out.append(f"v_mfma_f32_16x16x32_bf16 v[{c}:{c+3}], v[{fb+4*ft}:{fb+4*ft+3}], v[{fb+12+4*tt}:{fb+12+4*tt+3}], v[{c}:{c+3}]")
            c=CS+4*ft
            out.append(f"v_mfma_f32_16x16x32_bf16 v[{c}:{c+3}], v[{fb+4*ft}:{fb+4*ft+3}], v[{ONES}:{ONES+3}], v[{c}:{c+3}]")
        return out
    for l in frag_reads(0): a(l)
    pump(2)
    PUB=int(opt.get("pub",0))
    Q=int(opt.get("q",7))
    def mt(i,s):
        if PROF and s==PS: a(f"s_memtime s[{78+2*i}:{79+2*i}]")
    PS=int(opt.get("ps",15))
    for s in range(20):
        if s+1<20: vm.wait_for(("w",(s+1)//2))
        mt(3,s-1)
        a("s_waitcnt lgkmcnt(0)")
        mt(4,s-1)
        a("s_barrier")
        st["bar"]=s
        mt(5,s-1)
        mt(0,s)
        if s==10: stamp(a,2)
        mf=mfmas(s)
        rd=frag_reads(s+1) if s+1<20 else []
        while rd:
            a(mf.pop(0))
            a(rd.pop(0)); a(rd.pop(0))
        mt(1,s)
        q=Q
        while len(mf)>3:
            a(mf.pop(0))
            if q>0: pump(1); q-=1
        if s==16:
            a(f"""v_lshrrev_b32 v{T}, 4, v1
v_lshlrev_b32 v{T}, 3, v{T}
s_mul_i32 s70, s57, 192""")
            for ft in range(3):
                a(f"s_lshl_b32 s71, s{67+ft}, 5\ns_add_u32 s71, s71, s70\nv_add_u32 v{T+1}, s71, v{T}")
                a(f"global_load_dwordx2 v[{BB+2*ft}:{BB+2*ft+1}], v{T+1}, s[{S_B1}:{S_B1+1}]")
                vm.issue(("b",ft))
        a(mf.pop(0))
        if s+2<20: wrx(s+2,0)
        a(mf.pop(0))
        if s+2<20: wrx(s+2,1)
        a(mf.pop(0))
        mt(2,s)
        if s==PUB:
            vm.wait_for("g")
            a(f"""s_lshl_b32 s72, s57, 4
s_add_u32 s72, s72, s56
s_lshl_b32 s72, s72, 7
s_lshl_b32 s73, s{S_WAVE}, 2
s_add_u32 s72, s72, s73
s_add_u32 s72, s72, {FL_OFF}
v_mov_b32 v{BB+7}, s76
s_mov_b64 exec, 1
buffer_store_dword v{BB+7}, v{BB+6}, s[{SRD_WS}:{SRD_WS+3}], s72 offen sc0 sc1
s_mov_b64 exec, -1""")
            vm.issue("f")
            stamp(a,6)
    assert not items
    if PROF:
        a("s_waitcnt lgkmcnt(0)")
        for i in range(1,6):
            a(f"s_sub_u32 s{78+2*i}, s{78+2*i}, s78\nv_writelane_b32 v255, s{78+2*i}, {8+i}")
    stamp(a,3)
    lp=a.newlabel("L_gp"); ld=a.newlabel("L_gpd"); lk=a.newlabel("L_gpk")
    ST=XS; B1=XS+16; H=XS+28
    a(f"""v_and_b32 v{T+1}, 15, v1
v_lshlrev_b32 v{T+1}, 4, v{T+1}
s_lshl_b32 s71, s56, 11
s_lshl_b32 s72, s59, 10
s_add_u32 s71, s71, s72
s_add_u32 s71, s71, {ST_OFF}
s_mov_b32 s98, {1 if NOWAIT else 200000}
{lp}:""")
    for tt in range(4):
        a(f"buffer_load_dwordx4 v[{ST+4*tt}:{ST+4*tt+3}], v{T+1}, s[{SRD_WS}:{SRD_WS+3}], s71 offen offset:{256*tt} sc0 sc1")
    a(f"s_waitcnt vmcnt(0)\nv_mov_b32 v{T}, 0")
    for tt in range(4):
        a(f"v_xor_b32 v{T+2}, s76, v{ST+4*tt+1}\nv_xor_b32 v{T+3}, s76, v{ST+4*tt+3}\nv_or3_b32 v{T}, v{T}, v{T+2}, v{T+3}")
    a(f"""v_cmp_ne_u32 vcc, 0, v{T}
s_nop 1
s_cmp_eq_u64 vcc, 0
s_cbranch_scc1 {ld}
s_sleep 2
s_sub_u32 s98, s98, 1
s_cmp_lg_u32 s98, 0
s_cbranch_scc1 {lp}
{ld}:""")
    vm.q=[]
    stamp(a,4)
    for tt in range(4): a(f"v_mov_b32 v{ST+4*tt+1}, v{ST+4*tt+2}")
    for ft in range(3):
        for k in range(2):
            a(f"v_lshlrev_b32 v{B1+4*ft+2*k}, 16, v{BB+2*ft+k}")
            a(f"v_and_b32 v{B1+4*ft+2*k+1}, 0xffff0000, v{BB+2*ft+k}")
    a(f"""s_lshl_b32 s70, s56, 1
s_add_u32 s70, s70, s59
s_mul_i32 s70, s70, 48
s_mul_i32 s71, s57, 3
s_add_u32 s70, s70, s71
s_lshl_b32 s71, s58, 1
s_add_u32 s71, s71, s70
s_lshl_b32 s71, s71, 12
s_add_u32 s71, s71, {ACT_OFF}
s_add_u32 s72, s70, 1
s_lshl_b32 s72, s72, 12
s_lshl_b32 s73, s58, 3
s_add_u32 s72, s72, s73
s_add_u32 s72, s72, {ACT_OFF}
v_lshlrev_b32 v{T}, 4, v1
s_mov_b32 s74, 0x{LOG2E:08x}
s_mov_b32 s75, 0x{LOG2E:08x}
s_mov_b32 s78, 0x{f2u(28.0):08x}""")
    OUT=H+40
    for tt in range(4):
        r_=ST+4*tt
        o=OUT+8*(tt&1)
        items=[(ft,k) for ft in range(3) for k in range(2)]
        def R(n):
            h=H+6*n; return h,h+2,h+4
        stages=[
          lambda n,ft,k,h,e,d,c: [f"v_pk_fma_f32 v[{h}:{h+1}], v[{CS+4*ft+2*k}:{CS+4*ft+2*k+1}], v[{r_}:{r_+1}], v[{B1+4*ft+2*k}:{B1+4*ft+2*k+1}] op_sel:[0,1,0] op_sel_hi:[1,1,1]"],
          lambda n,ft,k,h,e,d,c: [f"v_pk_fma_f32 v[{h}:{h+1}], v[{c}:{c+1}], v[{r_}:{r_+1}], v[{h}:{h+1}] op_sel:[0,0,0] op_sel_hi:[1,0,1]"],
          lambda n,ft,k,h,e,d,c: [f"v_pk_mul_f32 v[{e}:{e+1}], v[{h}:{h+1}], s[74:75]"],
          lambda n,ft,k,h,e,d,c: [f"v_min_f32 v{e}, s78, v{e}", f"v_min_f32 v{e+1}, s78, v{e+1}"],
          lambda n,ft,k,h,e,d,c: [f"v_exp_f32 v{e}, v{e}", f"v_exp_f32 v{e+1}, v{e+1}"],
          lambda n,ft,k,h,e,d,c: [f"v_pk_add_f32 v[{d}:{d+1}], v[{e}:{e+1}], 2.0 op_sel_hi:[1,0]"],
          lambda n,ft,k,h,e,d,c: [f"v_pk_fma_f32 v[{d}:{d+1}], v[{e}:{e+1}], v[{d}:{d+1}], 2.0 op_sel_hi:[1,1,0]"],
          lambda n,ft,k,h,e,d,c: [f"v_rcp_f32 v{d}, v{d}", f"v_rcp_f32 v{d+1}, v{d+1}"],
          lambda n,ft,k,h,e,d,c: [f"v_pk_mul_f32 v[{d}:{d+1}], v[{d}:{d+1}], v[{h}:{h+1}]"],
          lambda n,ft,k,h,e,d,c: [f"v_pk_fma_f32 v[{h}:{h+1}], v[{d}:{d+1}], -2.0, v[{h}:{h+1}] op_sel_hi:[1,0,1]"],
          lambda n,ft,k,h,e,d,c: [f"v_cvt_pk_bf16_f32 v{o+2*ft+k}, v{h}, v{h+1}"],
        ]
        for st in stages:
            for n,(ft,k) in enumerate(items):
                h,e,d=R(n); c=ACC+(ft*4+tt)*4+2*k
                for l in st(n,ft,k,h,e,d,c): a(l)
        a(f"buffer_store_dwordx4 v[{o}:{o+3}], v{T}, s[{SRD_WS}:{SRD_WS+3}], s71 offen offset:{1024*tt}")
        a(f"buffer_store_dwordx2 v[{o+4}:{o+5}], v{T}, s[{SRD_WS}:{SRD_WS+3}], s72 offen offset:{1024*tt}")

def gen_kernelA(opt):
    a=Asm()
    a(f"""s_cmp_ge_u32 s2, 512
s_cbranch_scc1 L_A_end
s_load_dwordx16 s[4:19], s[0:1], 0
s_load_dwordx16 s[20:35], s[0:1], 64
v_and_b32 v1, 63, v0
v_lshrrev_b32 v2, 6, v0
v_readfirstlane_b32 s{S_WAVE}, v2
s_waitcnt lgkmcnt(0)""")
    srd(a,SRD_WS,S_WS,WS_END); srd(a,SRD_X,S_X,2048*1280); srd(a,SRD_DBG,S_DBG,256)
    if PROF: a("v_mov_b32 v255, 0")
    stamp(a,0); stampc(a,14)
    a("s_cmp_ge_u32 s2, 256\ns_cbranch_scc1 L_A_gemm")
    if opt.get("only")=="gemm1": a("s_endpgm")
    srd(a,SRD_W,S_W2,1536*1280)
    a(f"""s_mov_b32 s53, s2
s_and_b32 s54, s53, 7
s_mul_i32 s54, s54, 80
s_lshr_b32 s55, s53, 3
s_mul_i32 s56, s55, 3
s_lshl_b32 s57, s55, 1
s_add_u32 s57, s57, 16
s_cmp_lt_u32 s55, 16
s_cselect_b32 s63, 3, 2
s_cselect_b32 s56, s56, s57
s_add_u32 s64, s54, s56
s_cmp_eq_u32 s{S_WAVE}, 3
s_cbranch_scc1 L_A_aux
s_cmp_ge_u32 s{S_WAVE}, s63
s_cbranch_scc1 L_A_conv
s_add_u32 s54, s64, s{S_WAVE}
s_mul_i32 s55, s{S_WAVE}, {REG}""")
    gen_kgen(a)
    stampc(a,3)
    a("s_branch L_A_conv\nL_A_aux:")
    gen_aux(a)
    a("L_A_conv:")
    gen_conv(a)
    stamp(a,8); stamp_flush(a)
    a("s_endpgm\nL_A_gemm:")
    if opt.get("only")=="conv": a("s_endpgm")
    srd(a,SRD_W,S_W1,640*3072)
    gen_gemm1(a,opt)
    stamp(a,8); stamp_flush(a)
    a("L_A_end:\ns_endpgm")
    return a.text()

def gen_kernelB(opt):
    a=Asm(); vm=VM(a)
    NS=7
    PRE=int(opt.get('ns',6))
    T=2; VL=6; VL2=7; XA=8; ID=10
    VM4=16
    XV=20
    YF=30
    ACC=52
    RD=132
    a(f"""s_cmp_ge_u32 s2, 256
s_cbranch_scc1 L_B_end
s_load_dwordx2 s[4:5], s[0:1], 0
s_load_dwordx2 s[6:7], s[0:1], 104
s_load_dwordx2 s[8:9], s[0:1], 120
v_and_b32 v1, 63, v0
v_lshrrev_b32 v2, 6, v0
v_readfirstlane_b32 s{S_WAVE}, v2
s_and_b32 s54, s2, 7
s_lshr_b32 s55, s2, 3
s_lshl_b32 s56, s54, 2
s_lshr_b32 s57, s55, 3
s_add_u32 s56, s56, s57         ; tb
s_and_b32 s57, s55, 7           ; db
v_lshlrev_b32 v{VL}, 4, v1
v_add_u32 v{VL2}, 4096, v{VL}
s_mul_i32 s58, s{S_WAVE}, 12
s_mul_i32 s59, s56, 48
s_add_u32 s59, s59, s58
s_lshl_b32 s59, s59, 12
s_add_u32 s59, s59, {ACT_OFF}
s_mul_i32 s60, s57, 48
s_add_u32 s60, s60, s58
s_mul_i32 s60, s60, 5120
s_add_u32 s60, s60, {W2F_OFF}""")
    for k in range(4):
        a(f"""s_add_u32 s61, s{S_WAVE}, {k}
s_and_b32 s61, s61, 3
s_lshl_b32 s{66+k}, s61, 10
v_add_u32 v{VM4+k}, s{66+k}, v{VL}""")
    a("s_waitcnt lgkmcnt(0)")
    srd(a,SRD_WS,8,WS_END); srd(a,SRD_X,4,2048*1280); srd(a,SRD_W,6,2048*1280)
    if PROF: a("v_mov_b32 v9, 0")
    stamp(a,0,9); stampc(a,14,9)
    def ldl(j):
        b=36*(j%NS); L=[]
        seq=[("w",0),("a",0),("a",1),("w",1),("a",2),("a",3),("w",2),("w",3),("w",4)]
        for i,(kind,n) in enumerate(seq):
            pre = f"s_add_u32 s61, s60, {5120*j}\ns_add_u32 s62, s59, {4096*j}\n" if i==0 else ""
            if kind=="w":
                if n<4: L.append(pre+f"buffer_load_dwordx4 a[{b+4*n}:{b+4*n+3}], v{VL}, s[{SRD_WS}:{SRD_WS+3}], s61 offen offset:{1024*n}")
                else:   L.append(pre+f"buffer_load_dwordx4 a[{b+16}:{b+19}], v{VL2}, s[{SRD_WS}:{SRD_WS+3}], s61 offen")
            else:
                L.append(pre+f"buffer_load_dwordx4 a[{b+20+4*n}:{b+23+4*n}], v{VM4+n}, s[{SRD_WS}:{SRD_WS+3}], s62 offen")
        return [(l,("s",j)) for l in L]
    def ld(j):
        for l,t in ldl(j):
            a(l); vm.issue(t)
    ld(0)
    for i in range(40): a(f"v_mov_b32 v{ACC+i}, 0")
    ld(1)
    for i in range(40,80): a(f"v_mov_b32 v{ACC+i}, 0")
    ld(2)
    a(f"""v_and_b32 v{T}, 15, v1
v_lshrrev_b32 v{T+1}, 4, v1
v_lshrrev_b32 v{T+2}, 2, v{T}
v_mul_u32_u24 v{T+2}, 20, v{T+2}
v_and_b32 v{T+3}, 3, v{T}
v_add_u32 v{T+2}, v{T+2}, v{T+3}
v_mul_u32_u24 v{T+2}, {GS}, v{T+2}
v_lshlrev_b32 v{T+3}, 4, v{T+1}
v_add_u32 v{T+2}, v{T+2}, v{T+3}
s_mul_i32 s63, s57, {80*GS}
s_lshl_b32 s64, s56, 7
s_add_u32 s63, s63, s64
s_lshr_b32 s64, s{S_WAVE}, 1
s_lshl_b32 s64, s64, 6
s_add_u32 s63, s63, s64
s_add_u32 s63, s63, {Y_OFF}
v_mul_u32_u24 v{XA}, 1280, v{T}
v_mul_u32_u24 v{T+3}, 40, v{T+1}
v_add_u32 v{XA}, v{XA}, v{T+3}
s_lshl_b32 s64, s56, 2
s_add_u32 s64, s64, s{S_WAVE}
s_mul_i32 s64, s64, {16*1280}
s_mul_i32 s65, s57, 160
s_add_u32 s64, s64, s65""")
    if PRE>3: ld(3)
    a(f"""s_and_b32 s65, s{S_WAVE}, 1
s_lshl_b32 s65, s65, 4
v_add_u32 v{ID+4}, s65, v{T}
v_lshlrev_b32 v{T+3}, 3, v{T+1}
v_sub_u32 v{T+3}, v{ID+4}, v{T+3}
v_mov_b32 v{ID+4}, 0x3f80
v_mov_b32 v{ID+5}, 0x3f800000""")
    for k in range(4):
        a(f"""v_cmp_eq_u32 vcc, {2*k}, v{T+3}
v_cndmask_b32 v{ID+k}, 0, v{ID+4}, vcc
v_cmp_eq_u32 vcc, {2*k+1}, v{T+3}
v_cndmask_b32 v{ID+k}, v{ID+k}, v{ID+5}, vcc""")
    if PRE>4: ld(4)
    for k in range(1,4):
        a(f"""s_mul_i32 s70, s{66+k}, 15
s_add_u32 s70, s70, {(k-1)*5120}
v_add_u32 v{RD+k}, s70, v{VL}""")
    a(f"s_mul_i32 s70, s66, 15\nv_add_u32 v{RD}, s70, v{VL}")
    WA=[None,192,193,194]; RA=195
    for k in range(1,4): a(f"v_mov_b32 v{WA[k]}, v{RD+k}")
    a(f"v_mov_b32 v{RA}, v{RD}")
    if PRE>5: ld(5)
    yx=[]
    for dt in range(5):
        yx.append((f"buffer_load_dwordx4 v[{YF+4*dt}:{YF+4*dt+3}], v{T+2}, s[{SRD_WS}:{SRD_WS+3}], s63 offen"+(f"\ns_add_u32 s63, s63, {4*GS}" if dt<4 else ""),"y"))
    yx+=[(f"buffer_load_dwordx4 v[{XV}:{XV+3}], v{XA}, s[{SRD_X}:{SRD_X+3}], s64 offen","x"),
         (f"buffer_load_dwordx4 v[{XV+4}:{XV+7}], v{XA}, s[{SRD_X}:{SRD_X+3}], s64 offen offset:16","x"),
         (f"buffer_load_dwordx2 v[{XV+8}:{XV+9}], v{XA}, s[{SRD_X}:{SRD_X+3}], s64 offen offset:32","x")]
    for j in range(12):
        vm.wait_for(("s",j))
        if j==0: stamp(a,1,9)
        if PROF and j%2==0: a(f"s_memtime s[{72+j}:{73+j}]")
        b=36*(j%NS)
        order=[(dt,k) for dt in range(5) for k in range(4)]
        if j==11: order=[(dt,k) for k in (1,2,3,0) for dt in range(5)]
        lq = ldl(j+PRE) if j+PRE<12 else (yx if j+PRE==12 else [])
        for n,(dt,k) in enumerate(order):
            c=ACC+(dt*4+k)*4
            a(f"v_mfma_f32_16x16x32_bf16 v[{c}:{c+3}], a[{b+4*dt}:{b+4*dt+3}], a[{b+20+4*k}:{b+23+4*k}], v[{c}:{c+3}]")
            if n%2==1 and lq:
                l,t=lq.pop(0); a(l); vm.issue(t)
        assert not lq
    stamp(a,2,9)
    if PROF:
        for j in range(2,12,2):
            a(f"s_sub_u32 s{72+j}, s{72+j}, s72\nv_writelane_b32 v9, s{72+j}, {4+j//2}")
    for k in range(1,4):
        for dt in range(5):
            c=ACC+(dt*4+k)*4
            a(f"ds_write_b128 v{WA[k]}, v[{c}:{c+3}] offset:{dt*1024}")
    vm.wait_all()
    for dt in range(5):
        c=ACC+(dt*4)*4
        a(f"v_mfma_f32_16x16x32_bf16 v[{c}:{c+3}], v[{YF+4*dt}:{YF+4*dt+3}], v[{ID}:{ID+3}], v[{c}:{c+3}]")
    XF=YF+0
    XF=196
    for k in range(10):
        a(f"v_lshlrev_b32 v{XF+2*k}, 16, v{XV+k}")
        a(f"v_and_b32 v{XF+2*k+1}, 0xffff0000, v{XV+k}")
    a("s_waitcnt lgkmcnt(0)\ns_barrier")
    for p in range(3):
        for dt in range(5):
            r=RD+20*p+4*dt
            a(f"ds_read_b128 v[{r}:{r+3}], v{RA} offset:{p*5120+dt*1024}")
    for dt in range(5):
        c=ACC+(dt*4)*4
        for h in range(2):
            a(f"v_pk_add_f32 v[{XF+4*dt+2*h}:{XF+4*dt+2*h+1}], v[{XF+4*dt+2*h}:{XF+4*dt+2*h+1}], v[{c+2*h}:{c+2*h+1}]")
    for p in range(3):
        a(f"s_waitcnt lgkmcnt({5*(2-p)})")
        for k in range(10):
            a(f"v_pk_add_f32 v[{XF+2*k}:{XF+2*k+1}], v[{XF+2*k}:{XF+2*k+1}], v[{RD+20*p+2*k}:{RD+20*p+2*k+1}]")
    for k in range(10):
        a(f"v_cvt_pk_bf16_f32 v{XV+k}, v{XF+2*k}, v{XF+2*k+1}")
    a(f"""buffer_store_dwordx4 v[{XV}:{XV+3}], v{XA}, s[{SRD_W}:{SRD_W+3}], s64 offen
buffer_store_dwordx4 v[{XV+4}:{XV+7}], v{XA}, s[{SRD_W}:{SRD_W+3}], s64 offen offset:16
buffer_store_dwordx2 v[{XV+8}:{XV+9}], v{XA}, s[{SRD_W}:{SRD_W+3}], s64 offen offset:32""")
    stamp(a,3,9); stamp_flush(a,1,9,2)
    a("L_B_end:\ns_endpgm")
    return a.text(), 4*15360

HEADER = open("parallel_sum__ssm_conv_s4__dense_activation_mish__prompt.s.ref").read().split("; Override launch")[0]

def kd(name, vgpr, accum, sgpr=102):
    return f""".amdhsa_kernel {name}
  .amdhsa_next_free_vgpr {vgpr}
  .amdhsa_next_free_sgpr {sgpr}
  .amdhsa_accum_offset {accum}
  .amdhsa_group_segment_fixed_size 0
  .amdhsa_kernarg_size 128
  .amdhsa_user_sgpr_count 2
  .amdhsa_user_sgpr_kernarg_segment_ptr 1
  .amdhsa_system_sgpr_workgroup_id_x 1
.end_amdhsa_kernel
"""

def build(opt):
    A=gen_kernelA(opt); B,ldsB=gen_kernelB(opt)
    s=HEADER
    s+=f"; @launch kernel=stage_a_kernel grid=(512,1,1) block=(256,1,1) lds={LDS_A}\n"
    s+=f"; @launch kernel=stage_b_kernel grid=(256,1,1) block=(256,1,1) lds={ldsB}\n"
    if opt.get("rep2"): s+=f"; @launch kernel=stage_b_kernel grid=(256,1,1) block=(256,1,1) lds={ldsB}\n"
    s+='.amdgcn_target "amdgcn-amd-amdhsa--gfx950"\n.text\n'
    for name,body in (("stage_a_kernel",A),("stage_b_kernel",B)):
        s+=f".globl {name}\n.p2align 8\n.type {name},@function\n{name}:\n{body}"
    s+='.section .rodata,"a"\n.p2align 6\n'+kd("stage_a_kernel",256,256)+".p2align 6\n"+kd("stage_b_kernel",216+252,216)
    return s

if __name__=="__main__":
    opt={}
    out=sys.argv[1] if len(sys.argv)>1 else "parallel_sum__ssm_conv_s4__dense_activation_mish__prompt.s"
    for kv in sys.argv[2:]:
        k,v=kv.split("="); opt[k]=v
    PROF = opt.get("prof","0")=="1"
    NOWAIT = "only" in opt
    open(out,"w").write(build(opt))
    print("wrote",out)
```

```python
import sys, struct
from asmlib import Asm, VM

def f2u(x): return struct.unpack("<I", struct.pack("<f", x))[0]

GS      = 4160
G_OFF   = 0
ST_OFF  = 0x280000
FL_OFF  = 0x290000
Y_OFF   = 0x2B0000
W2F_OFF = 0x540000
ACT_OFF = 0x720000
KI_OFF  = 0xD20000
KIS     = 9216
WS_END  = 0x1500000
TS_OFF  = 0x1400000
TROW = 272
REG  = 17408
KC1  = 4576
YB   = 9120
U0   = 3*REG
UCH  = 8448
UC1  = 4224
LDS_A = 81920
LOG2E = 0x3fb8aa3b; LOG2E_LO = 0x32a5705f; LN2 = 0x3f317218

S_X=4; S_ARE=6; S_AIM=8; S_BRE=10; S_BIM=12; S_CRE=14; S_CIM=16; S_LDT=18
S_DSK=20; S_W1=24; S_B1=26; S_W2=28; S_OUT=30; S_DBG=32; S_WS=34
SRD_WS=36; SRD_X=40; SRD_W=44; SRD_DBG=48
S_WAVE=52
PROF=False
NOWAIT=False

def srd(a, dst, ptr, nbytes):
    a(f"""s_mov_b32 s{dst}, s{ptr}
s_and_b32 s{dst+1}, s{ptr+1}, 0xffff
s_mov_b32 s{dst+2}, {nbytes}
s_mov_b32 s{dst+3}, 0x00020000""")

def cmul(dst, z, m, t, conj=False):
    if not conj:
        return [f"v_pk_mul_f32 v[{t}:{t+1}], v[{z}:{z+1}], v[{m}:{m+1}] op_sel:[0,0] op_sel_hi:[0,1]",
                f"v_pk_fma_f32 v[{dst}:{dst+1}], v[{z}:{z+1}], v[{m}:{m+1}], v[{t}:{t+1}] op_sel:[1,1,0] op_sel_hi:[1,0,1] neg_lo:[0,1,0]"]
    return [f"v_pk_mul_f32 v[{t}:{t+1}], v[{z}:{z+1}], v[{m}:{m+1}] op_sel:[0,0] op_sel_hi:[0,1] neg_hi:[0,1]",
            f"v_pk_fma_f32 v[{dst}:{dst+1}], v[{z}:{z+1}], v[{m}:{m+1}], v[{t}:{t+1}] op_sel:[1,1,0] op_sel_hi:[1,0,1]"]

def stamp(a, idx, reg=255):
    if not PROF: return
    a(f"""s_memrealtime s[100:101]
s_waitcnt lgkmcnt(0)
v_writelane_b32 v{reg}, s100, {idx}""")
def stampc(a, idx, reg=255):
    if not PROF: return
    a(f"""s_memtime s[100:101]
s_waitcnt lgkmcnt(0)
v_writelane_b32 v{reg}, s100, {idx}""")
def stamp_flush(a, kern=0, reg=255, tmp=254):
    if not PROF: return
    stampc(a,15,reg)
    a(f"""s_lshl_b32 s100, s2, 2
s_add_u32 s100, s100, s{S_WAVE}
s_lshl_b32 s100, s100, 6
s_add_u32 s100, s100, {TS_OFF+kern*0x40000}
v_lshlrev_b32 v{tmp}, 2, v1
s_mov_b64 exec, 0xffff
buffer_store_dword v{reg}, v{tmp}, s[{SRD_WS}:{SRD_WS+3}], s100 offen
s_mov_b64 exec, -1""")

def get_epoch(a, vz, vt, sdst):
    lp=a.newlabel("L_ep"); ld=a.newlabel("L_epd")
    a(f"""s_mov_b32 s98, {1 if NOWAIT else 200000}
{lp}:
buffer_load_dword v{vt}, v{vz}, s[{SRD_DBG}:{SRD_DBG+3}], 0 offen sc0 sc1
s_waitcnt vmcnt(0)
v_readfirstlane_b32 s{sdst}, v{vt}
s_cmp_lg_u32 s{sdst}, 0
s_cbranch_scc1 {ld}
s_sleep 2
s_sub_u32 s98, s98, 1
s_cmp_lg_u32 s98, 0
s_cbranch_scc1 {lp}
{ld}:""")

def gen_kgen(a):
    RAW=2; P=14
    A2=20; B2=21; DT=22; VT=23
    Z=24; C=26; T=28; T2=30; E1=32; E2=34; E4=36; E8=38; E248=40; X=42; Y=43; S_=44; CO=45
    PKS=[46,47,48,49]; ONE=50
    FA=51; FB=52
    ACC=56
    FR=72
    arrs=[S_ARE,S_AIM,S_BRE,S_BIM,S_CRE,S_CIM]
    a(f"""s_mul_i32 s56, s54, 384
v_lshlrev_b32 v{X}, 2, v1
v_add_u32 v{X}, s56, v{X}
v_lshlrev_b32 v{Y}, 1, v1
v_add_u32 v{Y}, s56, v{Y}
s_lshr_b32 s57, s54, 1
s_lshl_b32 s57, s57, 2
s_load_dword s58, s[{S_LDT}:{S_LDT+1}], s57
s_load_dword s59, s[{S_DSK}:{S_DSK+1}], s57""")
    for i,s in enumerate(arrs):
        a(f"global_load_dword v{RAW+i}, v{X}, s[{s}:{s+1}]")
    for i in range(6): a(f"v_mov_b32 v{RAW+6+i}, 0")
    for i,s in enumerate(arrs):
        a(f"global_load_short_d16_hi v{RAW+6+i}, v{Y}, s[{s}:{s+1}] offset:256")
    a(f"""s_mov_b32 m0, s55
v_and_b32 v{FB}, 31, v1
v_mul_u32_u24 v{FB}, {TROW}, v{FB}
v_lshrrev_b32 v{FA}, 5, v1
v_lshlrev_b32 v{FA}, 4, v{FA}
v_add_u32 v{FB}, v{FB}, v{FA}
v_add_u32 v{FB}, s55, v{FB}
v_add_u32 v{FA}, {32*TROW}, v{FB}""")
    for i in range(16): a(f"v_mov_b32 v{ACC+i}, 0")
    a(f"""s_waitcnt lgkmcnt(0)
s_and_b32 s57, s54, 1
s_lshl_b32 s57, s57, 4
s_lshr_b32 s58, s58, s57
s_lshl_b32 s58, s58, 16
s_lshr_b32 s59, s59, s57
s_lshl_b32 s59, s59, 16
s_mov_b32 s60, 0x{LOG2E:08x}
s_mov_b32 s61, 0x{LOG2E_LO:08x}
s_mov_b32 s62, 0x{LN2:08x}
v_mov_b32 v{X}, s58
v_mul_f32 v{Y}, s60, v{X}
v_fma_f32 v{S_}, v{X}, s60, -v{Y}
v_fma_f32 v{S_}, v{X}, s61, v{S_}
v_exp_f32 v{Y}, v{Y}
v_mul_f32 v{S_}, s62, v{S_}
v_fma_f32 v{Y}, v{Y}, v{S_}, v{Y}
v_cvt_pk_bf16_f32 v{Y}, v{Y}, v{Y}
v_lshlrev_b32 v{DT}, 16, v{Y}
v_mov_b32 v{ONE}, 0x3f80
s_waitcnt vmcnt(6)""")
    stamp(a,1); stampc(a,2)
    DX=[136,137,138]; DY=[139,140,141]; DS=[142,143,144]; DC=[145,146,147]
    def setup(g):
        L=[]
        for i in range(6):
            if g==0: L.append(f"v_lshlrev_b32 v{P+i}, 16, v{RAW+i}")
            elif g==1: L.append(f"v_and_b32 v{P+i}, 0xffff0000, v{RAW+i}")
        src=[(P+i) if g<2 else (RAW+6+i) for i in range(6)]
        ar,ai,br,bi,cr,ci=src
        L+=[f"v_mul_f32 v{A2}, v{ar}, v{DT}", f"v_mul_f32 v{B2}, v{ai}, v{DT}",
            f"v_mul_f32 v{A2}, s60, v{A2}", f"v_mul_f32 v{B2}, 0.15915494, v{B2}"]
        lam=[1,8,248]; dst=[E1,E8,E248]
        for k in (1,2):
            L+=[f"v_mul_f32 v{DY[k]}, 0x{f2u(float(lam[k])):08x}, v{B2}", f"v_mul_f32 v{DX[k]}, 0x{f2u(float(lam[k])):08x}, v{A2}"]
        L+=[f"v_fract_f32 v{DY[0]}, v{B2}", f"v_fract_f32 v{DY[1]}, v{DY[1]}", f"v_fract_f32 v{DY[2]}, v{DY[2]}",
            f"v_exp_f32 v{DX[0]}, v{A2}", f"v_exp_f32 v{DX[1]}, v{DX[1]}", f"v_exp_f32 v{DX[2]}, v{DX[2]}"]
        for k in range(3): L+=[f"v_sin_f32 v{DS[k]}, v{DY[k]}", f"v_cos_f32 v{DC[k]}, v{DY[k]}"]
        L+=[f"v_mul_f32 v{Z}, v{cr}, v{br}", f"v_mul_f32 v{Z+1}, v{cr}, v{bi}",
            f"v_fma_f32 v{Z}, -v{ci}, v{bi}, v{Z}", f"v_fma_f32 v{Z+1}, v{ci}, v{br}, v{Z+1}",
            f"v_mul_f32 v{Z}, v{Z}, v{DT}", f"v_mul_f32 v{Z+1}, -v{Z+1}, v{DT}"]
        for k in range(3): L+=[f"v_mul_f32 v{dst[k]+1}, v{DX[k]}, v{DS[k]}", f"v_mul_f32 v{dst[k]}, v{DX[k]}, v{DC[k]}"]
        L+=cmul(E2,E1,E1,T)+cmul(E4,E2,E2,T)
        return L
    rowseq=[(E1,[1]),(E1,[2]),(E1,[3]),(E1,[4]),(E1,[5]),(E1,[6]),(E1,[7]),(E1,[]),
            (E248,[8]),(E2,[9]),(E2,[10,12]),(E2,[13]),(E2,[14]),
            (E248,[16]),(E4,[17,20]),(E4,[21]),(E248,[18]),(E4,[19,22]),(E4,[23]),
            (E248,[24]),(E8,[28]),(E248,[25]),(E8,[29]),(E248,[26]),(E8,[30]),(E248,[27]),(E8,[31])]
    for l in setup(0): a(l)
    pend=[]
    for g in range(3):
        if g==0: stampc(a,9)
        wq=[]
        pk=0
        def cvt(src, rows):
            nonlocal pk
            r=PKS[pk%4]; pk+=1
            a(f"v_cvt_pk_bf16_f32 v{r}, v{src}, v{src+1}")
            return [f"ds_write_addtid_b32 v{r} offset:{x*TROW}" for x in rows]
        a(f"ds_write_addtid_b32 v{ONE}")
        wq=cvt(Z,[32])+cvt(E8,[1])
        cur=E8
        for j in range(2,32):
            k=j-2
            c1=cmul(C,cur,E8,T); cur=C
            c2=cmul(Z,Z,rowseq[k][0],T2,conj=True) if k<len(rowseq) else []
            a(c1[0])
            if c2: a(c2[0])
            a(c1[1])
            if c2: a(c2[1])
            nq=cvt(C,[j])
            if c2 and rowseq[k][1]: nq+=cvt(Z,[32+r for r in rowseq[k][1]])
            while wq: a(wq.pop(0))
            if pend and j%3==0: a(pend.pop(0))
            wq=nq
        for w in wq: a(w)
        assert not pend
        if g==0: stampc(a,10)
        if g==1: a("s_waitcnt vmcnt(0)")
        a("s_waitcnt lgkmcnt(0)")
        for q in range(8):
            a(f"ds_read_b128 v[{FR+8*q}:{FR+8*q+3}], v{FA} offset:{32*q}")
            a(f"ds_read_b128 v[{FR+8*q+4}:{FR+8*q+7}], v{FB} offset:{32*q}")
        if g<2:
            for l in setup(g+1): a(l)
        else:
            a(f"""v_mov_b32 v{T}, 0
v_mov_b32 v{T+1}, 0
v_mov_b32 v{T2}, 0
v_mov_b32 v{T2+1}, 0
v_lshlrev_b32 v{S_}, 4, v1
v_add_u32 v{S_}, s55, v{S_}
v_and_b32 v{X}, 31, v1
v_lshlrev_b32 v{X}, 4, v{X}
v_lshrrev_b32 v{Y}, 5, v1
v_lshlrev_b32 v{Y}, 3, v{Y}
v_add_u32 v{X}, v{X}, v{Y}
v_add_u32 v{X}, s55, v{X}
v_cmp_lt_u32 vcc, 31, v1""")
        a("s_waitcnt lgkmcnt(0)")
        stampc(a,11 if g==0 else (12 if g==1 else 13))
        pend=[f"v_mfma_f32_32x32x16_bf16 v[{ACC}:{ACC+15}], v[{FR+8*q}:{FR+8*q+3}], v[{FR+8*q+4}:{FR+8*q+7}], v[{ACC}:{ACC+15}]" for q in range(8)]
    for m in pend[:4]: a(m)
    a(f"""s_mov_b32 exec_hi, 0
ds_write_b128 v{S_}, v[{T}:{T+3}]
ds_write_b128 v{S_}, v[{T}:{T+3}] offset:{KC1}
s_mov_b64 exec, -1""")
    for m in pend[4:]: a(m)
    a(f"""s_mov_b64 exec, 1
v_add_f32 v{ACC}, s59, v{ACC}
s_mov_b64 exec, -1""")
    ac=lambda i: ACC+i
    a(f"v_cndmask_b32 v{S_}, v{ac(8)}, v{ac(9)}, vcc")
    a(f"v_cndmask_b32 v{CO}, v{ac(10)}, v{ac(11)}, vcc")
    blocks=[(0,[ac(0),ac(1),ac(2),ac(3)]),(256,[ac(4),ac(4),ac(5),ac(6)]),(512,[ac(8),ac(8),S_,ac(9)]),(768,[ac(10),ac(10),CO,ac(11)])]
    Q=FR
    for n,(base,e) in enumerate(blocks):
        p=Q+4*n
        a(f"v_cvt_pk_bf16_f32 v{p}, v{e[0]}, v{e[1]}")
        a(f"v_cvt_pk_bf16_f32 v{p+1}, v{e[2]}, v{e[3]}")
        a(f"v_cvt_pk_bf16_f32 v{p+2}, v{e[1]}, v{e[2]}")
    for b in range(4):
        p=Q+16+2*b
        a(f"v_cvt_pk_bf16_f32 v{p}, v{ac(12+b)}, v{ac(12+b)}")
        a(f"v_mov_b32 v{p+1}, v{p}")
    for n,(base,e) in enumerate(blocks):
        p=Q+4*n
        a(f"ds_write_b64 v{X}, v[{p}:{p+1}] offset:{KC1+2*(base+224)}")
        a(f"ds_write_b16 v{X}, v{p} offset:{2*(base+225)}")
        a(f"ds_write_b32 v{X}, v{p+2} offset:{2*(base+226)}")
        a(f"ds_write_b16_d16_hi v{X}, v{p+1} offset:{2*(base+228)}")
    for b in range(4):
        p=Q+16+2*b; base=1024+256*b
        a(f"ds_write_b64 v{X}, v[{p}:{p+1}] offset:{KC1+2*(base+224)}")
        a(f"ds_write_b16 v{X}, v{p} offset:{2*(base+225)}")
        a(f"ds_write_b32 v{X}, v{p} offset:{2*(base+226)}")
        a(f"ds_write_b16 v{X}, v{p} offset:{2*(base+228)}")
    a("s_mov_b64 exec, 0x55555555")
    for b in range(4):
        p=Q+16+2*b
        a(f"ds_write_b16 v{X}, v{p} offset:{KC1+2*(1024+256*b+4+224)}")
        a(f"ds_write_b16 v{X}, v{p} offset:{2*(1024+256*b+4+225)}")
    a("s_mov_b64 exec, -1")
    a(f"""v_lshlrev_b32 v{Y}, 4, v1
v_add_u32 v{X}, s55, v{Y}
s_mul_i32 s56, s54, {KIS}
s_add_u32 s56, s56, {KI_OFF}
s_add_u32 s57, s56, 4096
s_add_u32 s58, s56, 8192
s_waitcnt lgkmcnt(0)""")
    for i in range(9): a(f"ds_read_b128 v[{FR+4*i}:{FR+4*i+3}], v{X} offset:{1024*i}")
    for i in range(9):
        a(f"s_waitcnt lgkmcnt({8-i})")
        a(f"buffer_store_dwordx4 v[{FR+4*i}:{FR+4*i+3}], v{Y}, s[{SRD_WS}:{SRD_WS+3}], s{56+i//4} offen offset:{1024*(i%4)} sc0 sc1")

def gen_w2f(a):
    RAW=2; VA=100; VB=101; VC=102
    SC=2*REG
    a(f"""s_and_b32 s56, s53, 7
s_lshl_b32 s56, s56, 4
s_lshr_b32 s57, s53, 3
s_sub_u32 s57, s57, 16
s_add_u32 s56, s56, s57
s_mul_i32 s56, s56, 3""")
    for i in range(5):
        a(f"""v_add_u32 v{VA}, {64*i}, v1
v_mul_u32_u24 v{VB}, 6554, v{VA}
v_lshrrev_b32 v{VB}, 16, v{VB}
v_mul_u32_u24 v{VC}, 10, v{VB}
v_sub_u32 v{VC}, v{VA}, v{VC}
v_lshlrev_b32 v{VC}, 4, v{VC}
v_mul_u32_u24 v{VB}, 1280, v{VB}
v_add_u32 v{104+i}, v{VB}, v{VC}""")
    for n in range(3):
        a(f"""s_add_u32 s57, s56, {n}
s_lshr_b32 s58, s57, 3
s_and_b32 s59, s57, 7
s_mul_i32 s60, s58, {32*1280}
s_mul_i32 s61, s59, 160
s_add_u32 s60, s60, s61
s_mul_i32 s59, s59, 48
s_add_u32 s59, s59, s58
s_mul_i32 s59, s59, 5120
s_add_u32 s{68+n}, s59, {W2F_OFF}""")
        for i in range(5):
            a(f"s_mov_b32 m0, {SC+5120*n+1024*i}")
            a(f"buffer_load_dwordx4 v{104+i}, s[{SRD_W}:{SRD_W+3}], s60 offen lds")
    a(f"""v_lshrrev_b32 v{VA}, 2, v1
v_mul_u32_u24 v{VA}, 160, v{VA}
v_and_b32 v{VB}, 3, v1
v_mul_u32_u24 v{VB}, 40, v{VB}
v_add_u32 v{VA}, v{VA}, v{VB}
v_add_u32 v{VA}, {SC}, v{VA}
v_lshlrev_b32 v{VB}, 4, v1
v_add_u32 v{VC}, 4096, v{VB}""")
    for n in range(3):
        if n==0: a("s_waitcnt vmcnt(0)")
        for nt in range(5):
            r=RAW+20*n+4*nt
            a(f"ds_read_b64_tr_b16 v[{r}:{r+1}], v{VA} offset:{5120*n+8*nt}")
            a(f"ds_read_b64_tr_b16 v[{r+2}:{r+3}], v{VA} offset:{5120*n+8*nt+2560}")
        for nt in range(5):
            r=RAW+20*n+4*nt
            a(f"s_waitcnt lgkmcnt({2*(4-nt)})")
            if nt<4: a(f"buffer_store_dwordx4 v[{r}:{r+3}], v{VB}, s[{SRD_WS}:{SRD_WS+3}], s{68+n} offen offset:{1024*nt} sc0 sc1")
            else: a(f"buffer_store_dwordx4 v[{r}:{r+3}], v{VC}, s[{SRD_WS}:{SRD_WS+3}], s{68+n} offen sc0 sc1")

def gen_aux(a):
    RAW=2
    XC=130
    VA=200; VB=201; VC=202; VD=203; VZ=204; VX=205
    a(f"v_mov_b32 v{VZ}, 0")
    le=a.newlabel("L_noep")
    a(f"""s_cmp_lg_u32 s53, 0
s_cbranch_scc1 {le}
s_memrealtime s[56:57]
s_waitcnt lgkmcnt(0)
s_or_b32 s56, s56, 1
v_mov_b32 v{VA}, s56
s_mov_b64 exec, 1
buffer_store_dword v{VA}, v{VZ}, s[{SRD_DBG}:{SRD_DBG+3}], 0 offen sc0 sc1
s_mov_b64 exec, -1
{le}:""")
    a(f"""s_and_b32 s72, s53, 7
s_lshl_b32 s72, s72, 1
s_lshr_b32 s73, s53, 7
s_add_u32 s72, s72, s73
s_lshr_b32 s73, s53, 3
s_and_b32 s73, s73, 15
s_lshl_b32 s77, s72, 4
s_add_u32 s77, s77, s73
s_mul_i32 s56, s72, {128*1280}
s_mul_i32 s57, s73, 80
s_add_u32 s56, s56, s57""")
    for i in range(3):
        a(f"""v_add_u32 v{VA}, {64*i}, v1
v_mul_u32_u24 v{VB}, 10923, v{VA}
v_lshrrev_b32 v{VB}, 16, v{VB}
v_mul_u32_u24 v{VC}, 6, v{VB}
v_sub_u32 v{VC}, v{VA}, v{VC}
v_lshlrev_b32 v{VC}, 4, v{VC}
v_mul_u32_u24 v{VB}, 1280, v{VB}
v_add_u32 v{196+i}, v{VB}, v{VC}""")
    for qd in range(4):
        for i in range(3):
            a(f"s_mov_b32 m0, {U0+3072*qd+1024*i}")
            a(f"buffer_load_dwordx4 v{196+i}, s[{SRD_X}:{SRD_X+3}], s56 offen lds")
        if qd<3: a(f"s_add_u32 s56, s56, {32*1280}")
    LRW=2; XF=42; SM=122; TP=130
    a(f"v_mul_u32_u24 v{VA}, 20, v1\ns_mul_i32 s56, s77, {8*1280}")
    for r in range(8):
        a(f"buffer_load_dwordx4 v[{LRW+4*r}:{LRW+4*r+3}], v{VA}, s[{SRD_X}:{SRD_X+3}], s56 offen")
        a(f"buffer_load_dword v{LRW+32+r}, v{VA}, s[{SRD_X}:{SRD_X+3}], s56 offen offset:16")
        if r<7: a(f"s_add_u32 s56, s56, 1280")
    a(f"buffer_load_dword v{VD}, v{VZ}, s[{SRD_DBG}:{SRD_DBG+3}], 0 offen sc0 sc1")
    XR0=146
    a(f"""v_lshrrev_b32 v{VA}, 2, v1
v_mul_u32_u24 v{VA}, 96, v{VA}
v_and_b32 v{VB}, 3, v1
v_lshlrev_b32 v{VC}, 3, v{VB}
v_add_u32 v{VA}, v{VA}, v{VC}
v_add_u32 v{VA}, {U0}, v{VA}
v_and_b32 v196, 15, v1
v_lshlrev_b32 v196, 6, v196
v_lshrrev_b32 v197, 4, v1
v_lshlrev_b32 v197, 3, v197
v_add_u32 v196, v196, v197
v_add_u32 v196, {U0}, v196              ; b64 write addr
v_lshlrev_b32 v197, 4, v1
v_add_u32 v197, {U0}, v197
v_lshrrev_b32 v198, 2, v1
v_lshlrev_b32 v198, 12, v198
v_lshlrev_b32 v{VB}, 4, v{VB}
v_add_u32 v198, v198, v{VB}
s_mul_i32 s56, s73, {40*4096}
s_lshl_b32 s57, s72, 8
s_add_u32 s56, s56, s57
s_add_u32 s56, s56, {G_OFF}
s_add_u32 s57, s56, {16*4096}
s_add_u32 s58, s56, {32*4096}
s_waitcnt vmcnt(17)""")
    stamp(a,1)
    for half in range(2):
        for qd in (2*half,2*half+1):
            for hh in range(2):
                for ct in range(3):
                    r=XR0+12*(qd&1)+2*(3*hh+ct)
                    a(f"ds_read_b64_tr_b16 v[{r}:{r+1}], v{VA} offset:{3072*qd+hh*1536+ct*32}")
        a("s_waitcnt lgkmcnt(0)")
        for qd in (2*half,2*half+1):
            for hh in range(2):
                for ct in range(3):
                    r=XR0+12*(qd&1)+2*(3*hh+ct)
                    a(f"ds_write_b64 v196, v[{r}:{r+1}] offset:{3072*qd+ct*1024+hh*32}")
    a("s_waitcnt lgkmcnt(0)")
    for qd in range(4):
        for ct in range(3):
            r=XR0+12*qd+4*ct
            a(f"ds_read_b128 v[{r}:{r+3}], v197 offset:{3072*qd+ct*1024}")
    a("s_waitcnt vmcnt(0)")
    for qd in range(4):
        a(f"s_waitcnt lgkmcnt({3*(3-qd)})")
        for ct in range(3):
            r=XR0+12*qd+4*ct
            if ct==2: a("s_mov_b32 exec_hi, 0")
            a(f"buffer_store_dwordx4 v[{r}:{r+3}], v198, s[{SRD_WS}:{SRD_WS+3}], s{56+ct} offen offset:{64*qd} sc0 sc1")
            if ct==2: a("s_mov_b64 exec, -1")
    for r in range(8):
        for k in range(5):
            sr = LRW+4*r+k if k<4 else LRW+32+r
            a(f"v_lshlrev_b32 v{XF+10*r+2*k}, 16, v{sr}")
            a(f"v_and_b32 v{XF+10*r+2*k+1}, 0xffff0000, v{sr}")
    for r in range(8):
        b=XF+10*r; t=TP+2*r
        a(f"v_pk_add_f32 v[{t}:{t+1}], v[{b}:{b+1}], v[{b+2}:{b+3}]")
    for k in (4,6,8):
        for r in range(8):
            b=XF+10*r; t=TP+2*r
            a(f"v_pk_add_f32 v[{t}:{t+1}], v[{t}:{t+1}], v[{b+k}:{b+k+1}]")
    for r in range(8): a(f"v_add_f32 v{SM+r}, v{TP+2*r}, v{TP+2*r+1}")
    wave_sum(a,[SM+r for r in range(8)])
    for r in range(8): a(f"v_mul_f32 v{SM+r}, 0x{f2u(-1.0/640):08x}, v{SM+r}")
    for r in range(8): a(f"v_readlane_b32 s{78+2*r}, v{SM+r}, 63")
    for r in range(8):
        for k in range(5):
            b=XF+10*r+2*k
            a(f"v_pk_add_f32 v[{b}:{b+1}], v[{b}:{b+1}], s[{78+2*r}:{79+2*r}] op_sel_hi:[1,0]")
    for r in range(8):
        b=XF+10*r; t=TP+2*r
        a(f"v_pk_mul_f32 v[{t}:{t+1}], v[{b}:{b+1}], v[{b}:{b+1}]")
    for k in (2,4,6,8):
        for r in range(8):
            b=XF+10*r+k; t=TP+2*r
            a(f"v_pk_fma_f32 v[{t}:{t+1}], v[{b}:{b+1}], v[{b}:{b+1}], v[{t}:{t+1}]")
    for r in range(8): a(f"v_add_f32 v{SM+r}, v{TP+2*r}, v{TP+2*r+1}")
    wave_sum(a,[SM+r for r in range(8)])
    for r in range(8): a(f"v_readlane_b32 s{79+2*r}, v{SM+r}, 63")
    lk=a.newlabel("L_epk")
    a(f"""v_readfirstlane_b32 s67, v{VD}
s_cmp_lg_u32 s67, 0
s_cbranch_scc1 {lk}""")
    get_epoch(a,VZ,VD,67)
    a(f"""{lk}:
v_mov_b32 v{LRW+1}, s67
v_mov_b32 v{LRW+3}, s67
""")
    for r in range(8):
        a(f"v_writelane_b32 v{LRW}, s{79+2*r}, {r}")
        a(f"v_writelane_b32 v{LRW+2}, s{78+2*r}, {r}")
    a(f"""s_mov_b32 s56, 0x{f2u(1.0/640):08x}
v_mov_b32 v{VB}, 0x{f2u(1e-5):08x}
v_fma_f32 v{LRW}, v{LRW}, s56, v{VB}
v_rsq_f32 v{LRW}, v{LRW}
v_lshlrev_b32 v{VB}, 4, v1
s_lshl_b32 s56, s77, 7
s_add_u32 s56, s56, {ST_OFF}
v_mul_f32 v{LRW+2}, v{LRW+2}, v{LRW}
s_mov_b64 exec, 0xff
buffer_store_dwordx4 v[{LRW}:{LRW+3}], v{VB}, s[{SRD_WS}:{SRD_WS+3}], s56 offen sc0 sc1
s_mov_b64 exec, -1""")
    stamp(a,2)

def gen_stage(a):
    RAW=2
    XC=34
    VA=46; VB=47; VX=48; VZ=49; TT=50
    le=a.newlabel("L_noep")
    a(f"""v_mov_b32 v{VZ}, 0
s_or_b32 s56, s53, s{S_WAVE}
s_cmp_lg_u32 s56, 0
s_cbranch_scc1 {le}
s_memrealtime s[56:57]
s_waitcnt lgkmcnt(0)
s_or_b32 s56, s56, 1
v_mov_b32 v{VA}, s56
s_mov_b64 exec, 1
buffer_store_dword v{VA}, v{VZ}, s[{SRD_DBG}:{SRD_DBG+3}], 0 offen sc0 sc1
s_mov_b64 exec, -1
{le}:
v_sub_u32 v{VA}, 63, v1
v_lshlrev_b32 v{VX}, 2, v{VA}
v_lshlrev_b32 v{VA}, 5, v{VA}
s_lshl_b32 s56, s{S_WAVE}, 2
s_sub_u32 s56, 12, s56
s_lshl_b32 s57, s56, 11
s_add_u32 s57, s57, {ST_OFF}
s_lshl_b32 s58, s56, 8
s_lshl_b32 s59, s64, 12
s_add_u32 s58, s58, s59
s_add_u32 s58, s58, {G_OFF}
s_add_u32 s59, s58, 4096
s_add_u32 s60, s58, 8192
s_add_u32 s61, s57, 4096""")
    for jj in range(4):
        o=2048*(3-jj); sb=57 if o<4096 else 61; o%=4096
        a(f"buffer_load_dwordx4 v[{RAW+8*jj}:{RAW+8*jj+3}], v{VA}, s[{SRD_WS}:{SRD_WS+3}], s{sb} offen offset:{o}")
        a(f"buffer_load_dwordx4 v[{RAW+8*jj+4}:{RAW+8*jj+7}], v{VA}, s[{SRD_WS}:{SRD_WS+3}], s{sb} offen offset:{o+16}")
        for k in range(3):
            a(f"buffer_load_dword v{XC+4*k+jj}, v{VX}, s[{SRD_WS}:{SRD_WS+3}], s{58+k} offen offset:{256*(3-jj)}")
    lk=a.newlabel("L_nok")
    a(f"""v_lshlrev_b32 v{VB}, 4, v1
s_cmp_ge_u32 s{S_WAVE}, s63
s_cbranch_scc1 {lk}
s_add_u32 s62, s64, s{S_WAVE}
s_mul_i32 s62, s62, {KIS}
s_add_u32 s62, s62, {KI_OFF}
s_mul_i32 s65, s{S_WAVE}, {REG}""")
    for i in range(9):
        a(f"s_add_u32 m0, s65, {1024*i}\ns_add_u32 s66, s62, {1024*i}")
        a(f"buffer_load_dwordx4 v{VB}, s[{SRD_WS}:{SRD_WS+3}], s66 offen lds")
    a(f"""{lk}:
v_add_u32 v{VB}, {U0}, v{VB}""")
    for i in range(4): a(f"v_mov_b32 v{TT+20+i}, 0")
    lz=a.newlabel("L_noz")
    a(f"""s_cmp_lg_u32 s{S_WAVE}, 3
s_cbranch_scc1 {lz}
s_mov_b64 exec, 0xf""")
    for k in range(3):
        a(f"ds_write_b128 v{VB}, v[{TT+20}:{TT+23}] offset:{k*UCH+UC1+4096}")
        a(f"ds_write_b128 v{VB}, v[{TT+20}:{TT+23}] offset:{k*UCH+4096}")
    a(f"""s_mov_b64 exec, -1
{lz}:
s_lshl_b32 s56, s{S_WAVE}, 10
s_add_u32 s56, s56, {U0}
s_mov_b32 m0, s56
s_waitcnt vmcnt(0)""")
    stamp(a,1)
    for jj in range(4):
        r=RAW+8*jj; t=TT+9*(jj%2)
        for k in range(3):
            a(f"v_lshlrev_b32 v{t+2*k}, 16, v{XC+4*k+jj}")
            a(f"v_and_b32 v{t+2*k+1}, 0xffff0000, v{XC+4*k+jj}")
        for k in range(3):
            a(f"v_fma_f32 v{t+2*k}, v{t+2*k}, v{r}, v{r+2}")
            a(f"v_fma_f32 v{t+2*k+1}, v{t+2*k+1}, v{r+4}, v{r+6}")
        for k in range(3):
            a(f"v_cvt_pk_bf16_f32 v{t+6+k}, v{t+2*k+1}, v{t+2*k}")
        if jj>0:
            tp=TT+9*((jj-1)%2)
            for k in range(3):
                a(f"ds_write_addtid_b32 v{tp+6+k} offset:{k*UCH+UC1+256*(jj-1)}")
                a(f"ds_write_addtid_b32 v{tp+6+k} offset:{k*UCH+256*(jj-1)+4}")
    tp=TT+9
    for k in range(3):
        a(f"ds_write_addtid_b32 v{tp+6+k} offset:{k*UCH+UC1+256*3}")
        a(f"ds_write_addtid_b32 v{tp+6+k} offset:{k*UCH+256*3+4}")
    a(f"buffer_load_dword v7, v{VZ}, s[{SRD_DBG}:{SRD_DBG+3}], 0 offen sc0 sc1")

def gen_conv(a):
    VA0=2; VB0=3; VF=4; VAu=5; VBu=6; T=8
    ACC=12
    F=[44,108]
    a(f"""v_and_b32 v{T}, 15, v1
v_lshrrev_b32 v{T+1}, 4, v1
v_and_b32 v{T+2}, 1, v1
v_mul_u32_u24 v{VA0}, {KC1}, v{T+2}
v_lshrrev_b32 v{T+3}, 1, v{T}
v_lshlrev_b32 v{T+3}, 6, v{T+3}
v_add_u32 v{VA0}, v{VA0}, v{T+3}
v_lshlrev_b32 v{T+3}, 4, v{T+1}
v_add_u32 v{VA0}, v{VA0}, v{T+3}
v_mul_u32_u24 v{VB0}, {UC1}, v{T+2}
v_add_u32 v{VB0}, v{VB0}, v{T+3}
v_add_u32 v{T+3}, v{T}, v{T+2}
v_lshlrev_b32 v{T+3}, 2, v{T+3}
v_sub_u32 v{VB0}, v{VB0}, v{T+3}
v_add_u32 v{VB0}, {U0+2*(1824-1792)}, v{VB0}
v_lshlrev_b32 v{VF}, 4, v1
v_add_u32 v{VF}, {YB}, v{VF}
s_lshl_b32 s54, s63, 1
s_mul_i32 s55, s54, s{S_WAVE}
s_add_u32 s56, s55, s54""")
    for i in range(32): a(f"v_mov_b32 v{ACC+i}, 0")
    def addr(su):
        return f"""s_lshr_b32 s57, s{su}, 3
s_and_b32 s58, s{su}, 7
s_lshl_b32 s58, s58, 6
s_mul_i32 s59, s57, {REG}
s_mul_i32 s60, s57, {UCH}
s_add_u32 s59, s59, s58
s_add_u32 s60, s60, s58
v_add_u32 v{VAu}, s59, v{VA0}
v_add_u32 v{VBu}, s60, v{VB0}"""
    def reads(b):
        L=[]
        for k in range(8):
            L.append(f"ds_read_b128 v[{F[b]+4*k}:{F[b]+4*k+3}], v{VAu} offset:{512*k}")
            L.append(f"ds_read_b64 v[{F[b]+32+4*k}:{F[b]+32+4*k+1}], v{VBu} offset:{512*(7-k)}")
            L.append(f"ds_read_b64 v[{F[b]+32+4*k+2}:{F[b]+32+4*k+3}], v{VBu} offset:{512*(7-k)+8}")
        return L
    def mfmas(b):
        prs=[(i,c-i) for c in range(8) for i in range(c+1)]
        prs.sort(key=lambda p:(p[0], p[1]))
        return [f"v_mfma_f32_16x16x32_bf16 v[{ACC+4*(i+c)}:{ACC+4*(i+c)+3}], v[{F[b]+4*i}:{F[b]+4*i+3}], v[{F[b]+32+4*c}:{F[b]+32+4*c+3}], v[{ACC+4*(i+c)}:{ACC+4*(i+c)+3}]" for i,c in prs]
    a("s_waitcnt lgkmcnt(0)")
    stamp(a,5)
    a("s_barrier")
    stamp(a,6)
    a(addr(55))
    for l in reads(0): a(l)
    lloop=a.newlabel("L_cv"); lfl=a.newlabel("L_fl"); lend=a.newlabel("L_cve"); lnofl=a.newlabel("L_nofl")
    a(f"{lloop}:")
    for b in range(2):
        a("s_add_u32 s55, s55, 1")
        a(addr(55))
        a("s_waitcnt lgkmcnt(0)")
        rd=reads(1-b); mf=mfmas(b)
        while mf:
            a(mf.pop(0))
            if rd: a(rd.pop(0))
            if mf and len(rd)<=12:
                a(mf.pop(0))
    a(f"""s_cmp_eq_u32 s55, s56
s_cbranch_scc1 {lend}
s_and_b32 s58, s55, 7
s_cmp_lg_u32 s58, 0
s_cbranch_scc1 {lloop}
s_lshr_b32 s57, s55, 3
s_sub_u32 s57, s57, 1
s_mul_i32 s57, s57, {REG}
v_add_u32 v{T}, s57, v{VF}""")
    a.nop(6)
    for c in range(8): a(f"ds_write_b128 v{T}, v[{ACC+4*c}:{ACC+4*c+3}] offset:{1024*c}")
    for i in range(32): a(f"v_mov_b32 v{ACC+i}, 0")
    a(f"""s_branch {lloop}
{lend}:
s_sub_u32 s57, s56, 1
s_lshr_b32 s57, s57, 3
s_mul_i32 s58, s57, {REG}
v_add_u32 v{T}, s58, v{VF}
s_and_b32 s59, s{S_WAVE}, 1
s_cmp_eq_u32 s{S_WAVE}, 2
s_cselect_b32 s60, 1, 0
s_cmp_eq_u32 s63, 3
s_cselect_b32 s59, s60, s59
s_cmp_eq_u32 s59, 0
s_cbranch_scc1 {lnofl}""")
    a.nop(9)
    for c in range(8): a(f"ds_write_b128 v{T}, v[{ACC+4*c}:{ACC+4*c+3}] offset:{1024*c}")
    a(f"""{lnofl}:
s_waitcnt lgkmcnt(0)""")
    stamp(a,7)
    lx=a.newlabel("L_cvx")
    a(f"""s_barrier
s_cmp_lg_u32 s59, 0
s_cbranch_scc1 {lx}""")
    P=F[0]
    for c in range(8): a(f"ds_read_b128 v[{P+4*c}:{P+4*c+3}], v{T} offset:{1024*c}")
    a(f"""v_lshrrev_b32 v{T+1}, 4, v1
v_lshlrev_b32 v{T+1}, 7, v{T+1}
v_and_b32 v{T+2}, 15, v1
v_lshlrev_b32 v{T+2}, 2, v{T+2}
v_add_u32 v{T+1}, v{T+2}, v{T+1}
s_add_u32 s61, s57, s64
s_mul_i32 s57, s61, {GS}
s_add_u32 s57, s57, {Y_OFF}""")
    for c in range(8):
        a(f"s_waitcnt lgkmcnt({7-c})")
        a(f"v_pk_add_f32 v[{P+4*c}:{P+4*c+1}], v[{P+4*c}:{P+4*c+1}], v[{ACC+4*c}:{ACC+4*c+1}]")
        a(f"v_pk_add_f32 v[{P+4*c+2}:{P+4*c+3}], v[{P+4*c+2}:{P+4*c+3}], v[{ACC+4*c+2}:{ACC+4*c+3}]")
        a(f"v_cvt_pk_bf16_f32 v{ACC+4*c}, v{P+4*c}, v{P+4*c+1}")
        a(f"v_cvt_pk_bf16_f32 v{ACC+4*c+1}, v{P+4*c+2}, v{P+4*c+3}")
        if c>0:
            a(f"buffer_store_dword v{ACC+4*(c-1)}, v{T+1}, s[{SRD_WS}:{SRD_WS+3}], s57 offen offset:{512*(c-1)} sc0 sc1")
            a(f"buffer_store_dword v{ACC+4*(c-1)+1}, v{T+1}, s[{SRD_WS}:{SRD_WS+3}], s57 offen offset:{512*(c-1)+64} sc0 sc1")
    a(f"buffer_store_dword v{ACC+28}, v{T+1}, s[{SRD_WS}:{SRD_WS+3}], s57 offen offset:{512*7} sc0 sc1")
    a(f"buffer_store_dword v{ACC+29}, v{T+1}, s[{SRD_WS}:{SRD_WS+3}], s57 offen offset:{512*7+64} sc0 sc1")
    lk=a.newlabel("L_cepk")
    a(f"""v_mov_b32 v{T}, 0
s_waitcnt vmcnt(0)
v_readfirstlane_b32 s67, v7
s_cmp_lg_u32 s67, 0
s_cbranch_scc1 {lk}""")
    get_epoch(a,T,7,67)
    a(f"""{lk}:
s_lshl_b32 s61, s61, 7
s_add_u32 s61, s61, {FL_OFF}
v_mov_b32 v7, s67
s_mov_b64 exec, 1
buffer_store_dword v7, v{T}, s[{SRD_WS}:{SRD_WS+3}], s61 offen sc0 sc1
s_mov_b64 exec, -1""")
    a(f"{lx}:")

def wave_sum(a, regs):
    for mod in ("row_shr:1","row_shr:2","row_shr:4","row_shr:8"):
        for r in regs:
            a(f"v_add_f32_dpp v{r}, v{r}, v{r} {mod} row_mask:0xf bank_mask:0xf bound_ctrl:1")
    for r in regs:
        a(f"v_add_f32_dpp v{r}, v{r}, v{r} row_bcast:15 row_mask:0xa bank_mask:0xf")
    for r in regs:
        a(f"v_add_f32_dpp v{r}, v{r}, v{r} row_bcast:31 row_mask:0xc bank_mask:0xf")

def gen_gemm1(a, opt):
    NX=13; WR=5
    XL=WR*12288
    LNS=4*12288
    XG0=2; XG1=3; XW=4; XR=5; WS=6; WRD=9; T=12
    ONES=16; ACC=20; CS=68; FR=80; XS=136; BB=240
    vm=VM(a)
    a("s_and_b32 s53, s2, 255\ns_and_b32 s54, s53, 7\ns_lshr_b32 s55, s53, 3")
    if opt.get("map1","loc")=="loc":
        a("s_lshl_b32 s56, s54, 1\ns_lshr_b32 s57, s55, 4\ns_add_u32 s56, s56, s57\ns_and_b32 s57, s55, 15")
    else:
        a("""s_and_b32 s56, s54, 3
s_lshl_b32 s56, s56, 2
s_lshr_b32 s57, s55, 3
s_add_u32 s56, s56, s57
s_lshr_b32 s57, s54, 2
s_lshl_b32 s57, s57, 3
s_and_b32 s58, s55, 7
s_add_u32 s57, s57, s58""")
    a(f"""s_and_b32 s58, s{S_WAVE}, 1
s_lshr_b32 s59, s{S_WAVE}, 1
s_lshl_b32 s60, s56, 7
s_lshl_b32 s61, s{S_WAVE}, 5
s_add_u32 s60, s60, s61
v_lshrrev_b32 v{T}, 2, v1
v_add_u32 v{T+1}, s60, v{T}
v_mul_u32_u24 v{XG0}, 1280, v{T+1}
v_and_b32 v{T+2}, 3, v1
v_lshlrev_b32 v{T+3}, 4, v{T+2}
v_add_u32 v{XG0}, v{XG0}, v{T+3}
v_add_u32 v{XG1}, 20480, v{XG0}""")
    items=[]
    for S in range(10):
        for s_ in (2*S,2*S+1):
            items+= [("x",s_,0),("x",s_,1)]
        items+= [("w",S,0),("w",S,1),("w",S,2)]
    st={"wr":-1,"bar":-2}
    def can(it):
        k,n,_=it
        if k=="x": return n-NX<=st["wr"]
        if n<5: return True
        return st["bar"]>=2*(n-WR)+1
    def pump(n=1):
        c=0
        while c<n:
            idx=next((i for i,it in enumerate(items) if can(it)),None)
            if idx is None: return
            k,m,h=items.pop(idx)
            if k=="x":
                r=XS+8*(m%NX)+4*h
                a(f"buffer_load_dwordx4 v[{r}:{r+3}], v{XG0+h}, s[{SRD_X}:{SRD_X+3}], 0 offen offset:{64*m}")
            else:
                a(f"s_mov_b32 s65, {m*64*3072}")
                a(f"s_add_u32 m0, s64, {(m%WR)*12288+1024*h}")
                a(f"buffer_load_dwordx4 v{WS+h}, s[{SRD_W}:{SRD_W+3}], s65 offen lds")
            vm.issue((k,m)); c+=1
    def spaced(lines, every):
        for i,l in enumerate(lines):
            a(l)
            if every and i%every==every-1: pump(1)
    pump(4)
    a(f"s_mul_i32 s62, s57, 192\ns_mul_i32 s63, s{S_WAVE}, {16*3072}\ns_add_u32 s62, s62, s63\ns_mul_i32 s64, s{S_WAVE}, 3072")
    for i in range(3):
        a(f"""v_add_u32 v{T}, {64*i}, v1
v_mul_u32_u24 v{T+1}, 5462, v{T}
v_lshrrev_b32 v{T+1}, 16, v{T+1}
v_mul_u32_u24 v{T+2}, 12, v{T+1}
v_sub_u32 v{T+2}, v{T}, v{T+2}
v_lshrrev_b32 v{T+3}, 3, v{T+1}
v_lshlrev_b32 v{T+3}, 1, v{T+3}
v_xor_b32 v{T+2}, v{T+2}, v{T+3}
v_lshlrev_b32 v{T+2}, 4, v{T+2}
v_mul_u32_u24 v{T+1}, 3072, v{T+1}
v_add_u32 v{T+1}, v{T+1}, v{T+2}
v_add_u32 v{WS+i}, s62, v{T+1}""")
        pump(1)
    a(f"v_mov_b32 v{BB+6}, 0")
    setup=f"""v_lshrrev_b32 v{T}, 2, v1
v_add_u32 v{T}, s61, v{T}
v_lshlrev_b32 v{T}, 6, v{T}
v_lshrrev_b32 v{T+1}, 5, v1
v_mul_u32_u24 v{T+1}, 3, v{T+1}
v_and_b32 v{T+2}, 3, v1
v_xor_b32 v{T+1}, v{T+1}, v{T+2}
v_lshlrev_b32 v{T+1}, 4, v{T+1}
v_add_u32 v{XW}, v{T}, v{T+1}
v_add_u32 v{XW}, {XL}, v{XW}
v_and_b32 v{T}, 15, v1
v_lshrrev_b32 v{T+1}, 4, v1
v_lshrrev_b32 v{T+2}, 3, v{T}
v_mul_u32_u24 v{T+2}, 3, v{T+2}
v_xor_b32 v{T+2}, v{T+2}, v{T+1}
v_lshlrev_b32 v{T+2}, 4, v{T+2}
v_lshlrev_b32 v{T+3}, 6, v{T}
v_add_u32 v{XR}, v{T+2}, v{T+3}
s_lshl_b32 s66, s59, 12
s_add_u32 s66, s66, {XL}
v_add_u32 v{XR}, s66, v{XR}
s_lshl_b32 s67, s58, 2
s_add_u32 s68, s67, 1
s_add_u32 s69, s58, 2
v_lshlrev_b32 v{T+2}, 3, v{T+1}
v_lshrrev_b32 v{T+3}, 2, v{T}
v_add_u32 v{T+2}, v{T+2}, v{T+3}
v_mul_u32_u24 v{T+2}, 192, v{T+2}
v_and_b32 v{T+3}, 3, v{T}
v_lshlrev_b32 v{T+3}, 3, v{T+3}
v_add_u32 v{T+2}, v{T+2}, v{T+3}
v_and_b32 v{T+3}, 1, v{T+1}""".split("\n")
    for ft in range(3):
        setup+=[f"v_xor_b32 v{WRD+ft}, s{67+ft}, v{T+3}", f"v_lshlrev_b32 v{WRD+ft}, 5, v{WRD+ft}", f"v_add_u32 v{WRD+ft}, v{WRD+ft}, v{T+2}"]
    setup+=[f"v_mov_b32 v{ONES+i}, 0x3f803f80" for i in range(4)]+[f"v_mov_b32 v{ACC+i}, 0" for i in range(60)]
    spaced(setup, int(opt.get("e1",16)))
    def wrx(s,h):
        assert not any(it[0]=="x" and it[1]==s for it in items), ("x not issued",s)
        if h==0: vm.wait_for(("x",s))
        r=XS+8*(s%NX)+4*h
        a(f"ds_write_b128 v{XW}, v[{r}:{r+3}] offset:{(s&1)*8192+1024*h}")
        if h==1: st["wr"]=s
    wrx(0,0); wrx(0,1); wrx(1,0); wrx(1,1)
    vm.wait_for(("w",0))
    a("s_waitcnt lgkmcnt(0)\ns_barrier")
    st["bar"]=-1
    stamp(a,1)
    def frag_reads(s):
        fb=FR+28*(s&1); S=s//2; hs=s&1
        out=[]
        wo=(S%WR)*12288+hs*6144
        order=[("a",0),("b",0),("b",1),("a",1),("b",2),("b",3),("a",2)]
        for kind,i in order:
            if kind=="a":
                out.append(f"ds_read_b64_tr_b16 v[{fb+4*i}:{fb+4*i+1}], v{WRD+i} offset:{wo}")
                out.append(f"ds_read_b64_tr_b16 v[{fb+4*i+2}:{fb+4*i+3}], v{WRD+i} offset:{wo+768}")
            else:
                out.append(f"ds_read_b128 v[{fb+12+4*i}:{fb+12+4*i+3}], v{XR} offset:{(s&1)*8192+1024*i}")
        return out
    def mfmas(s):
        fb=FR+28*(s&1); out=[]
        for ft in range(3):
            for tt in range(4):
                c=ACC+(ft*4+tt)*4
                out.append(f"v_mfma_f32_16x16x32_bf16 v[{c}:{c+3}], v[{fb+4*ft}:{fb+4*ft+3}], v[{fb+12+4*tt}:{fb+12+4*tt+3}], v[{c}:{c+3}]")
            c=CS+4*ft
            out.append(f"v_mfma_f32_16x16x32_bf16 v[{c}:{c+3}], v[{fb+4*ft}:{fb+4*ft+3}], v[{ONES}:{ONES+3}], v[{c}:{c+3}]")
        return out
    for l in frag_reads(0): a(l)
    pump(2)
    PUB=int(opt.get("pub",0))
    Q=int(opt.get("q",7))
    def mt(i,s):
        if PROF and s==PS: a(f"s_memtime s[{78+2*i}:{79+2*i}]")
    PS=int(opt.get("ps",15))
    for s in range(20):
        assert not any(it[0]=="w" and it[1]==(s+1)//2 for it in items), ("w not issued",s)
        if s+1<20: vm.wait_for(("w",(s+1)//2))
        mt(3,s-1)
        a("s_waitcnt lgkmcnt(0)")
        mt(4,s-1)
        a("s_barrier")
        st["bar"]=s
        mt(5,s-1)
        mt(0,s)
        if s==10: stamp(a,2)
        mf=mfmas(s)
        rd=frag_reads(s+1) if s+1<20 else []
        while rd:
            a(mf.pop(0))
            a(rd.pop(0)); a(rd.pop(0))
        mt(1,s)
        q=Q
        while len(mf)>3:
            a(mf.pop(0))
            if q>0: pump(1); q-=1
        if s==12:
            a(f"buffer_load_dword v{BB+7}, v{BB+6}, s[{SRD_DBG}:{SRD_DBG+3}], 0 offen sc0 sc1"); vm.issue("ep")
        if s==16:
            a(f"""v_lshrrev_b32 v{T}, 4, v1
v_lshlrev_b32 v{T}, 3, v{T}
s_mul_i32 s70, s57, 192""")
            for ft in range(3):
                a(f"s_lshl_b32 s71, s{67+ft}, 5\ns_add_u32 s71, s71, s70\nv_add_u32 v{T+1}, s71, v{T}")
                a(f"global_load_dwordx2 v[{BB+2*ft}:{BB+2*ft+1}], v{T+1}, s[{S_B1}:{S_B1+1}]")
                vm.issue(("b",ft))
        a(mf.pop(0))
        if s+2<20: wrx(s+2,0)
        a(mf.pop(0))
        if s+2<20: wrx(s+2,1)
        a(mf.pop(0))
        mt(2,s)
    assert not items
    if PROF:
        a("s_waitcnt lgkmcnt(0)")
        for i in range(1,6):
            a(f"s_sub_u32 s{78+2*i}, s{78+2*i}, s78\nv_writelane_b32 v255, s{78+2*i}, {8+i}")
    stamp(a,3)
    lp=a.newlabel("L_gp"); ld=a.newlabel("L_gpd"); lk=a.newlabel("L_gpk")
    ST=XS; B1=XS+16; H=XS+28
    vm.wait_for("ep")
    a(f"""v_readfirstlane_b32 s76, v{BB+7}
s_cmp_lg_u32 s76, 0
s_cbranch_scc1 {lk}""")
    get_epoch(a,BB+6,BB+7,76)
    a(f"""{lk}:
v_and_b32 v{T+1}, 15, v1
v_lshlrev_b32 v{T+1}, 4, v{T+1}
s_lshl_b32 s71, s56, 11
s_lshl_b32 s72, s59, 10
s_add_u32 s71, s71, s72
s_add_u32 s71, s71, {ST_OFF}
s_mov_b32 s98, {1 if NOWAIT else 200000}
{lp}:""")
    for tt in range(4):
        a(f"buffer_load_dwordx4 v[{ST+4*tt}:{ST+4*tt+3}], v{T+1}, s[{SRD_WS}:{SRD_WS+3}], s71 offen offset:{256*tt} sc0 sc1")
    a(f"s_waitcnt vmcnt(0)\nv_mov_b32 v{T}, 0")
    for tt in range(4):
        a(f"v_xor_b32 v{T+2}, s76, v{ST+4*tt+1}\nv_xor_b32 v{T+3}, s76, v{ST+4*tt+3}\nv_or3_b32 v{T}, v{T}, v{T+2}, v{T+3}")
    a(f"""v_cmp_ne_u32 vcc, 0, v{T}
s_nop 1
s_cmp_eq_u64 vcc, 0
s_cbranch_scc1 {ld}
s_sleep 2
s_sub_u32 s98, s98, 1
s_cmp_lg_u32 s98, 0
s_cbranch_scc1 {lp}
{ld}:""")
    vm.q=[]
    stamp(a,4)
    for tt in range(4): a(f"v_mov_b32 v{ST+4*tt+1}, v{ST+4*tt+2}")
    for ft in range(3):
        for k in range(2):
            a(f"v_lshlrev_b32 v{B1+4*ft+2*k}, 16, v{BB+2*ft+k}")
            a(f"v_and_b32 v{B1+4*ft+2*k+1}, 0xffff0000, v{BB+2*ft+k}")
    a(f"""s_lshl_b32 s70, s56, 1
s_add_u32 s70, s70, s59
s_mul_i32 s70, s70, 48
s_mul_i32 s71, s57, 3
s_add_u32 s70, s70, s71
s_lshl_b32 s71, s58, 1
s_add_u32 s71, s71, s70
s_lshl_b32 s71, s71, 12
s_add_u32 s71, s71, {ACT_OFF}
s_add_u32 s72, s70, 1
s_lshl_b32 s72, s72, 12
s_lshl_b32 s73, s58, 3
s_add_u32 s72, s72, s73
s_add_u32 s72, s72, {ACT_OFF}
v_lshlrev_b32 v{T}, 4, v1
s_mov_b32 s74, 0x{LOG2E:08x}
s_mov_b32 s75, 0x{LOG2E:08x}
s_mov_b32 s78, 0x{f2u(28.0):08x}""")
    OUT=H+40
    EV=int(opt.get('ev',1))
    for tt in range(4):
        r_=ST+4*tt
        o=OUT+8*(tt&1)
        items=[(ft,k) for ft in range(3) for k in range(2)]
        def R(n):
            h=H+6*n; return h,h+2,h+4
        stages=[
          lambda n,ft,k,h,e,d,c: ([f"v_pk_fma_f32 v[{h}:{h+1}], v[{CS+4*ft+2*k}:{CS+4*ft+2*k+1}], v[{r_}:{r_+1}], v[{B1+4*ft+2*k}:{B1+4*ft+2*k+1}] op_sel:[0,1,0] op_sel_hi:[1,1,1]"] if EV==0 else
                                  [f"v_pk_fma_f32 v[{h}:{h+1}], v[{CS+4*ft+2*k}:{CS+4*ft+2*k+1}], v[{r_+2}:{r_+3}], v[{B1+4*ft+2*k}:{B1+4*ft+2*k+1}] op_sel:[0,0,0] op_sel_hi:[1,0,1]"] if EV==1 else
                                  [f"v_fma_f32 v{h}, v{CS+4*ft+2*k}, v{r_+2}, v{B1+4*ft+2*k}", f"v_fma_f32 v{h+1}, v{CS+4*ft+2*k+1}, v{r_+2}, v{B1+4*ft+2*k+1}"]),
          lambda n,ft,k,h,e,d,c: [f"v_pk_fma_f32 v[{h}:{h+1}], v[{c}:{c+1}], v[{r_}:{r_+1}], v[{h}:{h+1}] op_sel:[0,0,0] op_sel_hi:[1,0,1]"],
          lambda n,ft,k,h,e,d,c: [f"v_pk_mul_f32 v[{e}:{e+1}], v[{h}:{h+1}], s[74:75]"],
          lambda n,ft,k,h,e,d,c: [f"v_min_f32 v{e}, s78, v{e}", f"v_min_f32 v{e+1}, s78, v{e+1}"],
          lambda n,ft,k,h,e,d,c: [f"v_exp_f32 v{e}, v{e}", f"v_exp_f32 v{e+1}, v{e+1}"],
          lambda n,ft,k,h,e,d,c: [f"v_pk_add_f32 v[{d}:{d+1}], v[{e}:{e+1}], 2.0 op_sel_hi:[1,0]"],
          lambda n,ft,k,h,e,d,c: [f"v_pk_fma_f32 v[{d}:{d+1}], v[{e}:{e+1}], v[{d}:{d+1}], 2.0 op_sel_hi:[1,1,0]"],
          lambda n,ft,k,h,e,d,c: [f"v_rcp_f32 v{d}, v{d}", f"v_rcp_f32 v{d+1}, v{d+1}"],
          lambda n,ft,k,h,e,d,c: [f"v_pk_mul_f32 v[{d}:{d+1}], v[{d}:{d+1}], v[{h}:{h+1}]"],
          lambda n,ft,k,h,e,d,c: [f"v_pk_fma_f32 v[{h}:{h+1}], v[{d}:{d+1}], -2.0, v[{h}:{h+1}] op_sel_hi:[1,0,1]"],
          lambda n,ft,k,h,e,d,c: [f"v_cvt_pk_bf16_f32 v{o+2*ft+k}, v{h}, v{h+1}"],
        ]
        for st in stages:
            for n,(ft,k) in enumerate(items):
                h,e,d=R(n); c=ACC+(ft*4+tt)*4+2*k
                for l in st(n,ft,k,h,e,d,c): a(l)
        a(f"buffer_store_dwordx4 v[{o}:{o+3}], v{T}, s[{SRD_WS}:{SRD_WS+3}], s71 offen offset:{1024*tt}")
        a(f"buffer_store_dwordx2 v[{o+4}:{o+5}], v{T}, s[{SRD_WS}:{SRD_WS+3}], s72 offen offset:{1024*tt}")

def gen_kernelA(opt):
    a=Asm()
    a(f"""s_cmp_ge_u32 s2, 512
s_cbranch_scc1 L_A_end
s_load_dwordx16 s[4:19], s[0:1], 0
s_load_dwordx16 s[20:35], s[0:1], 64
v_and_b32 v1, 63, v0
v_lshrrev_b32 v2, 6, v0
v_readfirstlane_b32 s{S_WAVE}, v2
s_waitcnt lgkmcnt(0)""")
    srd(a,SRD_WS,S_WS,WS_END); srd(a,SRD_X,S_X,2048*1280); srd(a,SRD_DBG,S_DBG,256)
    if PROF: a("v_mov_b32 v255, 0")
    stamp(a,0); stampc(a,14)
    SW=opt.get("swap","0")=="1"
    a(("s_cmp_lt_u32 s2, 256" if SW else "s_cmp_ge_u32 s2, 256")+"\ns_cbranch_scc1 L_A_gemm")
    if opt.get("only")=="gemm1": a("s_endpgm")
    PR=int(opt.get("prio",0))
    if PR: a(f"s_setprio {PR}")
    srd(a,SRD_W,S_W2,1536*1280)
    a(f"""s_and_b32 s53, s2, 255
s_and_b32 s54, s53, 7
s_mul_i32 s54, s54, 80
s_lshr_b32 s55, s53, 3
s_mul_i32 s56, s55, 3
s_lshl_b32 s57, s55, 1
s_add_u32 s57, s57, 16
s_cmp_lt_u32 s55, 16
s_cselect_b32 s63, 3, 2
s_cselect_b32 s56, s56, s57
s_add_u32 s64, s54, s56
s_cmp_eq_u32 s{S_WAVE}, 3
s_cbranch_scc1 L_A_aux
s_cmp_ge_u32 s{S_WAVE}, s63
s_cbranch_scc1 L_A_w2f
s_add_u32 s54, s64, s{S_WAVE}
s_mul_i32 s55, s{S_WAVE}, {REG}""")
    gen_kgen(a)
    stampc(a,3)
    a("s_branch L_A_pend\nL_A_w2f:")
    gen_w2f(a)
    a("s_branch L_A_pend\nL_A_aux:")
    gen_aux(a)
    a("L_A_pend:")
    stamp(a,8); stamp_flush(a)
    a("s_endpgm\nL_A_gemm:")
    if int(opt.get("gprio",1)): a(f"s_setprio {int(opt.get('gprio',1))}")
    if opt.get("only")=="conv": a("s_endpgm")
    srd(a,SRD_W,S_W1,640*3072)
    gen_gemm1(a,opt)
    stamp(a,8); stamp_flush(a)
    a("L_A_end:\ns_endpgm")
    return a.text()

def gen_kernelB(opt):
    a=Asm('b'); vm=VM(a)
    NS=4; PRE=3
    T=2; VL=6; VL2=7; XA=8; ID=10
    VM4=16
    WA=[None,20,21,22]; RA=23; YA=24; FA_=25; VZ=26; EP=27
    ACC=28
    SB=108
    a(f"""s_cmp_ge_u32 s2, 512
s_cbranch_scc1 L_B_end
s_load_dwordx2 s[4:5], s[0:1], 0
s_load_dwordx4 s[28:31], s[0:1], 104
s_load_dwordx2 s[8:9], s[0:1], 120
v_and_b32 v1, 63, v0
v_lshrrev_b32 v2, 6, v0
v_readfirstlane_b32 s{S_WAVE}, v2
s_and_b32 s53, s2, 255
s_and_b32 s54, s53, 7
s_lshr_b32 s55, s53, 3
s_waitcnt lgkmcnt(0)""")
    srd(a,SRD_WS,8,WS_END); srd(a,SRD_DBG,30,256)
    if PROF: a("v_mov_b32 v255, 0")
    stamp(a,0); stampc(a,14)
    a(f"""s_cmp_ge_u32 s2, 256
s_cbranch_scc1 L_B_gemm
s_mul_i32 s54, s54, 80
s_mul_i32 s56, s55, 3
s_lshl_b32 s57, s55, 1
s_add_u32 s57, s57, 16
s_cmp_lt_u32 s55, 16
s_cselect_b32 s63, 3, 2
s_cselect_b32 s56, s56, s57
s_add_u32 s64, s54, s56""")
    if int(opt.get("cprio",1)): a(f"s_setprio {int(opt.get('cprio',1))}")
    gen_stage(a)
    gen_conv(a)
    stamp(a,8); stamp_flush(a,1)
    a("s_endpgm\nL_B_gemm:")
    srd(a,SRD_X,4,2048*1280); srd(a,SRD_W,28,2048*1280)
    a(f"""s_lshl_b32 s56, s54, 2
s_lshr_b32 s57, s55, 3
s_add_u32 s56, s56, s57         ; tb
s_and_b32 s57, s55, 7           ; db
v_lshlrev_b32 v{VL}, 4, v1
v_add_u32 v{VL2}, 4096, v{VL}
s_mul_i32 s58, s{S_WAVE}, 12
s_mul_i32 s59, s56, 48
s_add_u32 s59, s59, s58
s_lshl_b32 s59, s59, 12
s_add_u32 s59, s59, {ACT_OFF}
s_mul_i32 s60, s57, 48
s_add_u32 s60, s60, s58
s_mul_i32 s60, s60, 5120
s_add_u32 s60, s60, {W2F_OFF}""")
    for k in range(4):
        a(f"""s_add_u32 s61, s{S_WAVE}, {k}
s_and_b32 s61, s61, 3
s_lshl_b32 s{66+k}, s61, 10
v_add_u32 v{VM4+k}, s{66+k}, v{VL}""")
    def ldl(j):
        b=SB+36*(j%NS); L=[]
        seq=[("w",0),("a",0),("a",1),("w",1),("a",2),("a",3),("w",2),("w",3),("w",4)]
        for i,(kind,n) in enumerate(seq):
            pre = f"s_add_u32 s61, s60, {5120*j}\ns_add_u32 s62, s59, {4096*j}\n" if i==0 else ""
            if kind=="w":
                if n<4: L.append(pre+f"buffer_load_dwordx4 v[{b+4*n}:{b+4*n+3}], v{VL}, s[{SRD_WS}:{SRD_WS+3}], s61 offen offset:{1024*n}")
                else:   L.append(pre+f"buffer_load_dwordx4 v[{b+16}:{b+19}], v{VL2}, s[{SRD_WS}:{SRD_WS+3}], s61 offen")
            else:
                L.append(pre+f"buffer_load_dwordx4 v[{b+20+4*n}:{b+23+4*n}], v{VM4+n}, s[{SRD_WS}:{SRD_WS+3}], s62 offen")
        return [(l,("s",j)) for l in L]
    def ld(j):
        for l,t in ldl(j):
            a(l); vm.issue(t)
    ld(0)
    for i in range(40): a(f"v_mov_b32 v{ACC+i}, 0")
    ld(1)
    for i in range(40,80): a(f"v_mov_b32 v{ACC+i}, 0")
    a(f"""v_and_b32 v{T}, 15, v1
v_lshrrev_b32 v{T+1}, 4, v1
v_lshrrev_b32 v{T+2}, 2, v{T}
v_mul_u32_u24 v{T+2}, 20, v{T+2}
v_and_b32 v{T+3}, 3, v{T}
v_add_u32 v{T+2}, v{T+2}, v{T+3}
v_mul_u32_u24 v{T+2}, {GS}, v{T+2}
v_lshlrev_b32 v{T+3}, 4, v{T+1}
v_add_u32 v{YA}, v{T+2}, v{T+3}
s_mul_i32 s63, s57, {80*GS}
s_lshl_b32 s64, s56, 7
s_add_u32 s63, s63, s64
s_lshr_b32 s64, s{S_WAVE}, 1
s_lshl_b32 s64, s64, 6
s_add_u32 s63, s63, s64
s_add_u32 s63, s63, {Y_OFF}
v_mul_u32_u24 v{XA}, 1280, v{T}
v_mul_u32_u24 v{T+3}, 40, v{T+1}
v_add_u32 v{XA}, v{XA}, v{T+3}
s_lshl_b32 s64, s56, 2
s_add_u32 s64, s64, s{S_WAVE}
s_mul_i32 s64, s64, {16*1280}
s_mul_i32 s65, s57, 160
s_add_u32 s64, s64, s65
s_and_b32 s65, s{S_WAVE}, 1
s_lshl_b32 s65, s65, 4
v_add_u32 v{ID+4}, s65, v{T}
v_lshlrev_b32 v{T+3}, 3, v{T+1}
v_sub_u32 v{T+3}, v{ID+4}, v{T+3}
v_mov_b32 v{ID+4}, 0x3f80
v_mov_b32 v{ID+5}, 0x3f800000""")
    ld(2)
    for k in range(4):
        a(f"""v_cmp_eq_u32 vcc, {2*k}, v{T+3}
v_cndmask_b32 v{ID+k}, 0, v{ID+4}, vcc
v_cmp_eq_u32 vcc, {2*k+1}, v{T+3}
v_cndmask_b32 v{ID+k}, v{ID+k}, v{ID+5}, vcc""")
    for k in range(1,4):
        a(f"""s_mul_i32 s70, s{66+k}, 15
s_add_u32 s70, s70, {(k-1)*5120}
v_add_u32 v{WA[k]}, s70, v{VL}""")
    a(f"""s_mul_i32 s70, s66, 15
v_add_u32 v{RA}, s70, v{VL}
v_mov_b32 v{VZ}, 0
v_min_u32 v{FA_}, 15, v1
v_lshlrev_b32 v{FA_}, 7, v{FA_}
v_lshlrev_b32 v{T}, 7, v1
s_mul_i32 s71, s57, {80*128}
s_add_u32 s71, s71, {FL_OFF}
s_add_u32 s72, s71, 8192""")
    XV=SB+0
    xl=[(f"buffer_load_dwordx4 v[{XV}:{XV+3}], v{XA}, s[{SRD_X}:{SRD_X+3}], s64 offen","x"),
        (f"buffer_load_dwordx4 v[{XV+4}:{XV+7}], v{XA}, s[{SRD_X}:{SRD_X+3}], s64 offen offset:16","x"),
        (f"buffer_load_dwordx2 v[{XV+8}:{XV+9}], v{XA}, s[{SRD_X}:{SRD_X+3}], s64 offen offset:32","x"),
        (f"buffer_load_dword v{EP}, v{VZ}, s[{SRD_DBG}:{SRD_DBG+3}], 0 offen sc0 sc1","ep")]
    for j in range(12):
        vm.wait_for(("s",j))
        if j==0: stamp(a,1)
        if PROF and j%2==0: a(f"s_memtime s[{74+j}:{75+j}]")
        b=SB+36*(j%NS)
        order=[(dt,k) for dt in range(5) for k in range(4)]
        if j==11: order=[(dt,k) for k in (1,2,3,0) for dt in range(5)]
        lq = ldl(j+PRE) if j+PRE<12 else (xl if j==9 else [])
        for n,(dt,k) in enumerate(order):
            c=ACC+(dt*4+k)*4
            a(f"v_mfma_f32_16x16x32_bf16 v[{c}:{c+3}], v[{b+4*dt}:{b+4*dt+3}], v[{b+20+4*k}:{b+23+4*k}], v[{c}:{c+3}]")
            if n%2==1 and lq:
                l,t=lq.pop(0); a(l); vm.issue(t)
        assert not lq
    stamp(a,2)
    if PROF:
        for j in range(2,12,2):
            a(f"s_sub_u32 s{74+j}, s{74+j}, s74\nv_writelane_b32 v255, s{74+j}, {8+j//2}")
    XF=SB+12
    YF=SB+36
    FLG=SB+56
    RD=SB+72
    lk=a.newlabel("L_bepk")
    a(f"""s_waitcnt vmcnt(0)
v_readfirstlane_b32 s67, v{EP}
s_cmp_lg_u32 s67, 0
s_cbranch_scc1 {lk}""")
    get_epoch(a,VZ,EP,67)
    a(f"""{lk}:
buffer_load_dword v{FLG}, v{T}, s[{SRD_WS}:{SRD_WS+3}], s71 offen sc0 sc1
buffer_load_dword v{FLG+1}, v{FA_}, s[{SRD_WS}:{SRD_WS+3}], s72 offen sc0 sc1""")
    for k in range(1,4):
        for dt in range(5):
            c=ACC+(dt*4+k)*4
            a(f"ds_write_b128 v{WA[k]}, v[{c}:{c+3}] offset:{dt*1024}")
    for k in range(10):
        a(f"v_lshlrev_b32 v{XF+2*k}, 16, v{XV+k}")
        a(f"v_and_b32 v{XF+2*k+1}, 0xffff0000, v{XV+k}")
    lp=a.newlabel("L_bp"); ldn=a.newlabel("L_bpd")
    a(f"""s_mov_b32 s98, {1 if NOWAIT else 200000}
s_waitcnt lgkmcnt(0)
s_barrier""")
    for p in range(3):
        for dt in range(5):
            r=RD+20*p+4*dt
            a(f"ds_read_b128 v[{r}:{r+3}], v{RA} offset:{p*5120+dt*1024}")
    a(f"""{lp}:
s_waitcnt vmcnt(0)
v_xor_b32 v{FLG}, s67, v{FLG}
v_xor_b32 v{FLG+1}, s67, v{FLG+1}
v_or_b32 v{FLG}, v{FLG}, v{FLG+1}
v_cmp_ne_u32 vcc, 0, v{FLG}
s_nop 1
s_cmp_eq_u64 vcc, 0
s_cbranch_scc1 {ldn}
s_sub_u32 s98, s98, 1
s_cmp_eq_u32 s98, 0
s_cbranch_scc1 {ldn}
s_sleep 2
buffer_load_dword v{FLG}, v{T}, s[{SRD_WS}:{SRD_WS+3}], s71 offen sc0 sc1
buffer_load_dword v{FLG+1}, v{FA_}, s[{SRD_WS}:{SRD_WS+3}], s72 offen sc0 sc1
s_branch {lp}
{ldn}:""")
    stamp(a,4)
    for dt in range(5):
        a(f"buffer_load_dwordx4 v[{YF+4*dt}:{YF+4*dt+3}], v{YA}, s[{SRD_WS}:{SRD_WS+3}], s63 offen sc0 sc1")
        if dt<4: a(f"s_add_u32 s63, s63, {4*GS}")
    for p in range(3):
        a(f"s_waitcnt lgkmcnt({5*(2-p)})")
        for k in range(10):
            a(f"v_pk_add_f32 v[{XF+2*k}:{XF+2*k+1}], v[{XF+2*k}:{XF+2*k+1}], v[{RD+20*p+2*k}:{RD+20*p+2*k+1}]")
    for dt in range(5):
        c=ACC+(dt*4)*4
        a(f"s_waitcnt vmcnt({4-dt})")
        a(f"v_mfma_f32_16x16x32_bf16 v[{c}:{c+3}], v[{YF+4*dt}:{YF+4*dt+3}], v[{ID}:{ID+3}], v[{c}:{c+3}]")
    for dt in range(5):
        c=ACC+(dt*4)*4
        for h in range(2):
            a(f"v_pk_add_f32 v[{XF+4*dt+2*h}:{XF+4*dt+2*h+1}], v[{XF+4*dt+2*h}:{XF+4*dt+2*h+1}], v[{c+2*h}:{c+2*h+1}]")
    for k in range(10):
        a(f"v_cvt_pk_bf16_f32 v{XV+k}, v{XF+2*k}, v{XF+2*k+1}")
    a(f"""buffer_store_dwordx4 v[{XV}:{XV+3}], v{XA}, s[{SRD_W}:{SRD_W+3}], s64 offen
buffer_store_dwordx4 v[{XV+4}:{XV+7}], v{XA}, s[{SRD_W}:{SRD_W+3}], s64 offen offset:16
buffer_store_dwordx2 v[{XV+8}:{XV+9}], v{XA}, s[{SRD_W}:{SRD_W+3}], s64 offen offset:32""")
    stamp(a,3); stamp_flush(a,1)
    a("L_B_end:\ns_endpgm")
    return a.text(), LDS_A

HEADER = open("parallel_sum__ssm_conv_s4__dense_activation_mish__prompt.s.ref").read().split("; Override launch")[0]

def kd(name, vgpr, accum, sgpr=102):
    return f""".amdhsa_kernel {name}
  .amdhsa_next_free_vgpr {vgpr}
  .amdhsa_next_free_sgpr {sgpr}
  .amdhsa_accum_offset {accum}
  .amdhsa_group_segment_fixed_size 0
  .amdhsa_kernarg_size 128
  .amdhsa_user_sgpr_count 2
  .amdhsa_user_sgpr_kernarg_segment_ptr 1
  .amdhsa_system_sgpr_workgroup_id_x 1
.end_amdhsa_kernel
"""

def build(opt):
    A=gen_kernelA(opt); B,ldsB=gen_kernelB(opt)
    s=HEADER
    s+=f"; @launch kernel=stage_a_kernel grid=(512,1,1) block=(256,1,1) lds={LDS_A}\n"
    s+=f"; @launch kernel=stage_b_kernel grid=(512,1,1) block=(256,1,1) lds={ldsB}\n"
    if opt.get("rep2"): s+=f"; @launch kernel=stage_b_kernel grid=(512,1,1) block=(256,1,1) lds={ldsB}\n"
    s+='.amdgcn_target "amdgcn-amd-amdhsa--gfx950"\n.text\n'
    for name,body in (("stage_a_kernel",A),("stage_b_kernel",B)):
        s+=f".globl {name}\n.p2align 8\n.type {name},@function\n{name}:\n{body}"
    s+='.section .rodata,"a"\n.p2align 6\n'+kd("stage_a_kernel",256,256)+".p2align 6\n"+kd("stage_b_kernel",256,256)
    return s

if __name__=="__main__":
    opt={}
    out=sys.argv[1] if len(sys.argv)>1 else "parallel_sum__ssm_conv_s4__dense_activation_mish__prompt.s"
    for kv in sys.argv[2:]:
        k,v=kv.split("="); opt[k]=v
    PROF = opt.get("prof","0")=="1"
    NOWAIT = "only" in opt
    open(out,"w").write(build(opt))
    print("wrote",out)
```

```python
import sys, struct
from asmlib import Asm, VM

def f2u(x): return struct.unpack("<I", struct.pack("<f", x))[0]

GS      = 4160
G_OFF   = 0
ST_OFF  = 0x280000
FL_OFF  = 0x290000
Y_OFF   = 0x2B0000
W2F_OFF = 0x540000
ACT_OFF = 0x720000
KI_OFF  = 0xD20000
KIS     = 9216
WS_END  = 0x1500000
TS_OFF  = 0x1400000
TROW = 272
REG  = 17408
KC1  = 4576
YB   = 9120
U0   = 3*REG
UCH  = 8448
UC1  = 4224
LDS_A = 81920
LOG2E = 0x3fb8aa3b; LOG2E_LO = 0x32a5705f; LN2 = 0x3f317218

S_X=4; S_ARE=6; S_AIM=8; S_BRE=10; S_BIM=12; S_CRE=14; S_CIM=16; S_LDT=18
S_DSK=20; S_W1=24; S_B1=26; S_W2=28; S_OUT=30; S_DBG=32; S_WS=34
SRD_WS=36; SRD_X=40; SRD_W=44; SRD_DBG=48
S_WAVE=52
PROF=False
NOWAIT=False
SKIP=[]

def srd(a, dst, ptr, nbytes):
    a(f"""s_mov_b32 s{dst}, s{ptr}
s_and_b32 s{dst+1}, s{ptr+1}, 0xffff
s_mov_b32 s{dst+2}, {nbytes}
s_mov_b32 s{dst+3}, 0x00020000""")

def cmul(dst, z, m, t, conj=False):
    if not conj:
        return [f"v_pk_mul_f32 v[{t}:{t+1}], v[{z}:{z+1}], v[{m}:{m+1}] op_sel:[0,0] op_sel_hi:[0,1]",
                f"v_pk_fma_f32 v[{dst}:{dst+1}], v[{z}:{z+1}], v[{m}:{m+1}], v[{t}:{t+1}] op_sel:[1,1,0] op_sel_hi:[1,0,1] neg_lo:[0,1,0]"]
    return [f"v_pk_mul_f32 v[{t}:{t+1}], v[{z}:{z+1}], v[{m}:{m+1}] op_sel:[0,0] op_sel_hi:[0,1] neg_hi:[0,1]",
            f"v_pk_fma_f32 v[{dst}:{dst+1}], v[{z}:{z+1}], v[{m}:{m+1}], v[{t}:{t+1}] op_sel:[1,1,0] op_sel_hi:[1,0,1]"]

def stamp(a, idx, reg=255):
    if not PROF: return
    a(f"""s_memrealtime s[100:101]
s_waitcnt lgkmcnt(0)
v_writelane_b32 v{reg}, s100, {idx}""")
def stampc(a, idx, reg=255):
    if not PROF: return
    a(f"""s_memtime s[100:101]
s_waitcnt lgkmcnt(0)
v_writelane_b32 v{reg}, s100, {idx}""")
def stamp_flush(a, kern=0, reg=255, tmp=254):
    if not PROF: return
    stampc(a,15,reg)
    a(f"""s_lshl_b32 s100, s2, 2
s_add_u32 s100, s100, s{S_WAVE}
s_lshl_b32 s100, s100, 6
s_add_u32 s100, s100, {TS_OFF+kern*0x40000}
v_lshlrev_b32 v{tmp}, 2, v1
s_mov_b64 exec, 0xffff
buffer_store_dword v{reg}, v{tmp}, s[{SRD_WS}:{SRD_WS+3}], s100 offen
s_mov_b64 exec, -1""")

def get_epoch(a, vz, vt, sdst):
    lp=a.newlabel("L_ep"); ld=a.newlabel("L_epd")
    a(f"""s_mov_b32 s98, {1 if NOWAIT else 200000}
{lp}:
buffer_load_dword v{vt}, v{vz}, s[{SRD_DBG}:{SRD_DBG+3}], 0 offen sc0 sc1
s_waitcnt vmcnt(0)
v_readfirstlane_b32 s{sdst}, v{vt}
s_cmp_lg_u32 s{sdst}, 0
s_cbranch_scc1 {ld}
s_sleep 2
s_sub_u32 s98, s98, 1
s_cmp_lg_u32 s98, 0
s_cbranch_scc1 {lp}
{ld}:""")

def gen_kgen(a):
    RAW=2; P=14
    A2=20; B2=21; DT=22; VT=23
    Z=24; C=26; T=28; T2=30; E1=32; E2=34; E4=36; E8=38; E248=40; X=42; Y=43; S_=44; CO=45
    PKS=[46,47,48,49]; ONE=50
    FA=51; FB=52
    ACC=56
    FR=72
    arrs=[S_ARE,S_AIM,S_BRE,S_BIM,S_CRE,S_CIM]
    a(f"""s_mul_i32 s56, s54, 384
v_lshlrev_b32 v{X}, 2, v1
v_add_u32 v{X}, s56, v{X}
v_lshlrev_b32 v{Y}, 1, v1
v_add_u32 v{Y}, s56, v{Y}
s_lshr_b32 s57, s54, 1
s_lshl_b32 s57, s57, 2
s_load_dword s58, s[{S_LDT}:{S_LDT+1}], s57
s_load_dword s59, s[{S_DSK}:{S_DSK+1}], s57""")
    for i,s in enumerate(arrs):
        a(f"global_load_dword v{RAW+i}, v{X}, s[{s}:{s+1}]")
    for i in range(6): a(f"v_mov_b32 v{RAW+6+i}, 0")
    for i,s in enumerate(arrs):
        a(f"global_load_short_d16_hi v{RAW+6+i}, v{Y}, s[{s}:{s+1}] offset:256")
    a(f"""s_mov_b32 m0, s55
v_and_b32 v{FB}, 31, v1
v_mul_u32_u24 v{FB}, {TROW}, v{FB}
v_lshrrev_b32 v{FA}, 5, v1
v_lshlrev_b32 v{FA}, 4, v{FA}
v_add_u32 v{FB}, v{FB}, v{FA}
v_add_u32 v{FB}, s55, v{FB}
v_add_u32 v{FA}, {32*TROW}, v{FB}""")
    for i in range(16): a(f"v_mov_b32 v{ACC+i}, 0")
    a(f"""s_waitcnt lgkmcnt(0)
s_and_b32 s57, s54, 1
s_lshl_b32 s57, s57, 4
s_lshr_b32 s58, s58, s57
s_lshl_b32 s58, s58, 16
s_lshr_b32 s59, s59, s57
s_lshl_b32 s59, s59, 16
s_mov_b32 s60, 0x{LOG2E:08x}
s_mov_b32 s61, 0x{LOG2E_LO:08x}
s_mov_b32 s62, 0x{LN2:08x}
v_mov_b32 v{X}, s58
v_mul_f32 v{Y}, s60, v{X}
v_fma_f32 v{S_}, v{X}, s60, -v{Y}
v_fma_f32 v{S_}, v{X}, s61, v{S_}
v_exp_f32 v{Y}, v{Y}
v_mul_f32 v{S_}, s62, v{S_}
v_fma_f32 v{Y}, v{Y}, v{S_}, v{Y}
v_cvt_pk_bf16_f32 v{Y}, v{Y}, v{Y}
v_lshlrev_b32 v{DT}, 16, v{Y}
v_mov_b32 v{ONE}, 0x3f80
s_waitcnt vmcnt(6)""")
    stamp(a,1); stampc(a,2)
    DX=[136,137,138]; DY=[139,140,141]; DS=[142,143,144]; DC=[145,146,147]
    def setup(g):
        L=[]
        for i in range(6):
            if g==0: L.append(f"v_lshlrev_b32 v{P+i}, 16, v{RAW+i}")
            elif g==1: L.append(f"v_and_b32 v{P+i}, 0xffff0000, v{RAW+i}")
        src=[(P+i) if g<2 else (RAW+6+i) for i in range(6)]
        ar,ai,br,bi,cr,ci=src
        L+=[f"v_mul_f32 v{A2}, v{ar}, v{DT}", f"v_mul_f32 v{B2}, v{ai}, v{DT}",
            f"v_mul_f32 v{A2}, s60, v{A2}", f"v_mul_f32 v{B2}, 0.15915494, v{B2}"]
        lam=[1,8,248]; dst=[E1,E8,E248]
        for k in (1,2):
            L+=[f"v_mul_f32 v{DY[k]}, 0x{f2u(float(lam[k])):08x}, v{B2}", f"v_mul_f32 v{DX[k]}, 0x{f2u(float(lam[k])):08x}, v{A2}"]
        L+=[f"v_fract_f32 v{DY[0]}, v{B2}", f"v_fract_f32 v{DY[1]}, v{DY[1]}", f"v_fract_f32 v{DY[2]}, v{DY[2]}",
            f"v_exp_f32 v{DX[0]}, v{A2}", f"v_exp_f32 v{DX[1]}, v{DX[1]}", f"v_exp_f32 v{DX[2]}, v{DX[2]}"]
        for k in range(3): L+=[f"v_sin_f32 v{DS[k]}, v{DY[k]}", f"v_cos_f32 v{DC[k]}, v{DY[k]}"]
        L+=[f"v_mul_f32 v{Z}, v{cr}, v{br}", f"v_mul_f32 v{Z+1}, v{cr}, v{bi}",
            f"v_fma_f32 v{Z}, -v{ci}, v{bi}, v{Z}", f"v_fma_f32 v{Z+1}, v{ci}, v{br}, v{Z+1}",
            f"v_mul_f32 v{Z}, v{Z}, v{DT}", f"v_mul_f32 v{Z+1}, -v{Z+1}, v{DT}"]
        for k in range(3): L+=[f"v_mul_f32 v{dst[k]+1}, v{DX[k]}, v{DS[k]}", f"v_mul_f32 v{dst[k]}, v{DX[k]}, v{DC[k]}"]
        L+=cmul(E2,E1,E1,T)+cmul(E4,E2,E2,T)
        return L
    rowseq=[(E1,[1]),(E1,[2]),(E1,[3]),(E1,[4]),(E1,[5]),(E1,[6]),(E1,[7]),(E1,[]),
            (E248,[8]),(E2,[9]),(E2,[10,12]),(E2,[13]),(E2,[14]),
            (E248,[16]),(E4,[17,20]),(E4,[21]),(E248,[18]),(E4,[19,22]),(E4,[23]),
            (E248,[24]),(E8,[28]),(E248,[25]),(E8,[29]),(E248,[26]),(E8,[30]),(E248,[27]),(E8,[31])]
    for l in setup(0): a(l)
    pend=[]
    for g in range(3):
        if g==0: stampc(a,9)
        wq=[]
        pk=0
        def cvt(src, rows):
            nonlocal pk
            r=PKS[pk%4]; pk+=1
            a(f"v_cvt_pk_bf16_f32 v{r}, v{src}, v{src+1}")
            return [f"ds_write_addtid_b32 v{r} offset:{x*TROW}" for x in rows]
        a(f"ds_write_addtid_b32 v{ONE}")
        wq=cvt(Z,[32])+cvt(E8,[1])
        cur=E8
        for j in range(2,32):
            k=j-2
            c1=cmul(C,cur,E8,T); cur=C
            c2=cmul(Z,Z,rowseq[k][0],T2,conj=True) if k<len(rowseq) else []
            a(c1[0])
            if c2: a(c2[0])
            a(c1[1])
            if c2: a(c2[1])
            nq=cvt(C,[j])
            if c2 and rowseq[k][1]: nq+=cvt(Z,[32+r for r in rowseq[k][1]])
            while wq: a(wq.pop(0))
            if pend and j%3==0: a(pend.pop(0))
            wq=nq
        for w in wq: a(w)
        assert not pend
        if g==0: stampc(a,10)
        if g==1: a("s_waitcnt vmcnt(0)")
        a("s_waitcnt lgkmcnt(0)")
        for q in range(8):
            a(f"ds_read_b128 v[{FR+8*q}:{FR+8*q+3}], v{FA} offset:{32*q}")
            a(f"ds_read_b128 v[{FR+8*q+4}:{FR+8*q+7}], v{FB} offset:{32*q}")
        if g<2:
            for l in setup(g+1): a(l)
        else:
            a(f"""v_mov_b32 v{T}, 0
v_mov_b32 v{T+1}, 0
v_mov_b32 v{T2}, 0
v_mov_b32 v{T2+1}, 0
v_lshlrev_b32 v{S_}, 4, v1
v_add_u32 v{S_}, s55, v{S_}
v_and_b32 v{X}, 31, v1
v_lshlrev_b32 v{X}, 4, v{X}
v_lshrrev_b32 v{Y}, 5, v1
v_lshlrev_b32 v{Y}, 3, v{Y}
v_add_u32 v{X}, v{X}, v{Y}
v_add_u32 v{X}, s55, v{X}
v_cmp_lt_u32 vcc, 31, v1""")
        a("s_waitcnt lgkmcnt(0)")
        stampc(a,11 if g==0 else (12 if g==1 else 13))
        pend=[f"v_mfma_f32_32x32x16_bf16 v[{ACC}:{ACC+15}], v[{FR+8*q}:{FR+8*q+3}], v[{FR+8*q+4}:{FR+8*q+7}], v[{ACC}:{ACC+15}]" for q in range(8)]
    for m in pend[:4]: a(m)
    a(f"""s_mov_b32 exec_hi, 0
ds_write_b128 v{S_}, v[{T}:{T+3}]
ds_write_b128 v{S_}, v[{T}:{T+3}] offset:{KC1}
s_mov_b64 exec, -1""")
    for m in pend[4:]: a(m)
    a(f"""s_mov_b64 exec, 1
v_add_f32 v{ACC}, s59, v{ACC}
s_mov_b64 exec, -1""")
    ac=lambda i: ACC+i
    a(f"v_cndmask_b32 v{S_}, v{ac(8)}, v{ac(9)}, vcc")
    a(f"v_cndmask_b32 v{CO}, v{ac(10)}, v{ac(11)}, vcc")
    blocks=[(0,[ac(0),ac(1),ac(2),ac(3)]),(256,[ac(4),ac(4),ac(5),ac(6)]),(512,[ac(8),ac(8),S_,ac(9)]),(768,[ac(10),ac(10),CO,ac(11)])]
    Q=FR
    for n,(base,e) in enumerate(blocks):
        p=Q+4*n
        a(f"v_cvt_pk_bf16_f32 v{p}, v{e[0]}, v{e[1]}")
        a(f"v_cvt_pk_bf16_f32 v{p+1}, v{e[2]}, v{e[3]}")
        a(f"v_cvt_pk_bf16_f32 v{p+2}, v{e[1]}, v{e[2]}")
    for b in range(4):
        p=Q+16+2*b
        a(f"v_cvt_pk_bf16_f32 v{p}, v{ac(12+b)}, v{ac(12+b)}")
        a(f"v_mov_b32 v{p+1}, v{p}")
    for n,(base,e) in enumerate(blocks):
        p=Q+4*n
        a(f"ds_write_b64 v{X}, v[{p}:{p+1}] offset:{KC1+2*(base+224)}")
        a(f"ds_write_b16 v{X}, v{p} offset:{2*(base+225)}")
        a(f"ds_write_b32 v{X}, v{p+2} offset:{2*(base+226)}")
        a(f"ds_write_b16_d16_hi v{X}, v{p+1} offset:{2*(base+228)}")
    for b in range(4):
        p=Q+16+2*b; base=1024+256*b
        a(f"ds_write_b64 v{X}, v[{p}:{p+1}] offset:{KC1+2*(base+224)}")
        a(f"ds_write_b16 v{X}, v{p} offset:{2*(base+225)}")
        a(f"ds_write_b32 v{X}, v{p} offset:{2*(base+226)}")
        a(f"ds_write_b16 v{X}, v{p} offset:{2*(base+228)}")
    a("s_mov_b64 exec, 0x55555555")
    for b in range(4):
        p=Q+16+2*b
        a(f"ds_write_b16 v{X}, v{p} offset:{KC1+2*(1024+256*b+4+224)}")
        a(f"ds_write_b16 v{X}, v{p} offset:{2*(1024+256*b+4+225)}")
    a("s_mov_b64 exec, -1")
    a(f"""v_lshlrev_b32 v{Y}, 4, v1
v_add_u32 v{X}, s55, v{Y}
s_mul_i32 s56, s54, {KIS}
s_add_u32 s56, s56, {KI_OFF}
s_add_u32 s57, s56, 4096
s_add_u32 s58, s56, 8192
s_waitcnt lgkmcnt(0)""")
    if "kimg" in SKIP: return
    for i in range(9): a(f"ds_read_b128 v[{FR+4*i}:{FR+4*i+3}], v{X} offset:{1024*i}")
    for i in range(9):
        a(f"s_waitcnt lgkmcnt({8-i})")
        a(f"buffer_store_dwordx4 v[{FR+4*i}:{FR+4*i+3}], v{Y}, s[{SRD_WS}:{SRD_WS+3}], s{56+i//4} offen offset:{1024*(i%4)} sc0 sc1")

def gen_w2f(a):
    RAW=2; VA=100; VB=101; VC=102
    SC=2*REG
    a(f"""s_and_b32 s56, s53, 7
s_lshl_b32 s56, s56, 4
s_lshr_b32 s57, s53, 3
s_sub_u32 s57, s57, 16
s_add_u32 s56, s56, s57
s_mul_i32 s56, s56, 3""")
    for i in range(5):
        a(f"""v_add_u32 v{VA}, {64*i}, v1
v_mul_u32_u24 v{VB}, 6554, v{VA}
v_lshrrev_b32 v{VB}, 16, v{VB}
v_mul_u32_u24 v{VC}, 10, v{VB}
v_sub_u32 v{VC}, v{VA}, v{VC}
v_lshlrev_b32 v{VC}, 4, v{VC}
v_mul_u32_u24 v{VB}, 1280, v{VB}
v_add_u32 v{104+i}, v{VB}, v{VC}""")
    for n in range(3):
        a(f"""s_add_u32 s57, s56, {n}
s_lshr_b32 s58, s57, 3
s_and_b32 s59, s57, 7
s_mul_i32 s60, s58, {32*1280}
s_mul_i32 s61, s59, 160
s_add_u32 s60, s60, s61
s_mul_i32 s59, s59, 48
s_add_u32 s59, s59, s58
s_mul_i32 s59, s59, 5120
s_add_u32 s{68+n}, s59, {W2F_OFF}""")
        for i in range(5):
            a(f"s_mov_b32 m0, {SC+5120*n+1024*i}")
            a(f"buffer_load_dwordx4 v{104+i}, s[{SRD_W}:{SRD_W+3}], s60 offen lds")
    a(f"""v_lshrrev_b32 v{VA}, 2, v1
v_mul_u32_u24 v{VA}, 160, v{VA}
v_and_b32 v{VB}, 3, v1
v_mul_u32_u24 v{VB}, 40, v{VB}
v_add_u32 v{VA}, v{VA}, v{VB}
v_add_u32 v{VA}, {SC}, v{VA}
v_lshlrev_b32 v{VB}, 4, v1
v_add_u32 v{VC}, 4096, v{VB}""")
    for n in range(3):
        if n==0: a("s_waitcnt vmcnt(0)")
        for nt in range(5):
            r=RAW+20*n+4*nt
            a(f"ds_read_b64_tr_b16 v[{r}:{r+1}], v{VA} offset:{5120*n+8*nt}")
            a(f"ds_read_b64_tr_b16 v[{r+2}:{r+3}], v{VA} offset:{5120*n+8*nt+2560}")
        for nt in range(5):
            r=RAW+20*n+4*nt
            a(f"s_waitcnt lgkmcnt({2*(4-nt)})")
            if nt<4: a(f"buffer_store_dwordx4 v[{r}:{r+3}], v{VB}, s[{SRD_WS}:{SRD_WS+3}], s{68+n} offen offset:{1024*nt} sc0 sc1")
            else: a(f"buffer_store_dwordx4 v[{r}:{r+3}], v{VC}, s[{SRD_WS}:{SRD_WS+3}], s{68+n} offen sc0 sc1")

def gen_aux(a):
    RAW=2
    XC=130
    VA=200; VB=201; VC=202; VD=203; VZ=204; VX=205
    a(f"v_mov_b32 v{VZ}, 0")
    le=a.newlabel("L_noep")
    a(f"""s_cmp_lg_u32 s53, 0
s_cbranch_scc1 {le}
s_memrealtime s[56:57]
s_waitcnt lgkmcnt(0)
s_or_b32 s56, s56, 1
v_mov_b32 v{VA}, s56
s_mov_b64 exec, 1
buffer_store_dword v{VA}, v{VZ}, s[{SRD_DBG}:{SRD_DBG+3}], 0 offen sc0 sc1
s_mov_b64 exec, -1
{le}:""")
    a(f"""s_and_b32 s72, s53, 7
s_lshl_b32 s72, s72, 1
s_lshr_b32 s73, s53, 7
s_add_u32 s72, s72, s73
s_lshr_b32 s73, s53, 3
s_and_b32 s73, s73, 15
s_lshl_b32 s77, s72, 4
s_add_u32 s77, s77, s73
s_mul_i32 s56, s72, {128*1280}
s_mul_i32 s57, s73, 80
s_add_u32 s56, s56, s57""")
    for i in range(3):
        a(f"""v_add_u32 v{VA}, {64*i}, v1
v_mul_u32_u24 v{VB}, 10923, v{VA}
v_lshrrev_b32 v{VB}, 16, v{VB}
v_mul_u32_u24 v{VC}, 6, v{VB}
v_sub_u32 v{VC}, v{VA}, v{VC}
v_lshlrev_b32 v{VC}, 4, v{VC}
v_mul_u32_u24 v{VB}, 1280, v{VB}
v_add_u32 v{196+i}, v{VB}, v{VC}""")
    for qd in range(4):
        for i in range(3):
            a(f"s_mov_b32 m0, {U0+3072*qd+1024*i}")
            a(f"buffer_load_dwordx4 v{196+i}, s[{SRD_X}:{SRD_X+3}], s56 offen lds")
        if qd<3: a(f"s_add_u32 s56, s56, {32*1280}")
    LRW=2; XF=42; SM=122; TP=130
    a(f"v_mul_u32_u24 v{VA}, 20, v1\ns_mul_i32 s56, s77, {8*1280}")
    for r in range(8):
        a(f"buffer_load_dwordx4 v[{LRW+4*r}:{LRW+4*r+3}], v{VA}, s[{SRD_X}:{SRD_X+3}], s56 offen")
        a(f"buffer_load_dword v{LRW+32+r}, v{VA}, s[{SRD_X}:{SRD_X+3}], s56 offen offset:16")
        if r<7: a(f"s_add_u32 s56, s56, 1280")
    a(f"buffer_load_dword v{VD}, v{VZ}, s[{SRD_DBG}:{SRD_DBG+3}], 0 offen sc0 sc1")
    XR0=146
    a(f"""v_lshrrev_b32 v{VA}, 2, v1
v_mul_u32_u24 v{VA}, 96, v{VA}
v_and_b32 v{VB}, 3, v1
v_lshlrev_b32 v{VC}, 3, v{VB}
v_add_u32 v{VA}, v{VA}, v{VC}
v_add_u32 v{VA}, {U0}, v{VA}
v_and_b32 v196, 15, v1
v_lshlrev_b32 v196, 6, v196
v_lshrrev_b32 v197, 4, v1
v_lshlrev_b32 v197, 3, v197
v_add_u32 v196, v196, v197
v_add_u32 v196, {U0}, v196              ; b64 write addr
v_lshlrev_b32 v197, 4, v1
v_add_u32 v197, {U0}, v197
v_lshrrev_b32 v198, 2, v1
v_lshlrev_b32 v198, 12, v198
v_lshlrev_b32 v{VB}, 4, v{VB}
v_add_u32 v198, v198, v{VB}
s_mul_i32 s56, s73, {40*4096}
s_lshl_b32 s57, s72, 8
s_add_u32 s56, s56, s57
s_add_u32 s56, s56, {G_OFF}
s_add_u32 s57, s56, {16*4096}
s_add_u32 s58, s56, {32*4096}
s_waitcnt vmcnt(17)""")
    stamp(a,1)
    for half in range(2):
        for qd in (2*half,2*half+1):
            for hh in range(2):
                for ct in range(3):
                    r=XR0+12*(qd&1)+2*(3*hh+ct)
                    a(f"ds_read_b64_tr_b16 v[{r}:{r+1}], v{VA} offset:{3072*qd+hh*1536+ct*32}")
        a("s_waitcnt lgkmcnt(0)")
        for qd in (2*half,2*half+1):
            for hh in range(2):
                for ct in range(3):
                    r=XR0+12*(qd&1)+2*(3*hh+ct)
                    a(f"ds_write_b64 v196, v[{r}:{r+1}] offset:{3072*qd+ct*1024+hh*32}")
    a("s_waitcnt lgkmcnt(0)")
    for qd in range(4):
        for ct in range(3):
            r=XR0+12*qd+4*ct
            a(f"ds_read_b128 v[{r}:{r+3}], v197 offset:{3072*qd+ct*1024}")
    a("s_waitcnt vmcnt(0)")
    for qd in range(4):
        a(f"s_waitcnt lgkmcnt({3*(3-qd)})")
        for ct in range(3):
            r=XR0+12*qd+4*ct
            if ct==2: a("s_mov_b32 exec_hi, 0")
            a(f"buffer_store_dwordx4 v[{r}:{r+3}], v198, s[{SRD_WS}:{SRD_WS+3}], s{56+ct} offen offset:{64*qd} sc0 sc1")
            if ct==2: a("s_mov_b64 exec, -1")
    for r in range(8):
        for k in range(5):
            sr = LRW+4*r+k if k<4 else LRW+32+r
            a(f"v_lshlrev_b32 v{XF+10*r+2*k}, 16, v{sr}")
            a(f"v_and_b32 v{XF+10*r+2*k+1}, 0xffff0000, v{sr}")
    for r in range(8):
        b=XF+10*r; t=TP+2*r
        a(f"v_pk_add_f32 v[{t}:{t+1}], v[{b}:{b+1}], v[{b+2}:{b+3}]")
    for k in (4,6,8):
        for r in range(8):
            b=XF+10*r; t=TP+2*r
            a(f"v_pk_add_f32 v[{t}:{t+1}], v[{t}:{t+1}], v[{b+k}:{b+k+1}]")
    for r in range(8): a(f"v_add_f32 v{SM+r}, v{TP+2*r}, v{TP+2*r+1}")
    wave_sum(a,[SM+r for r in range(8)])
    for r in range(8): a(f"v_mul_f32 v{SM+r}, 0x{f2u(-1.0/640):08x}, v{SM+r}")
    for r in range(8): a(f"v_readlane_b32 s{78+2*r}, v{SM+r}, 63")
    for r in range(8):
        for k in range(5):
            b=XF+10*r+2*k
            a(f"v_pk_add_f32 v[{b}:{b+1}], v[{b}:{b+1}], s[{78+2*r}:{79+2*r}] op_sel_hi:[1,0]")
    for r in range(8):
        b=XF+10*r; t=TP+2*r
        a(f"v_pk_mul_f32 v[{t}:{t+1}], v[{b}:{b+1}], v[{b}:{b+1}]")
    for k in (2,4,6,8):
        for r in range(8):
            b=XF+10*r+k; t=TP+2*r
            a(f"v_pk_fma_f32 v[{t}:{t+1}], v[{b}:{b+1}], v[{b}:{b+1}], v[{t}:{t+1}]")
    for r in range(8): a(f"v_add_f32 v{SM+r}, v{TP+2*r}, v{TP+2*r+1}")
    wave_sum(a,[SM+r for r in range(8)])
    for r in range(8): a(f"v_readlane_b32 s{79+2*r}, v{SM+r}, 63")
    lk=a.newlabel("L_epk")
    a(f"""v_readfirstlane_b32 s67, v{VD}
s_cmp_lg_u32 s67, 0
s_cbranch_scc1 {lk}""")
    get_epoch(a,VZ,VD,67)
    a(f"""{lk}:
v_mov_b32 v{LRW+1}, s67
v_mov_b32 v{LRW+3}, s67
""")
    for r in range(8):
        a(f"v_writelane_b32 v{LRW}, s{79+2*r}, {r}")
        a(f"v_writelane_b32 v{LRW+2}, s{78+2*r}, {r}")
    a(f"""s_mov_b32 s56, 0x{f2u(1.0/640):08x}
v_mov_b32 v{VB}, 0x{f2u(1e-5):08x}
v_fma_f32 v{LRW}, v{LRW}, s56, v{VB}
v_rsq_f32 v{LRW}, v{LRW}
v_lshlrev_b32 v{VB}, 4, v1
s_lshl_b32 s56, s77, 7
s_add_u32 s56, s56, {ST_OFF}
v_mul_f32 v{LRW+2}, v{LRW+2}, v{LRW}
s_mov_b64 exec, 0xff
buffer_store_dwordx4 v[{LRW}:{LRW+3}], v{VB}, s[{SRD_WS}:{SRD_WS+3}], s56 offen sc0 sc1
s_mov_b64 exec, -1""")
    stamp(a,2)

def gen_stage(a):
    RAW=2
    XC=34
    VA=46; VB=47; VX=48; VZ=49; TT=50
    le=a.newlabel("L_noep")
    a(f"""v_mov_b32 v{VZ}, 0
s_or_b32 s56, s53, s{S_WAVE}
s_cmp_lg_u32 s56, 0
s_cbranch_scc1 {le}
s_memrealtime s[56:57]
s_waitcnt lgkmcnt(0)
s_or_b32 s56, s56, 1
v_mov_b32 v{VA}, s56
s_mov_b64 exec, 1
buffer_store_dword v{VA}, v{VZ}, s[{SRD_DBG}:{SRD_DBG+3}], 0 offen sc0 sc1
s_mov_b64 exec, -1
{le}:
v_sub_u32 v{VA}, 63, v1
v_lshlrev_b32 v{VX}, 2, v{VA}
v_lshlrev_b32 v{VA}, 5, v{VA}
s_lshl_b32 s56, s{S_WAVE}, 2
s_sub_u32 s56, 12, s56
s_lshl_b32 s57, s56, 11
s_add_u32 s57, s57, {ST_OFF}
s_lshl_b32 s58, s56, 8
s_lshl_b32 s59, s64, 12
s_add_u32 s58, s58, s59
s_add_u32 s58, s58, {G_OFF}
s_add_u32 s59, s58, 4096
s_add_u32 s60, s58, 8192
s_add_u32 s61, s57, 4096""")
    for jj in range(4):
        o=2048*(3-jj); sb=57 if o<4096 else 61; o%=4096
        a(f"buffer_load_dwordx4 v[{RAW+8*jj}:{RAW+8*jj+3}], v{VA}, s[{SRD_WS}:{SRD_WS+3}], s{sb} offen offset:{o}")
        a(f"buffer_load_dwordx4 v[{RAW+8*jj+4}:{RAW+8*jj+7}], v{VA}, s[{SRD_WS}:{SRD_WS+3}], s{sb} offen offset:{o+16}")
        for k in range(3):
            a(f"buffer_load_dword v{XC+4*k+jj}, v{VX}, s[{SRD_WS}:{SRD_WS+3}], s{58+k} offen offset:{256*(3-jj)}")
    lk=a.newlabel("L_nok")
    a(f"""v_lshlrev_b32 v{VB}, 4, v1
s_cmp_ge_u32 s{S_WAVE}, s63
s_cbranch_scc1 {lk}
s_add_u32 s62, s64, s{S_WAVE}
s_mul_i32 s62, s62, {KIS}
s_add_u32 s62, s62, {KI_OFF}
s_mul_i32 s65, s{S_WAVE}, {REG}""")
    for i in range(9):
        a(f"s_add_u32 m0, s65, {1024*i}\ns_add_u32 s66, s62, {1024*i}")
        a(f"buffer_load_dwordx4 v{VB}, s[{SRD_WS}:{SRD_WS+3}], s66 offen lds")
    a(f"""{lk}:
v_add_u32 v{VB}, {U0}, v{VB}""")
    for i in range(4): a(f"v_mov_b32 v{TT+20+i}, 0")
    lz=a.newlabel("L_noz")
    a(f"""s_cmp_lg_u32 s{S_WAVE}, 3
s_cbranch_scc1 {lz}
s_mov_b64 exec, 0xf""")
    for k in range(3):
        a(f"ds_write_b128 v{VB}, v[{TT+20}:{TT+23}] offset:{k*UCH+UC1+4096}")
        a(f"ds_write_b128 v{VB}, v[{TT+20}:{TT+23}] offset:{k*UCH+4096}")
    a(f"""s_mov_b64 exec, -1
{lz}:
s_lshl_b32 s56, s{S_WAVE}, 10
s_add_u32 s56, s56, {U0}
s_mov_b32 m0, s56
s_waitcnt vmcnt(0)""")
    stamp(a,1)
    for jj in range(4):
        r=RAW+8*jj; t=TT+9*(jj%2)
        for k in range(3):
            a(f"v_lshlrev_b32 v{t+2*k}, 16, v{XC+4*k+jj}")
            a(f"v_and_b32 v{t+2*k+1}, 0xffff0000, v{XC+4*k+jj}")
        for k in range(3):
            a(f"v_fma_f32 v{t+2*k}, v{t+2*k}, v{r}, v{r+2}")
            a(f"v_fma_f32 v{t+2*k+1}, v{t+2*k+1}, v{r+4}, v{r+6}")
        for k in range(3):
            a(f"v_cvt_pk_bf16_f32 v{t+6+k}, v{t+2*k+1}, v{t+2*k}")
        if jj>0:
            tp=TT+9*((jj-1)%2)
            for k in range(3):
                a(f"ds_write_addtid_b32 v{tp+6+k} offset:{k*UCH+UC1+256*(jj-1)}")
                a(f"ds_write_addtid_b32 v{tp+6+k} offset:{k*UCH+256*(jj-1)+4}")
    tp=TT+9
    for k in range(3):
        a(f"ds_write_addtid_b32 v{tp+6+k} offset:{k*UCH+UC1+256*3}")
        a(f"ds_write_addtid_b32 v{tp+6+k} offset:{k*UCH+256*3+4}")
    a(f"buffer_load_dword v7, v{VZ}, s[{SRD_DBG}:{SRD_DBG+3}], 0 offen sc0 sc1")

def gen_conv(a):
    VA0=2; VB0=3; VF=4; VAu=5; VBu=6; T=8
    ACC=12
    F=[44,108]
    a(f"""v_and_b32 v{T}, 15, v1
v_lshrrev_b32 v{T+1}, 4, v1
v_and_b32 v{T+2}, 1, v1
v_mul_u32_u24 v{VA0}, {KC1}, v{T+2}
v_lshrrev_b32 v{T+3}, 1, v{T}
v_lshlrev_b32 v{T+3}, 6, v{T+3}
v_add_u32 v{VA0}, v{VA0}, v{T+3}
v_lshlrev_b32 v{T+3}, 4, v{T+1}
v_add_u32 v{VA0}, v{VA0}, v{T+3}
v_mul_u32_u24 v{VB0}, {UC1}, v{T+2}
v_add_u32 v{VB0}, v{VB0}, v{T+3}
v_add_u32 v{T+3}, v{T}, v{T+2}
v_lshlrev_b32 v{T+3}, 2, v{T+3}
v_sub_u32 v{VB0}, v{VB0}, v{T+3}
v_add_u32 v{VB0}, {U0+2*(1824-1792)}, v{VB0}
v_lshlrev_b32 v{VF}, 4, v1
v_add_u32 v{VF}, {YB}, v{VF}
s_lshl_b32 s54, s63, 1
s_mul_i32 s55, s54, s{S_WAVE}
s_add_u32 s56, s55, s54""")
    for i in range(32): a(f"v_mov_b32 v{ACC+i}, 0")
    def addr(su):
        return f"""s_lshr_b32 s57, s{su}, 3
s_and_b32 s58, s{su}, 7
s_lshl_b32 s58, s58, 6
s_mul_i32 s59, s57, {REG}
s_mul_i32 s60, s57, {UCH}
s_add_u32 s59, s59, s58
s_add_u32 s60, s60, s58
v_add_u32 v{VAu}, s59, v{VA0}
v_add_u32 v{VBu}, s60, v{VB0}"""
    def reads(b):
        L=[]
        for k in range(8):
            L.append(f"ds_read_b128 v[{F[b]+4*k}:{F[b]+4*k+3}], v{VAu} offset:{512*k}")
            L.append(f"ds_read_b64 v[{F[b]+32+4*k}:{F[b]+32+4*k+1}], v{VBu} offset:{512*(7-k)}")
            L.append(f"ds_read_b64 v[{F[b]+32+4*k+2}:{F[b]+32+4*k+3}], v{VBu} offset:{512*(7-k)+8}")
        return L
    def mfmas(b):
        prs=[(i,c-i) for c in range(8) for i in range(c+1)]
        prs.sort(key=lambda p:(p[0], p[1]))
        return [f"v_mfma_f32_16x16x32_bf16 v[{ACC+4*(i+c)}:{ACC+4*(i+c)+3}], v[{F[b]+4*i}:{F[b]+4*i+3}], v[{F[b]+32+4*c}:{F[b]+32+4*c+3}], v[{ACC+4*(i+c)}:{ACC+4*(i+c)+3}]" for i,c in prs]
    a("s_waitcnt lgkmcnt(0)")
    stamp(a,5)
    a("s_barrier")
    stamp(a,6)
    a(addr(55))
    for l in reads(0): a(l)
    lloop=a.newlabel("L_cv"); lfl=a.newlabel("L_fl"); lend=a.newlabel("L_cve"); lnofl=a.newlabel("L_nofl")
    a(f"{lloop}:")
    for b in range(2):
        a("s_add_u32 s55, s55, 1")
        a(addr(55))
        a("s_waitcnt lgkmcnt(0)")
        rd=reads(1-b); mf=mfmas(b)
        while mf:
            a(mf.pop(0))
            if rd: a(rd.pop(0))
            if mf and len(rd)<=12:
                a(mf.pop(0))
    a(f"""s_cmp_eq_u32 s55, s56
s_cbranch_scc1 {lend}
s_and_b32 s58, s55, 7
s_cmp_lg_u32 s58, 0
s_cbranch_scc1 {lloop}
s_lshr_b32 s57, s55, 3
s_sub_u32 s57, s57, 1
s_mul_i32 s57, s57, {REG}
v_add_u32 v{T}, s57, v{VF}""")
    a.nop(6)
    for c in range(8): a(f"ds_write_b128 v{T}, v[{ACC+4*c}:{ACC+4*c+3}] offset:{1024*c}")
    for i in range(32): a(f"v_mov_b32 v{ACC+i}, 0")
    a(f"""s_branch {lloop}
{lend}:
s_setprio 3
s_sub_u32 s57, s56, 1
s_lshr_b32 s57, s57, 3
s_mul_i32 s58, s57, {REG}
v_add_u32 v{T}, s58, v{VF}
s_and_b32 s59, s{S_WAVE}, 1
s_cmp_eq_u32 s{S_WAVE}, 2
s_cselect_b32 s60, 1, 0
s_cmp_eq_u32 s63, 3
s_cselect_b32 s59, s60, s59
s_cmp_eq_u32 s59, 0
s_cbranch_scc1 {lnofl}""")
    a.nop(9)
    for c in range(8): a(f"ds_write_b128 v{T}, v[{ACC+4*c}:{ACC+4*c+3}] offset:{1024*c}")
    a(f"""{lnofl}:
s_waitcnt lgkmcnt(0)""")
    stamp(a,7)
    lx=a.newlabel("L_cvx")
    a(f"""s_barrier
s_cmp_lg_u32 s59, 0
s_cbranch_scc1 {lx}""")
    P=F[0]
    for c in range(8): a(f"ds_read_b128 v[{P+4*c}:{P+4*c+3}], v{T} offset:{1024*c}")
    a(f"""v_lshrrev_b32 v{T+1}, 4, v1
v_lshlrev_b32 v{T+1}, 7, v{T+1}
v_and_b32 v{T+2}, 15, v1
v_lshlrev_b32 v{T+2}, 2, v{T+2}
v_add_u32 v{T+1}, v{T+2}, v{T+1}
s_add_u32 s61, s57, s64
s_mul_i32 s57, s61, {GS}
s_add_u32 s57, s57, {Y_OFF}""")
    for c in range(8):
        a(f"s_waitcnt lgkmcnt({7-c})")
        a(f"v_pk_add_f32 v[{P+4*c}:{P+4*c+1}], v[{P+4*c}:{P+4*c+1}], v[{ACC+4*c}:{ACC+4*c+1}]")
        a(f"v_pk_add_f32 v[{P+4*c+2}:{P+4*c+3}], v[{P+4*c+2}:{P+4*c+3}], v[{ACC+4*c+2}:{ACC+4*c+3}]")
        a(f"v_cvt_pk_bf16_f32 v{ACC+4*c}, v{P+4*c}, v{P+4*c+1}")
        a(f"v_cvt_pk_bf16_f32 v{ACC+4*c+1}, v{P+4*c+2}, v{P+4*c+3}")
        if c>0:
            a(f"buffer_store_dword v{ACC+4*(c-1)}, v{T+1}, s[{SRD_WS}:{SRD_WS+3}], s57 offen offset:{512*(c-1)} sc0 sc1")
            a(f"buffer_store_dword v{ACC+4*(c-1)+1}, v{T+1}, s[{SRD_WS}:{SRD_WS+3}], s57 offen offset:{512*(c-1)+64} sc0 sc1")
    a(f"buffer_store_dword v{ACC+28}, v{T+1}, s[{SRD_WS}:{SRD_WS+3}], s57 offen offset:{512*7} sc0 sc1")
    a(f"buffer_store_dword v{ACC+29}, v{T+1}, s[{SRD_WS}:{SRD_WS+3}], s57 offen offset:{512*7+64} sc0 sc1")
    lk=a.newlabel("L_cepk")
    a(f"""v_mov_b32 v{T}, 0
s_waitcnt vmcnt(0)
v_readfirstlane_b32 s67, v7
s_cmp_lg_u32 s67, 0
s_cbranch_scc1 {lk}""")
    get_epoch(a,T,7,67)
    a(f"""{lk}:
s_lshl_b32 s61, s61, 7
s_add_u32 s61, s61, {FL_OFF}
v_mov_b32 v7, s67
s_mov_b64 exec, 1
buffer_store_dword v7, v{T}, s[{SRD_WS}:{SRD_WS+3}], s61 offen sc0 sc1
s_mov_b64 exec, -1""")
    a(f"{lx}:")

def wave_sum(a, regs):
    for mod in ("row_shr:1","row_shr:2","row_shr:4","row_shr:8"):
        for r in regs:
            a(f"v_add_f32_dpp v{r}, v{r}, v{r} {mod} row_mask:0xf bank_mask:0xf bound_ctrl:1")
    for r in regs:
        a(f"v_add_f32_dpp v{r}, v{r}, v{r} row_bcast:15 row_mask:0xa bank_mask:0xf")
    for r in regs:
        a(f"v_add_f32_dpp v{r}, v{r}, v{r} row_bcast:31 row_mask:0xc bank_mask:0xf")

def gen_gemm1(a, opt):
    NX=13; WR=5
    XL=WR*12288
    LNS=4*12288
    XG0=2; XG1=3; XW=4; XR=5; WS=6; WRD=9; T=12
    ONES=16; ACC=20; CS=68; FR=80; XS=136; BB=240
    vm=VM(a)
    a("s_and_b32 s53, s2, 255\ns_and_b32 s54, s53, 7\ns_lshr_b32 s55, s53, 3")
    if opt.get("map1","loc")=="loc":
        a("s_lshl_b32 s56, s54, 1\ns_lshr_b32 s57, s55, 4\ns_add_u32 s56, s56, s57\ns_and_b32 s57, s55, 15")
    else:
        a("""s_and_b32 s56, s54, 3
s_lshl_b32 s56, s56, 2
s_lshr_b32 s57, s55, 3
s_add_u32 s56, s56, s57
s_lshr_b32 s57, s54, 2
s_lshl_b32 s57, s57, 3
s_and_b32 s58, s55, 7
s_add_u32 s57, s57, s58""")
    a(f"""s_and_b32 s58, s{S_WAVE}, 1
s_lshr_b32 s59, s{S_WAVE}, 1
s_lshl_b32 s60, s56, 7
s_lshl_b32 s61, s{S_WAVE}, 5
s_add_u32 s60, s60, s61
v_lshrrev_b32 v{T}, 2, v1
v_add_u32 v{T+1}, s60, v{T}
v_mul_u32_u24 v{XG0}, 1280, v{T+1}
v_and_b32 v{T+2}, 3, v1
v_lshlrev_b32 v{T+3}, 4, v{T+2}
v_add_u32 v{XG0}, v{XG0}, v{T+3}
v_add_u32 v{XG1}, 20480, v{XG0}""")
    ROT=opt.get("rot","2")
    if ROT!="0":
        if opt.get("map1","loc")=="loc":
            a("s_and_b32 s70, s56, 1\ns_mul_i32 s70, s70, 5\ns_add_u32 s70, s70, s57")
        else:
            a("s_and_b32 s70, s56, 3\ns_mul_i32 s70, s70, 3\ns_and_b32 s71, s57, 7\ns_add_u32 s70, s70, s71")
        if ROT=="2": a("s_add_u32 s70, s70, s54")
        a("""s_mul_i32 s71, s70, 6554
s_lshr_b32 s71, s71, 16
s_mul_i32 s71, s71, 10
s_sub_u32 s70, s70, s71
s_lshl_b32 s70, s70, 7""")
        for S in range(10):
            a(f"""s_add_u32 s71, s70, {128*S}
s_sub_u32 s72, s71, 1280
s_cmp_ge_u32 s71, 1280
s_cselect_b32 s{80+S}, s72, s71""")
    items=[]
    for S in range(10):
        for s_ in (2*S,2*S+1):
            items+= [("x",s_,0),("x",s_,1)]
        items+= [("w",S,0),("w",S,1),("w",S,2)]
    st={"wr":-1,"bar":-2}
    def can(it):
        k,n,_=it
        if k=="x": return n-NX<=st["wr"]
        if n<5: return True
        return st["bar"]>=2*(n-WR)+1
    def pump(n=1):
        c=0
        while c<n:
            idx=next((i for i,it in enumerate(items) if can(it)),None)
            if idx is None: return
            k,m,h=items.pop(idx)
            if k=="x":
                r=XS+8*(m%NX)+4*h
                if ROT!="0": a(f"buffer_load_dwordx4 v[{r}:{r+3}], v{XG0+h}, s[{SRD_X}:{SRD_X+3}], s{80+m//2} offen offset:{64*(m&1)}")
                else: a(f"buffer_load_dwordx4 v[{r}:{r+3}], v{XG0+h}, s[{SRD_X}:{SRD_X+3}], 0 offen offset:{64*m}")
            else:
                if ROT!="0": a(f"s_mul_i32 s65, s{80+m}, 1536")
                else: a(f"s_mov_b32 s65, {m*64*3072}")
                a(f"s_add_u32 m0, s64, {(m%WR)*12288+1024*h}")
                a(f"buffer_load_dwordx4 v{WS+h}, s[{SRD_W}:{SRD_W+3}], s65 offen lds")
            vm.issue((k,m)); c+=1
    def spaced(lines, every):
        for i,l in enumerate(lines):
            a(l)
            if every and i%every==every-1: pump(1)
    pump(4)
    a(f"s_mul_i32 s62, s57, 192\ns_mul_i32 s63, s{S_WAVE}, {16*3072}\ns_add_u32 s62, s62, s63\ns_mul_i32 s64, s{S_WAVE}, 3072")
    for i in range(3):
        a(f"""v_add_u32 v{T}, {64*i}, v1
v_mul_u32_u24 v{T+1}, 5462, v{T}
v_lshrrev_b32 v{T+1}, 16, v{T+1}
v_mul_u32_u24 v{T+2}, 12, v{T+1}
v_sub_u32 v{T+2}, v{T}, v{T+2}
v_lshrrev_b32 v{T+3}, 3, v{T+1}
v_lshlrev_b32 v{T+3}, 1, v{T+3}
v_xor_b32 v{T+2}, v{T+2}, v{T+3}
v_lshlrev_b32 v{T+2}, 4, v{T+2}
v_mul_u32_u24 v{T+1}, 3072, v{T+1}
v_add_u32 v{T+1}, v{T+1}, v{T+2}
v_add_u32 v{WS+i}, s62, v{T+1}""")
        pump(1)
    a(f"v_mov_b32 v{BB+6}, 0")
    setup=f"""v_lshrrev_b32 v{T}, 2, v1
v_add_u32 v{T}, s61, v{T}
v_lshlrev_b32 v{T}, 6, v{T}
v_lshrrev_b32 v{T+1}, 5, v1
v_mul_u32_u24 v{T+1}, 3, v{T+1}
v_and_b32 v{T+2}, 3, v1
v_xor_b32 v{T+1}, v{T+1}, v{T+2}
v_lshlrev_b32 v{T+1}, 4, v{T+1}
v_add_u32 v{XW}, v{T}, v{T+1}
v_add_u32 v{XW}, {XL}, v{XW}
v_and_b32 v{T}, 15, v1
v_lshrrev_b32 v{T+1}, 4, v1
v_lshrrev_b32 v{T+2}, 3, v{T}
v_mul_u32_u24 v{T+2}, 3, v{T+2}
v_xor_b32 v{T+2}, v{T+2}, v{T+1}
v_lshlrev_b32 v{T+2}, 4, v{T+2}
v_lshlrev_b32 v{T+3}, 6, v{T}
v_add_u32 v{XR}, v{T+2}, v{T+3}
s_lshl_b32 s66, s59, 12
s_add_u32 s66, s66, {XL}
v_add_u32 v{XR}, s66, v{XR}
s_lshl_b32 s67, s58, 2
s_add_u32 s68, s67, 1
s_add_u32 s69, s58, 2
v_lshlrev_b32 v{T+2}, 3, v{T+1}
v_lshrrev_b32 v{T+3}, 2, v{T}
v_add_u32 v{T+2}, v{T+2}, v{T+3}
v_mul_u32_u24 v{T+2}, 192, v{T+2}
v_and_b32 v{T+3}, 3, v{T}
v_lshlrev_b32 v{T+3}, 3, v{T+3}
v_add_u32 v{T+2}, v{T+2}, v{T+3}
v_and_b32 v{T+3}, 1, v{T+1}""".split("\n")
    for ft in range(3):
        setup+=[f"v_xor_b32 v{WRD+ft}, s{67+ft}, v{T+3}", f"v_lshlrev_b32 v{WRD+ft}, 5, v{WRD+ft}", f"v_add_u32 v{WRD+ft}, v{WRD+ft}, v{T+2}"]
    setup+=[f"v_mov_b32 v{ONES+i}, 0x3f803f80" for i in range(4)]+[f"v_mov_b32 v{ACC+i}, 0" for i in range(60)]
    spaced(setup, int(opt.get("e1",16)))
    def wrx(s,h):
        assert not any(it[0]=="x" and it[1]==s for it in items), ("x not issued",s)
        if h==0: vm.wait_for(("x",s))
        r=XS+8*(s%NX)+4*h
        a(f"ds_write_b128 v{XW}, v[{r}:{r+3}] offset:{(s&1)*8192+1024*h}")
        if h==1: st["wr"]=s
    wrx(0,0); wrx(0,1); wrx(1,0); wrx(1,1)
    vm.wait_for(("w",0))
    a("s_waitcnt lgkmcnt(0)\ns_barrier")
    st["bar"]=-1
    stamp(a,1)
    def frag_reads(s):
        fb=FR+28*(s&1); S=s//2; hs=s&1
        out=[]
        wo=(S%WR)*12288+hs*6144
        order=[("a",0),("b",0),("b",1),("a",1),("b",2),("b",3),("a",2)]
        for kind,i in order:
            if kind=="a":
                out.append(f"ds_read_b64_tr_b16 v[{fb+4*i}:{fb+4*i+1}], v{WRD+i} offset:{wo}")
                out.append(f"ds_read_b64_tr_b16 v[{fb+4*i+2}:{fb+4*i+3}], v{WRD+i} offset:{wo+768}")
            else:
                out.append(f"ds_read_b128 v[{fb+12+4*i}:{fb+12+4*i+3}], v{XR} offset:{(s&1)*8192+1024*i}")
        return out
    def mfmas(s):
        fb=FR+28*(s&1); out=[]
        for ft in range(3):
            for tt in range(4):
                c=ACC+(ft*4+tt)*4
                out.append(f"v_mfma_f32_16x16x32_bf16 v[{c}:{c+3}], v[{fb+4*ft}:{fb+4*ft+3}], v[{fb+12+4*tt}:{fb+12+4*tt+3}], v[{c}:{c+3}]")
            c=CS+4*ft
            out.append(f"v_mfma_f32_16x16x32_bf16 v[{c}:{c+3}], v[{fb+4*ft}:{fb+4*ft+3}], v[{ONES}:{ONES+3}], v[{c}:{c+3}]")
        return out
    for l in frag_reads(0): a(l)
    pump(2)
    PUB=int(opt.get("pub",0))
    Q=int(opt.get("q",7))
    def mt(i,s):
        if PROF and s==PS and ROT=="0": a(f"s_memtime s[{78+2*i}:{79+2*i}]")
    PS=int(opt.get("ps",15))
    for s in range(20):
        assert not any(it[0]=="w" and it[1]==(s+1)//2 for it in items), ("w not issued",s)
        if s+1<20: vm.wait_for(("w",(s+1)//2))
        mt(3,s-1)
        a("s_waitcnt lgkmcnt(0)")
        mt(4,s-1)
        a("s_barrier")
        st["bar"]=s
        mt(5,s-1)
        mt(0,s)
        if s==10: stamp(a,2)
        mf=mfmas(s)
        rd=frag_reads(s+1) if s+1<20 else []
        while rd:
            a(mf.pop(0))
            a(rd.pop(0)); a(rd.pop(0))
        mt(1,s)
        q=Q
        while len(mf)>3:
            a(mf.pop(0))
            if q>0: pump(1); q-=1
        if s==12:
            a(f"buffer_load_dword v{BB+7}, v{BB+6}, s[{SRD_DBG}:{SRD_DBG+3}], 0 offen sc0 sc1"); vm.issue("ep")
        if s==16:
            a(f"""v_lshrrev_b32 v{T}, 4, v1
v_lshlrev_b32 v{T}, 3, v{T}
s_mul_i32 s70, s57, 192""")
            for ft in range(3):
                a(f"s_lshl_b32 s71, s{67+ft}, 5\ns_add_u32 s71, s71, s70\nv_add_u32 v{T+1}, s71, v{T}")
                a(f"global_load_dwordx2 v[{BB+2*ft}:{BB+2*ft+1}], v{T+1}, s[{S_B1}:{S_B1+1}]")
                vm.issue(("b",ft))
        a(mf.pop(0))
        if s+2<20: wrx(s+2,0)
        a(mf.pop(0))
        if s+2<20: wrx(s+2,1)
        a(mf.pop(0))
        mt(2,s)
    assert not items
    if PROF and ROT=="0":
        a("s_waitcnt lgkmcnt(0)")
        for i in range(1,6):
            a(f"s_sub_u32 s{78+2*i}, s{78+2*i}, s78\nv_writelane_b32 v255, s{78+2*i}, {8+i}")
    stamp(a,3)
    lp=a.newlabel("L_gp"); ld=a.newlabel("L_gpd"); lk=a.newlabel("L_gpk")
    ST=XS; B1=XS+16; H=XS+28
    vm.wait_for("ep")
    a(f"""v_readfirstlane_b32 s76, v{BB+7}
s_cmp_lg_u32 s76, 0
s_cbranch_scc1 {lk}""")
    get_epoch(a,BB+6,BB+7,76)
    a(f"""{lk}:
v_and_b32 v{T+1}, 15, v1
v_lshlrev_b32 v{T+1}, 4, v{T+1}
s_lshl_b32 s71, s56, 11
s_lshl_b32 s72, s59, 10
s_add_u32 s71, s71, s72
s_add_u32 s71, s71, {ST_OFF}
s_mov_b32 s98, {1 if NOWAIT else 200000}
{lp}:""")
    for tt in range(4):
        a(f"buffer_load_dwordx4 v[{ST+4*tt}:{ST+4*tt+3}], v{T+1}, s[{SRD_WS}:{SRD_WS+3}], s71 offen offset:{256*tt} sc0 sc1")
    a(f"s_waitcnt vmcnt(0)\nv_mov_b32 v{T}, 0")
    for tt in range(4):
        a(f"v_xor_b32 v{T+2}, s76, v{ST+4*tt+1}\nv_xor_b32 v{T+3}, s76, v{ST+4*tt+3}\nv_or3_b32 v{T}, v{T}, v{T+2}, v{T+3}")
    a(f"""v_cmp_ne_u32 vcc, 0, v{T}
s_nop 1
s_cmp_eq_u64 vcc, 0
s_cbranch_scc1 {ld}
s_sleep 2
s_sub_u32 s98, s98, 1
s_cmp_lg_u32 s98, 0
s_cbranch_scc1 {lp}
{ld}:""")
    vm.q=[]
    stamp(a,4)
    for tt in range(4): a(f"v_mov_b32 v{ST+4*tt+1}, v{ST+4*tt+2}")
    for ft in range(3):
        for k in range(2):
            a(f"v_lshlrev_b32 v{B1+4*ft+2*k}, 16, v{BB+2*ft+k}")
            a(f"v_and_b32 v{B1+4*ft+2*k+1}, 0xffff0000, v{BB+2*ft+k}")
    a(f"""s_lshl_b32 s70, s56, 1
s_add_u32 s70, s70, s59
s_mul_i32 s70, s70, 48
s_mul_i32 s71, s57, 3
s_add_u32 s70, s70, s71
s_lshl_b32 s71, s58, 1
s_add_u32 s71, s71, s70
s_lshl_b32 s71, s71, 12
s_add_u32 s71, s71, {ACT_OFF}
s_add_u32 s72, s70, 1
s_lshl_b32 s72, s72, 12
s_lshl_b32 s73, s58, 3
s_add_u32 s72, s72, s73
s_add_u32 s72, s72, {ACT_OFF}
v_lshlrev_b32 v{T}, 4, v1
s_mov_b32 s74, 0x{LOG2E:08x}
s_mov_b32 s75, 0x{LOG2E:08x}
s_mov_b32 s78, 0x{f2u(28.0):08x}""")
    OUT=H+40
    EV=int(opt.get('ev',1))
    for tt in range(4):
        r_=ST+4*tt
        o=OUT+8*(tt&1)
        items=[(ft,k) for ft in range(3) for k in range(2)]
        def R(n):
            h=H+6*n; return h,h+2,h+4
        stages=[
          lambda n,ft,k,h,e,d,c: ([f"v_pk_fma_f32 v[{h}:{h+1}], v[{CS+4*ft+2*k}:{CS+4*ft+2*k+1}], v[{r_}:{r_+1}], v[{B1+4*ft+2*k}:{B1+4*ft+2*k+1}] op_sel:[0,1,0] op_sel_hi:[1,1,1]"] if EV==0 else
                                  [f"v_pk_fma_f32 v[{h}:{h+1}], v[{CS+4*ft+2*k}:{CS+4*ft+2*k+1}], v[{r_+2}:{r_+3}], v[{B1+4*ft+2*k}:{B1+4*ft+2*k+1}] op_sel:[0,0,0] op_sel_hi:[1,0,1]"] if EV==1 else
                                  [f"v_fma_f32 v{h}, v{CS+4*ft+2*k}, v{r_+2}, v{B1+4*ft+2*k}", f"v_fma_f32 v{h+1}, v{CS+4*ft+2*k+1}, v{r_+2}, v{B1+4*ft+2*k+1}"]),
          lambda n,ft,k,h,e,d,c: [f"v_pk_fma_f32 v[{h}:{h+1}], v[{c}:{c+1}], v[{r_}:{r_+1}], v[{h}:{h+1}] op_sel:[0,0,0] op_sel_hi:[1,0,1]"],
          lambda n,ft,k,h,e,d,c: [f"v_pk_mul_f32 v[{e}:{e+1}], v[{h}:{h+1}], s[74:75]"],
          lambda n,ft,k,h,e,d,c: [f"v_min_f32 v{e}, s78, v{e}", f"v_min_f32 v{e+1}, s78, v{e+1}"],
          lambda n,ft,k,h,e,d,c: [f"v_exp_f32 v{e}, v{e}", f"v_exp_f32 v{e+1}, v{e+1}"],
          lambda n,ft,k,h,e,d,c: [f"v_pk_add_f32 v[{d}:{d+1}], v[{e}:{e+1}], 2.0 op_sel_hi:[1,0]"],
          lambda n,ft,k,h,e,d,c: [f"v_pk_fma_f32 v[{d}:{d+1}], v[{e}:{e+1}], v[{d}:{d+1}], 2.0 op_sel_hi:[1,1,0]"],
          lambda n,ft,k,h,e,d,c: [f"v_rcp_f32 v{d}, v{d}", f"v_rcp_f32 v{d+1}, v{d+1}"],
          lambda n,ft,k,h,e,d,c: [f"v_pk_mul_f32 v[{d}:{d+1}], v[{d}:{d+1}], v[{h}:{h+1}]"],
          lambda n,ft,k,h,e,d,c: [f"v_pk_fma_f32 v[{h}:{h+1}], v[{d}:{d+1}], -2.0, v[{h}:{h+1}] op_sel_hi:[1,0,1]"],
          lambda n,ft,k,h,e,d,c: [f"v_cvt_pk_bf16_f32 v{o+2*ft+k}, v{h}, v{h+1}"],
        ]
        for st in stages:
            for n,(ft,k) in enumerate(items):
                h,e,d=R(n); c=ACC+(ft*4+tt)*4+2*k
                for l in st(n,ft,k,h,e,d,c): a(l)
        a(f"buffer_store_dwordx4 v[{o}:{o+3}], v{T}, s[{SRD_WS}:{SRD_WS+3}], s71 offen offset:{1024*tt}")
        a(f"buffer_store_dwordx2 v[{o+4}:{o+5}], v{T}, s[{SRD_WS}:{SRD_WS+3}], s72 offen offset:{1024*tt}")

def gen_kernelA(opt):
    a=Asm()
    a(f"""s_cmp_ge_u32 s2, 512
s_cbranch_scc1 L_A_end
s_load_dwordx16 s[4:19], s[0:1], 0
s_load_dwordx16 s[20:35], s[0:1], 64
v_and_b32 v1, 63, v0
v_lshrrev_b32 v2, 6, v0
v_readfirstlane_b32 s{S_WAVE}, v2
s_waitcnt lgkmcnt(0)""")
    srd(a,SRD_WS,S_WS,WS_END); srd(a,SRD_X,S_X,2048*1280); srd(a,SRD_DBG,S_DBG,256)
    if PROF: a("v_mov_b32 v255, 0")
    stamp(a,0); stampc(a,14)
    SW=opt.get("swap","0")=="1"
    a(("s_cmp_lt_u32 s2, 256" if SW else "s_cmp_ge_u32 s2, 256")+"\ns_cbranch_scc1 L_A_gemm")
    if opt.get("only")=="gemm1": a("s_endpgm")
    PR=int(opt.get("prio",0))
    if PR: a(f"s_setprio {PR}")
    srd(a,SRD_W,S_W2,1536*1280)
    a(f"""s_and_b32 s53, s2, 255
s_and_b32 s54, s53, 7
s_mul_i32 s54, s54, 80
s_lshr_b32 s55, s53, 3
s_mul_i32 s56, s55, 3
s_lshl_b32 s57, s55, 1
s_add_u32 s57, s57, 16
s_cmp_lt_u32 s55, 16
s_cselect_b32 s63, 3, 2
s_cselect_b32 s56, s56, s57
s_add_u32 s64, s54, s56
s_cmp_eq_u32 s{S_WAVE}, 3
s_cbranch_scc1 L_A_aux
s_cmp_ge_u32 s{S_WAVE}, s63
s_cbranch_scc1 L_A_w2f
s_add_u32 s54, s64, s{S_WAVE}
s_mul_i32 s55, s{S_WAVE}, {REG}""")
    SK=opt.get("skip","").split(",")
    global SKIP; SKIP=SK
    if "kgen" not in SK: gen_kgen(a)
    stampc(a,3)
    a("s_branch L_A_pend\nL_A_w2f:")
    if "w2f" not in SK: gen_w2f(a)
    a("s_branch L_A_pend\nL_A_aux:")
    if "aux" not in SK: gen_aux(a)
    a("L_A_pend:")
    stamp(a,8); stamp_flush(a)
    a("s_endpgm\nL_A_gemm:")
    if int(opt.get("gprio",1)): a(f"s_setprio {int(opt.get('gprio',1))}")
    if opt.get("only")=="conv": a("s_endpgm")
    srd(a,SRD_W,S_W1,640*3072)
    gen_gemm1(a,opt)
    stamp(a,8); stamp_flush(a)
    a("L_A_end:\ns_endpgm")
    return a.text()

def gen_kernelB(opt):
    a=Asm('b'); vm=VM(a)
    NS=4; PRE=3
    T=2; VL=6; VL2=7; XA=8; ID=10
    VM4=16
    WA=[None,20,21,22]; RA=23; YA=24; FA_=25; VZ=26; EP=27
    ACC=28
    SB=108
    a(f"""s_cmp_ge_u32 s2, 512
s_cbranch_scc1 L_B_end
s_load_dwordx2 s[4:5], s[0:1], 0
s_load_dwordx4 s[28:31], s[0:1], 104
s_load_dwordx2 s[8:9], s[0:1], 120
v_and_b32 v1, 63, v0
v_lshrrev_b32 v2, 6, v0
v_readfirstlane_b32 s{S_WAVE}, v2
s_and_b32 s53, s2, 255
s_and_b32 s54, s53, 7
s_lshr_b32 s55, s53, 3
s_waitcnt lgkmcnt(0)""")
    srd(a,SRD_WS,8,WS_END); srd(a,SRD_DBG,30,256)
    if PROF: a("v_mov_b32 v255, 0")
    stamp(a,0); stampc(a,14)
    a(f"""s_cmp_ge_u32 s2, 256
s_cbranch_scc1 L_B_gemm
s_mul_i32 s54, s54, 80
s_mul_i32 s56, s55, 3
s_lshl_b32 s57, s55, 1
s_add_u32 s57, s57, 16
s_cmp_lt_u32 s55, 16
s_cselect_b32 s63, 3, 2
s_cselect_b32 s56, s56, s57
s_add_u32 s64, s54, s56""")
    if int(opt.get("cprio",1)): a(f"s_setprio {int(opt.get('cprio',1))}")
    gen_stage(a)
    a(f"s_setprio {int(opt.get('cprio2',0))}")
    gen_conv(a)
    stamp(a,8); stamp_flush(a,1)
    a("s_endpgm\nL_B_gemm:")
    if int(opt.get("g2prio",0)): a(f"s_setprio {int(opt.get('g2prio',0))}")
    srd(a,SRD_X,4,2048*1280); srd(a,SRD_W,28,2048*1280)
    a(f"""s_lshl_b32 s56, s54, 2
s_lshr_b32 s57, s55, 3
s_add_u32 s56, s56, s57         ; tb
s_and_b32 s57, s55, 7           ; db
v_lshlrev_b32 v{VL}, 4, v1
v_add_u32 v{VL2}, 4096, v{VL}
s_mul_i32 s58, s{S_WAVE}, 12
s_mul_i32 s59, s56, 48
s_add_u32 s59, s59, s58
s_lshl_b32 s59, s59, 12
s_add_u32 s59, s59, {ACT_OFF}
s_mul_i32 s60, s57, 48
s_add_u32 s60, s60, s58
s_mul_i32 s60, s60, 5120
s_add_u32 s60, s60, {W2F_OFF}""")
    for k in range(4):
        a(f"""s_add_u32 s61, s{S_WAVE}, {k}
s_and_b32 s61, s61, 3
s_lshl_b32 s{66+k}, s61, 10
v_add_u32 v{VM4+k}, s{66+k}, v{VL}""")
    RB=opt.get("rotb","0")!="0"
    if RB:
        a("""s_and_b32 s70, s56, 3
s_mul_i32 s70, s70, 3
s_add_u32 s70, s70, s57
s_sub_u32 s71, s70, 12
s_cmp_ge_u32 s70, 12
s_cselect_b32 s70, s71, s70""")
        for j in range(12):
            a(f"""s_add_u32 s71, s70, {j}
s_sub_u32 s72, s71, 12
s_cmp_ge_u32 s71, 12
s_cselect_b32 s{86+j}, s72, s71""")
    def ldl(j):
        b=SB+36*(j%NS); L=[]
        seq=[("w",0),("a",0),("a",1),("w",1),("a",2),("a",3),("w",2),("w",3),("w",4)]
        for i,(kind,n) in enumerate(seq):
            pre = f"s_add_u32 s61, s60, {5120*j}\ns_add_u32 s62, s59, {4096*j}\n" if i==0 else ""
            if RB and i==0: pre = f"s_mul_i32 s61, s{86+j}, 5120\ns_add_u32 s61, s61, s60\ns_lshl_b32 s62, s{86+j}, 12\ns_add_u32 s62, s62, s59\n"
            if kind=="w":
                if n<4: L.append(pre+f"buffer_load_dwordx4 v[{b+4*n}:{b+4*n+3}], v{VL}, s[{SRD_WS}:{SRD_WS+3}], s61 offen offset:{1024*n}")
                else:   L.append(pre+f"buffer_load_dwordx4 v[{b+16}:{b+19}], v{VL2}, s[{SRD_WS}:{SRD_WS+3}], s61 offen")
            else:
                L.append(pre+f"buffer_load_dwordx4 v[{b+20+4*n}:{b+23+4*n}], v{VM4+n}, s[{SRD_WS}:{SRD_WS+3}], s62 offen")
        return [(l,("s",j)) for l in L]
    def ld(j):
        for l,t in ldl(j):
            a(l); vm.issue(t)
    ld(0)
    for i in range(40): a(f"v_mov_b32 v{ACC+i}, 0")
    ld(1)
    for i in range(40,80): a(f"v_mov_b32 v{ACC+i}, 0")
    a(f"""v_and_b32 v{T}, 15, v1
v_lshrrev_b32 v{T+1}, 4, v1
v_lshrrev_b32 v{T+2}, 2, v{T}
v_mul_u32_u24 v{T+2}, 20, v{T+2}
v_and_b32 v{T+3}, 3, v{T}
v_add_u32 v{T+2}, v{T+2}, v{T+3}
v_mul_u32_u24 v{T+2}, {GS}, v{T+2}
v_lshlrev_b32 v{T+3}, 4, v{T+1}
v_add_u32 v{YA}, v{T+2}, v{T+3}
s_mul_i32 s63, s57, {80*GS}
s_lshl_b32 s64, s56, 7
s_add_u32 s63, s63, s64
s_lshr_b32 s64, s{S_WAVE}, 1
s_lshl_b32 s64, s64, 6
s_add_u32 s63, s63, s64
s_add_u32 s63, s63, {Y_OFF}
v_mul_u32_u24 v{XA}, 1280, v{T}
v_mul_u32_u24 v{T+3}, 40, v{T+1}
v_add_u32 v{XA}, v{XA}, v{T+3}
s_lshl_b32 s64, s56, 2
s_add_u32 s64, s64, s{S_WAVE}
s_mul_i32 s64, s64, {16*1280}
s_mul_i32 s65, s57, 160
s_add_u32 s64, s64, s65
s_and_b32 s65, s{S_WAVE}, 1
s_lshl_b32 s65, s65, 4
v_add_u32 v{ID+4}, s65, v{T}
v_lshlrev_b32 v{T+3}, 3, v{T+1}
v_sub_u32 v{T+3}, v{ID+4}, v{T+3}
v_mov_b32 v{ID+4}, 0x3f80
v_mov_b32 v{ID+5}, 0x3f800000""")
    ld(2)
    for k in range(4):
        a(f"""v_cmp_eq_u32 vcc, {2*k}, v{T+3}
v_cndmask_b32 v{ID+k}, 0, v{ID+4}, vcc
v_cmp_eq_u32 vcc, {2*k+1}, v{T+3}
v_cndmask_b32 v{ID+k}, v{ID+k}, v{ID+5}, vcc""")
    for k in range(1,4):
        a(f"""s_mul_i32 s70, s{66+k}, 15
s_add_u32 s70, s70, {(k-1)*5120}
v_add_u32 v{WA[k]}, s70, v{VL}""")
    a(f"""s_mul_i32 s70, s66, 15
v_add_u32 v{RA}, s70, v{VL}
v_mov_b32 v{VZ}, 0
v_min_u32 v{FA_}, 15, v1
v_lshlrev_b32 v{FA_}, 7, v{FA_}
v_lshlrev_b32 v{T}, 7, v1
s_mul_i32 s71, s57, {80*128}
s_add_u32 s71, s71, {FL_OFF}
s_add_u32 s72, s71, 8192""")
    XV=SB+0
    xl=[(f"buffer_load_dwordx4 v[{XV}:{XV+3}], v{XA}, s[{SRD_X}:{SRD_X+3}], s64 offen","x"),
        (f"buffer_load_dwordx4 v[{XV+4}:{XV+7}], v{XA}, s[{SRD_X}:{SRD_X+3}], s64 offen offset:16","x"),
        (f"buffer_load_dwordx2 v[{XV+8}:{XV+9}], v{XA}, s[{SRD_X}:{SRD_X+3}], s64 offen offset:32","x"),
        (f"buffer_load_dword v{EP}, v{VZ}, s[{SRD_DBG}:{SRD_DBG+3}], 0 offen sc0 sc1","ep")]
    for j in range(12):
        vm.wait_for(("s",j))
        if j==0: stamp(a,1)
        if PROF and j%2==0: a(f"s_memtime s[{74+j}:{75+j}]")
        b=SB+36*(j%NS)
        order=[(dt,k) for dt in range(5) for k in range(4)]
        if j==11: order=[(dt,k) for k in (1,2,3,0) for dt in range(5)]
        lq = ldl(j+PRE) if j+PRE<12 else (xl if j==9 else [])
        for n,(dt,k) in enumerate(order):
            c=ACC+(dt*4+k)*4
            a(f"v_mfma_f32_16x16x32_bf16 v[{c}:{c+3}], v[{b+4*dt}:{b+4*dt+3}], v[{b+20+4*k}:{b+23+4*k}], v[{c}:{c+3}]")
            if n%2==1 and lq:
                l,t=lq.pop(0); a(l); vm.issue(t)
        assert not lq
    stamp(a,2)
    if PROF:
        for j in range(2,12,2):
            a(f"s_sub_u32 s{74+j}, s{74+j}, s74\nv_writelane_b32 v255, s{74+j}, {8+j//2}")
    XF=SB+12
    YF=SB+36
    FLG=SB+56
    RD=SB+72
    lk=a.newlabel("L_bepk")
    a(f"""s_waitcnt vmcnt(0)
v_readfirstlane_b32 s67, v{EP}
s_cmp_lg_u32 s67, 0
s_cbranch_scc1 {lk}""")
    get_epoch(a,VZ,EP,67)
    a(f"""{lk}:
buffer_load_dword v{FLG}, v{T}, s[{SRD_WS}:{SRD_WS+3}], s71 offen sc0 sc1
buffer_load_dword v{FLG+1}, v{FA_}, s[{SRD_WS}:{SRD_WS+3}], s72 offen sc0 sc1""")
    for k in range(1,4):
        for dt in range(5):
            c=ACC+(dt*4+k)*4
            a(f"ds_write_b128 v{WA[k]}, v[{c}:{c+3}] offset:{dt*1024}")
    for k in range(10):
        a(f"v_lshlrev_b32 v{XF+2*k}, 16, v{XV+k}")
        a(f"v_and_b32 v{XF+2*k+1}, 0xffff0000, v{XV+k}")
    lp=a.newlabel("L_bp"); ldn=a.newlabel("L_bpd")
    a(f"""s_mov_b32 s98, {1 if NOWAIT else 200000}
s_waitcnt lgkmcnt(0)
s_barrier""")
    for p in range(3):
        for dt in range(5):
            r=RD+20*p+4*dt
            a(f"ds_read_b128 v[{r}:{r+3}], v{RA} offset:{p*5120+dt*1024}")
    a(f"""{lp}:
s_waitcnt vmcnt(0)
v_xor_b32 v{FLG}, s67, v{FLG}
v_xor_b32 v{FLG+1}, s67, v{FLG+1}
v_or_b32 v{FLG}, v{FLG}, v{FLG+1}
v_cmp_ne_u32 vcc, 0, v{FLG}
s_nop 1
s_cmp_eq_u64 vcc, 0
s_cbranch_scc1 {ldn}
s_sub_u32 s98, s98, 1
s_cmp_eq_u32 s98, 0
s_cbranch_scc1 {ldn}
s_sleep 2
buffer_load_dword v{FLG}, v{T}, s[{SRD_WS}:{SRD_WS+3}], s71 offen sc0 sc1
buffer_load_dword v{FLG+1}, v{FA_}, s[{SRD_WS}:{SRD_WS+3}], s72 offen sc0 sc1
s_branch {lp}
{ldn}:""")
    stamp(a,4)
    for dt in range(5):
        a(f"buffer_load_dwordx4 v[{YF+4*dt}:{YF+4*dt+3}], v{YA}, s[{SRD_WS}:{SRD_WS+3}], s63 offen sc0 sc1")
        if dt<4: a(f"s_add_u32 s63, s63, {4*GS}")
    for p in range(3):
        a(f"s_waitcnt lgkmcnt({5*(2-p)})")
        for k in range(10):
            a(f"v_pk_add_f32 v[{XF+2*k}:{XF+2*k+1}], v[{XF+2*k}:{XF+2*k+1}], v[{RD+20*p+2*k}:{RD+20*p+2*k+1}]")
    for dt in range(5):
        c=ACC+(dt*4)*4
        a(f"s_waitcnt vmcnt({4-dt})")
        a(f"v_mfma_f32_16x16x32_bf16 v[{c}:{c+3}], v[{YF+4*dt}:{YF+4*dt+3}], v[{ID}:{ID+3}], v[{c}:{c+3}]")
    for dt in range(5):
        c=ACC+(dt*4)*4
        for h in range(2):
            a(f"v_pk_add_f32 v[{XF+4*dt+2*h}:{XF+4*dt+2*h+1}], v[{XF+4*dt+2*h}:{XF+4*dt+2*h+1}], v[{c+2*h}:{c+2*h+1}]")
    for k in range(10):
        a(f"v_cvt_pk_bf16_f32 v{XV+k}, v{XF+2*k}, v{XF+2*k+1}")
    a(f"""buffer_store_dwordx4 v[{XV}:{XV+3}], v{XA}, s[{SRD_W}:{SRD_W+3}], s64 offen
buffer_store_dwordx4 v[{XV+4}:{XV+7}], v{XA}, s[{SRD_W}:{SRD_W+3}], s64 offen offset:16
buffer_store_dwordx2 v[{XV+8}:{XV+9}], v{XA}, s[{SRD_W}:{SRD_W+3}], s64 offen offset:32""")
    stamp(a,3); stamp_flush(a,1)
    a("L_B_end:\ns_endpgm")
    return a.text(), LDS_A

HEADER = open("parallel_sum__ssm_conv_s4__dense_activation_mish__prompt.s.ref").read().split("; Override launch")[0]

def kd(name, vgpr, accum, sgpr=102):
    return f""".amdhsa_kernel {name}
  .amdhsa_next_free_vgpr {vgpr}
  .amdhsa_next_free_sgpr {sgpr}
  .amdhsa_accum_offset {accum}
  .amdhsa_group_segment_fixed_size 0
  .amdhsa_kernarg_size 128
  .amdhsa_user_sgpr_count 2
  .amdhsa_user_sgpr_kernarg_segment_ptr 1
  .amdhsa_system_sgpr_workgroup_id_x 1
.end_amdhsa_kernel
"""

def build(opt):
    A=gen_kernelA(opt); B,ldsB=gen_kernelB(opt)
    s=HEADER
    s+=f"; @launch kernel=stage_a_kernel grid=(512,1,1) block=(256,1,1) lds={LDS_A}\n"
    s+=f"; @launch kernel=stage_b_kernel grid=(512,1,1) block=(256,1,1) lds={ldsB}\n"
    if opt.get("rep2"): s+=f"; @launch kernel=stage_b_kernel grid=(512,1,1) block=(256,1,1) lds={ldsB}\n"
    s+='.amdgcn_target "amdgcn-amd-amdhsa--gfx950"\n.text\n'
    for name,body in (("stage_a_kernel",A),("stage_b_kernel",B)):
        s+=f".globl {name}\n.p2align 8\n.type {name},@function\n{name}:\n{body}"
    s+='.section .rodata,"a"\n.p2align 6\n'+kd("stage_a_kernel",256,256)+".p2align 6\n"+kd("stage_b_kernel",256,256)
    return s

if __name__=="__main__":
    opt={}
    out=sys.argv[1] if len(sys.argv)>1 else "parallel_sum__ssm_conv_s4__dense_activation_mish__prompt.s"
    for kv in sys.argv[2:]:
        k,v=kv.split("="); opt[k]=v
    PROF = opt.get("prof","0")=="1"
    NOWAIT = "only" in opt or "skip" in opt
    open(out,"w").write(build(opt))
    print("wrote",out)
```

```python
import sys, struct
from asmlib import Asm, VM

def f2u(x): return struct.unpack("<I", struct.pack("<f", x))[0]

GS      = 4160
G_OFF   = 0
ST_OFF  = 0x280000
FL_OFF  = 0x290000
Y_OFF   = 0x2B0000
W2F_OFF = 0x540000
ACT_OFF = 0x720000
KI_OFF  = 0xD20000
KIS     = 9216
WS_END  = 0x1500000
TS_OFF  = 0x1400000
TROW = 272
REG  = 17408
KC1  = 4576
YB   = 9120
U0   = 3*REG
UCH  = 8448
UC1  = 4224
LDS_A = 81920
LOG2E = 0x3fb8aa3b; LOG2E_LO = 0x32a5705f; LN2 = 0x3f317218

S_X=4; S_ARE=6; S_AIM=8; S_BRE=10; S_BIM=12; S_CRE=14; S_CIM=16; S_LDT=18
S_DSK=20; S_W1=24; S_B1=26; S_W2=28; S_OUT=30; S_DBG=32; S_WS=34
SRD_WS=36; SRD_X=40; SRD_W=44; SRD_DBG=48
S_WAVE=52
PROF=False
NOWAIT=False
SKIP=[]

def srd(a, dst, ptr, nbytes):
    a(f"""s_mov_b32 s{dst}, s{ptr}
s_and_b32 s{dst+1}, s{ptr+1}, 0xffff
s_mov_b32 s{dst+2}, {nbytes}
s_mov_b32 s{dst+3}, 0x00020000""")

def cmul(dst, z, m, t, conj=False):
    if not conj:
        return [f"v_pk_mul_f32 v[{t}:{t+1}], v[{z}:{z+1}], v[{m}:{m+1}] op_sel:[0,0] op_sel_hi:[0,1]",
                f"v_pk_fma_f32 v[{dst}:{dst+1}], v[{z}:{z+1}], v[{m}:{m+1}], v[{t}:{t+1}] op_sel:[1,1,0] op_sel_hi:[1,0,1] neg_lo:[0,1,0]"]
    return [f"v_pk_mul_f32 v[{t}:{t+1}], v[{z}:{z+1}], v[{m}:{m+1}] op_sel:[0,0] op_sel_hi:[0,1] neg_hi:[0,1]",
            f"v_pk_fma_f32 v[{dst}:{dst+1}], v[{z}:{z+1}], v[{m}:{m+1}], v[{t}:{t+1}] op_sel:[1,1,0] op_sel_hi:[1,0,1]"]

def stamp(a, idx, reg=255):
    if not PROF: return
    a(f"""s_memrealtime s[100:101]
s_waitcnt lgkmcnt(0)
v_writelane_b32 v{reg}, s100, {idx}""")
def stampc(a, idx, reg=255):
    if not PROF: return
    a(f"""s_memtime s[100:101]
s_waitcnt lgkmcnt(0)
v_writelane_b32 v{reg}, s100, {idx}""")
def stamp_flush(a, kern=0, reg=255, tmp=254):
    if not PROF: return
    stampc(a,15,reg)
    a(f"""s_lshl_b32 s100, s2, 2
s_add_u32 s100, s100, s{S_WAVE}
s_lshl_b32 s100, s100, 6
s_add_u32 s100, s100, {TS_OFF+kern*0x40000}
v_lshlrev_b32 v{tmp}, 2, v1
s_mov_b64 exec, 0xffff
buffer_store_dword v{reg}, v{tmp}, s[{SRD_WS}:{SRD_WS+3}], s100 offen
s_mov_b64 exec, -1""")

def get_epoch(a, vz, vt, sdst):
    lp=a.newlabel("L_ep"); ld=a.newlabel("L_epd")
    a(f"""s_mov_b32 s98, {1 if NOWAIT else 200000}
{lp}:
buffer_load_dword v{vt}, v{vz}, s[{SRD_DBG}:{SRD_DBG+3}], 0 offen sc0 sc1
s_waitcnt vmcnt(0)
v_readfirstlane_b32 s{sdst}, v{vt}
s_cmp_lg_u32 s{sdst}, 0
s_cbranch_scc1 {ld}
s_sleep 2
s_sub_u32 s98, s98, 1
s_cmp_lg_u32 s98, 0
s_cbranch_scc1 {lp}
{ld}:""")

def gen_kgen(a):
    RAW=2; P=14
    A2=20; B2=21; DT=22; VT=23
    Z=24; C=26; T=28; T2=30; E1=32; E2=34; E4=36; E8=38; E248=40; X=42; Y=43; S_=44; CO=45
    PKS=[46,47,48,49]; ONE=50
    FA=51; FB=52
    ACC=56
    FR=72
    arrs=[S_ARE,S_AIM,S_BRE,S_BIM,S_CRE,S_CIM]
    a(f"""s_mul_i32 s56, s54, 384
v_lshlrev_b32 v{X}, 2, v1
v_add_u32 v{X}, s56, v{X}
v_lshlrev_b32 v{Y}, 1, v1
v_add_u32 v{Y}, s56, v{Y}
s_lshr_b32 s57, s54, 1
s_lshl_b32 s57, s57, 2
s_load_dword s58, s[{S_LDT}:{S_LDT+1}], s57
s_load_dword s59, s[{S_DSK}:{S_DSK+1}], s57""")
    for i,s in enumerate(arrs):
        a(f"global_load_dword v{RAW+i}, v{X}, s[{s}:{s+1}]")
    for i in range(6): a(f"v_mov_b32 v{RAW+6+i}, 0")
    for i,s in enumerate(arrs):
        a(f"global_load_short_d16_hi v{RAW+6+i}, v{Y}, s[{s}:{s+1}] offset:256")
    a(f"""s_mov_b32 m0, s55
v_and_b32 v{FB}, 31, v1
v_mul_u32_u24 v{FB}, {TROW}, v{FB}
v_lshrrev_b32 v{FA}, 5, v1
v_lshlrev_b32 v{FA}, 4, v{FA}
v_add_u32 v{FB}, v{FB}, v{FA}
v_add_u32 v{FB}, s55, v{FB}
v_add_u32 v{FA}, {32*TROW}, v{FB}""")
    for i in range(16): a(f"v_mov_b32 v{ACC+i}, 0")
    a(f"""s_waitcnt lgkmcnt(0)
s_and_b32 s57, s54, 1
s_lshl_b32 s57, s57, 4
s_lshr_b32 s58, s58, s57
s_lshl_b32 s58, s58, 16
s_lshr_b32 s59, s59, s57
s_lshl_b32 s59, s59, 16
s_mov_b32 s60, 0x{LOG2E:08x}
s_mov_b32 s61, 0x{LOG2E_LO:08x}
s_mov_b32 s62, 0x{LN2:08x}
v_mov_b32 v{X}, s58
v_mul_f32 v{Y}, s60, v{X}
v_fma_f32 v{S_}, v{X}, s60, -v{Y}
v_fma_f32 v{S_}, v{X}, s61, v{S_}
v_exp_f32 v{Y}, v{Y}
v_mul_f32 v{S_}, s62, v{S_}
v_fma_f32 v{Y}, v{Y}, v{S_}, v{Y}
v_cvt_pk_bf16_f32 v{Y}, v{Y}, v{Y}
v_lshlrev_b32 v{DT}, 16, v{Y}
v_mov_b32 v{ONE}, 0x3f80
s_waitcnt vmcnt(6)""")
    stamp(a,1); stampc(a,2)
    DX=[136,137,138]; DY=[139,140,141]; DS=[142,143,144]; DC=[145,146,147]
    def setup(g):
        L=[]
        for i in range(6):
            if g==0: L.append(f"v_lshlrev_b32 v{P+i}, 16, v{RAW+i}")
            elif g==1: L.append(f"v_and_b32 v{P+i}, 0xffff0000, v{RAW+i}")
        src=[(P+i) if g<2 else (RAW+6+i) for i in range(6)]
        ar,ai,br,bi,cr,ci=src
        L+=[f"v_mul_f32 v{A2}, v{ar}, v{DT}", f"v_mul_f32 v{B2}, v{ai}, v{DT}",
            f"v_mul_f32 v{A2}, s60, v{A2}", f"v_mul_f32 v{B2}, 0.15915494, v{B2}"]
        lam=[1,8,248]; dst=[E1,E8,E248]
        for k in (1,2):
            L+=[f"v_mul_f32 v{DY[k]}, 0x{f2u(float(lam[k])):08x}, v{B2}", f"v_mul_f32 v{DX[k]}, 0x{f2u(float(lam[k])):08x}, v{A2}"]
        L+=[f"v_fract_f32 v{DY[0]}, v{B2}", f"v_fract_f32 v{DY[1]}, v{DY[1]}", f"v_fract_f32 v{DY[2]}, v{DY[2]}",
            f"v_exp_f32 v{DX[0]}, v{A2}", f"v_exp_f32 v{DX[1]}, v{DX[1]}", f"v_exp_f32 v{DX[2]}, v{DX[2]}"]
        for k in range(3): L+=[f"v_sin_f32 v{DS[k]}, v{DY[k]}", f"v_cos_f32 v{DC[k]}, v{DY[k]}"]
        L+=[f"v_mul_f32 v{Z}, v{cr}, v{br}", f"v_mul_f32 v{Z+1}, v{cr}, v{bi}",
            f"v_fma_f32 v{Z}, -v{ci}, v{bi}, v{Z}", f"v_fma_f32 v{Z+1}, v{ci}, v{br}, v{Z+1}",
            f"v_mul_f32 v{Z}, v{Z}, v{DT}", f"v_mul_f32 v{Z+1}, -v{Z+1}, v{DT}"]
        for k in range(3): L+=[f"v_mul_f32 v{dst[k]+1}, v{DX[k]}, v{DS[k]}", f"v_mul_f32 v{dst[k]}, v{DX[k]}, v{DC[k]}"]
        L+=cmul(E2,E1,E1,T)+cmul(E4,E2,E2,T)
        return L
    rowseq=[(E1,[1]),(E1,[2]),(E1,[3]),(E1,[4]),(E1,[5]),(E1,[6]),(E1,[7]),(E1,[]),
            (E248,[8]),(E2,[9]),(E2,[10,12]),(E2,[13]),(E2,[14]),
            (E248,[16]),(E4,[17,20]),(E4,[21]),(E248,[18]),(E4,[19,22]),(E4,[23]),
            (E248,[24]),(E8,[28]),(E248,[25]),(E8,[29]),(E248,[26]),(E8,[30]),(E248,[27]),(E8,[31])]
    for l in setup(0): a(l)
    pend=[]
    for g in range(3):
        if g==0: stampc(a,9)
        wq=[]
        pk=0
        def cvt(src, rows):
            nonlocal pk
            r=PKS[pk%4]; pk+=1
            a(f"v_cvt_pk_bf16_f32 v{r}, v{src}, v{src+1}")
            return [f"ds_write_addtid_b32 v{r} offset:{x*TROW}" for x in rows]
        a(f"ds_write_addtid_b32 v{ONE}")
        wq=cvt(Z,[32])+cvt(E8,[1])
        cur=E8
        for j in range(2,32):
            k=j-2
            c1=cmul(C,cur,E8,T); cur=C
            c2=cmul(Z,Z,rowseq[k][0],T2,conj=True) if k<len(rowseq) else []
            a(c1[0])
            if c2: a(c2[0])
            a(c1[1])
            if c2: a(c2[1])
            nq=cvt(C,[j])
            if c2 and rowseq[k][1]: nq+=cvt(Z,[32+r for r in rowseq[k][1]])
            while wq: a(wq.pop(0))
            if pend and j%3==0: a(pend.pop(0))
            wq=nq
        for w in wq: a(w)
        assert not pend
        if g==0: stampc(a,10)
        if g==1: a("s_waitcnt vmcnt(0)")
        a("s_waitcnt lgkmcnt(0)")
        for q in range(8):
            a(f"ds_read_b128 v[{FR+8*q}:{FR+8*q+3}], v{FA} offset:{32*q}")
            a(f"ds_read_b128 v[{FR+8*q+4}:{FR+8*q+7}], v{FB} offset:{32*q}")
        if g<2:
            for l in setup(g+1): a(l)
        a("s_waitcnt lgkmcnt(0)")
        stampc(a,11 if g==0 else (12 if g==1 else 13))
        pend=[f"v_mfma_f32_32x32x16_bf16 v[{ACC}:{ACC+15}], v[{FR+8*q}:{FR+8*q+3}], v[{FR+8*q+4}:{FR+8*q+7}], v[{ACC}:{ACC+15}]" for q in range(8)]
    for m in pend: a(m)
    a(f"""v_lshlrev_b32 v{Y}, 4, v1
s_lshl_b32 s56, s54, 11
s_add_u32 s56, s56, {KI_OFF}
s_mov_b64 exec, 1
v_add_f32 v{ACC}, s59, v{ACC}
s_mov_b64 exec, -1""")
    for i in range(8): a(f"v_cvt_pk_bf16_f32 v{FR+i}, v{ACC+2*i}, v{ACC+2*i+1}")
    a(f"buffer_store_dwordx4 v[{FR}:{FR+3}], v{Y}, s[{SRD_WS}:{SRD_WS+3}], s56 offen sc0 sc1")
    a(f"buffer_store_dwordx4 v[{FR+4}:{FR+7}], v{Y}, s[{SRD_WS}:{SRD_WS+3}], s56 offen offset:1024 sc0 sc1")

def gen_kexpand(a, KP, ACC, Q, X, Y, S_, CO, Z):
    for i in range(4): a(f"v_mov_b32 v{Z+i}, 0")
    a(f"""v_lshlrev_b32 v{S_}, 4, v1
v_add_u32 v{S_}, s65, v{S_}
v_and_b32 v{X}, 31, v1
v_lshlrev_b32 v{X}, 4, v{X}
v_lshrrev_b32 v{Y}, 5, v1
v_lshlrev_b32 v{Y}, 3, v{Y}
v_add_u32 v{X}, v{X}, v{Y}
v_add_u32 v{X}, s65, v{X}
v_cmp_lt_u32 vcc, 31, v1
s_mov_b32 exec_hi, 0
ds_write_b128 v{S_}, v[{Z}:{Z+3}]
ds_write_b128 v{S_}, v[{Z}:{Z+3}] offset:{KC1}
s_mov_b64 exec, -1""")
    for i in range(8):
        a(f"v_lshlrev_b32 v{ACC+2*i}, 16, v{KP+i}")
        a(f"v_and_b32 v{ACC+2*i+1}, 0xffff0000, v{KP+i}")
    ac=lambda i: ACC+i
    a(f"v_cndmask_b32 v{S_}, v{ac(8)}, v{ac(9)}, vcc")
    a(f"v_cndmask_b32 v{CO}, v{ac(10)}, v{ac(11)}, vcc")
    blocks=[(0,[ac(0),ac(1),ac(2),ac(3)]),(256,[ac(4),ac(4),ac(5),ac(6)]),(512,[ac(8),ac(8),S_,ac(9)]),(768,[ac(10),ac(10),CO,ac(11)])]
    for n,(base,e) in enumerate(blocks):
        p=Q+4*n
        a(f"v_cvt_pk_bf16_f32 v{p}, v{e[0]}, v{e[1]}")
        a(f"v_cvt_pk_bf16_f32 v{p+1}, v{e[2]}, v{e[3]}")
        a(f"v_cvt_pk_bf16_f32 v{p+2}, v{e[1]}, v{e[2]}")
    for b in range(4):
        p=Q+16+2*b
        a(f"v_cvt_pk_bf16_f32 v{p}, v{ac(12+b)}, v{ac(12+b)}")
        a(f"v_mov_b32 v{p+1}, v{p}")
    for n,(base,e) in enumerate(blocks):
        p=Q+4*n
        a(f"ds_write_b64 v{X}, v[{p}:{p+1}] offset:{KC1+2*(base+224)}")
        a(f"ds_write_b16 v{X}, v{p} offset:{2*(base+225)}")
        a(f"ds_write_b32 v{X}, v{p+2} offset:{2*(base+226)}")
        a(f"ds_write_b16_d16_hi v{X}, v{p+1} offset:{2*(base+228)}")
    for b in range(4):
        p=Q+16+2*b; base=1024+256*b
        a(f"ds_write_b64 v{X}, v[{p}:{p+1}] offset:{KC1+2*(base+224)}")
        a(f"ds_write_b16 v{X}, v{p} offset:{2*(base+225)}")
        a(f"ds_write_b32 v{X}, v{p} offset:{2*(base+226)}")
        a(f"ds_write_b16 v{X}, v{p} offset:{2*(base+228)}")
    a("s_mov_b64 exec, 0x55555555")
    for b in range(4):
        p=Q+16+2*b
        a(f"ds_write_b16 v{X}, v{p} offset:{KC1+2*(1024+256*b+4+224)}")
        a(f"ds_write_b16 v{X}, v{p} offset:{2*(1024+256*b+4+225)}")
    a("s_mov_b64 exec, -1")

def gen_w2f(a):
    RAW=2; VA=100; VB=101; VC=102
    lx=a.newlabel("L_w2x")
    a(f"""s_mul_i32 s56, s54, 13108
s_lshr_b32 s56, s56, 16
s_mul_i32 s57, s56, 5
s_sub_u32 s57, s54, s57
s_cmp_ge_u32 s57, 3
s_cbranch_scc1 {lx}
s_mul_i32 s56, s56, 3
s_add_u32 s57, s56, s57
s_lshr_b32 s58, s57, 3
s_and_b32 s59, s57, 7
s_mul_i32 s60, s58, {32*1280}
s_mul_i32 s61, s59, 160
s_add_u32 s60, s60, s61
s_mul_i32 s59, s59, 48
s_add_u32 s59, s59, s58
s_mul_i32 s59, s59, 5120
s_add_u32 s68, s59, {W2F_OFF}""")
    for i in range(5):
        a(f"""v_add_u32 v{VA}, {64*i}, v1
v_mul_u32_u24 v{VB}, 6554, v{VA}
v_lshrrev_b32 v{VB}, 16, v{VB}
v_mul_u32_u24 v{VC}, 10, v{VB}
v_sub_u32 v{VC}, v{VA}, v{VC}
v_lshlrev_b32 v{VC}, 4, v{VC}
v_mul_u32_u24 v{VB}, 1280, v{VB}
v_add_u32 v{VB}, v{VB}, v{VC}
s_add_u32 m0, s55, {1024*i}
buffer_load_dwordx4 v{VB}, s[{SRD_W}:{SRD_W+3}], s60 offen lds""")
    a(f"""v_lshrrev_b32 v{VA}, 5, v1
v_lshlrev_b32 v{VA}, 4, v{VA}
v_bfe_u32 v{VB}, v1, 2, 3
v_add_u32 v{VA}, v{VA}, v{VB}
v_mul_u32_u24 v{VA}, 160, v{VA}
v_and_b32 v{VB}, 3, v1
v_mul_u32_u24 v{VB}, 40, v{VB}
v_add_u32 v{VA}, v{VA}, v{VB}
v_add_u32 v{VA}, s55, v{VA}
v_lshlrev_b32 v{VB}, 4, v1
v_add_u32 v{VC}, 4096, v{VB}
s_waitcnt vmcnt(0)""")
    for nt in range(5):
        r=RAW+4*nt
        a(f"ds_read_b64_tr_b16 v[{r}:{r+1}], v{VA} offset:{8*nt}")
        a(f"ds_read_b64_tr_b16 v[{r+2}:{r+3}], v{VA} offset:{8*nt+1280}")
    for nt in range(5):
        r=RAW+4*nt
        a(f"s_waitcnt lgkmcnt({2*(4-nt)})")
        if nt<4: a(f"buffer_store_dwordx4 v[{r}:{r+3}], v{VB}, s[{SRD_WS}:{SRD_WS+3}], s68 offen offset:{1024*nt} sc0 sc1")
        else: a(f"buffer_store_dwordx4 v[{r}:{r+3}], v{VC}, s[{SRD_WS}:{SRD_WS+3}], s68 offen sc0 sc1")
    a(f"{lx}:")

def gen_aux(a):
    RAW=2
    XC=130
    VA=200; VB=201; VC=202; VD=203; VZ=204; VX=205
    a(f"v_mov_b32 v{VZ}, 0")
    le=a.newlabel("L_noep")
    a(f"""s_cmp_lg_u32 s53, 0
s_cbranch_scc1 {le}
s_memrealtime s[56:57]
s_waitcnt lgkmcnt(0)
s_or_b32 s56, s56, 1
v_mov_b32 v{VA}, s56
s_mov_b64 exec, 1
buffer_store_dword v{VA}, v{VZ}, s[{SRD_DBG}:{SRD_DBG+3}], 0 offen sc0 sc1
s_mov_b64 exec, -1
{le}:""")
    a(f"""s_and_b32 s72, s53, 7
s_lshl_b32 s72, s72, 1
s_lshr_b32 s73, s53, 7
s_add_u32 s72, s72, s73
s_lshr_b32 s73, s53, 3
s_and_b32 s73, s73, 15
s_lshl_b32 s77, s72, 4
s_add_u32 s77, s77, s73
s_mul_i32 s56, s72, {128*1280}
s_mul_i32 s57, s73, 80
s_add_u32 s56, s56, s57""")
    for i in range(3):
        a(f"""v_add_u32 v{VA}, {64*i}, v1
v_mul_u32_u24 v{VB}, 10923, v{VA}
v_lshrrev_b32 v{VB}, 16, v{VB}
v_mul_u32_u24 v{VC}, 6, v{VB}
v_sub_u32 v{VC}, v{VA}, v{VC}
v_lshlrev_b32 v{VC}, 4, v{VC}
v_mul_u32_u24 v{VB}, 1280, v{VB}
v_add_u32 v{196+i}, v{VB}, v{VC}""")
    for qd in range(4):
        for i in range(3):
            a(f"s_mov_b32 m0, {U0+3072*qd+1024*i}")
            a(f"buffer_load_dwordx4 v{196+i}, s[{SRD_X}:{SRD_X+3}], s56 offen lds")
        if qd<3: a(f"s_add_u32 s56, s56, {32*1280}")
    LRW=2; XF=42; SM=122; TP=130
    a(f"v_mul_u32_u24 v{VA}, 20, v1\ns_mul_i32 s56, s77, {8*1280}")
    for r in range(8):
        a(f"buffer_load_dwordx4 v[{LRW+4*r}:{LRW+4*r+3}], v{VA}, s[{SRD_X}:{SRD_X+3}], s56 offen")
        a(f"buffer_load_dword v{LRW+32+r}, v{VA}, s[{SRD_X}:{SRD_X+3}], s56 offen offset:16")
        if r<7: a(f"s_add_u32 s56, s56, 1280")
    a(f"buffer_load_dword v{VD}, v{VZ}, s[{SRD_DBG}:{SRD_DBG+3}], 0 offen sc0 sc1")
    XR0=146
    a(f"""v_lshrrev_b32 v{VA}, 2, v1
v_mul_u32_u24 v{VA}, 96, v{VA}
v_and_b32 v{VB}, 3, v1
v_lshlrev_b32 v{VC}, 3, v{VB}
v_add_u32 v{VA}, v{VA}, v{VC}
v_add_u32 v{VA}, {U0}, v{VA}
v_and_b32 v196, 15, v1
v_lshlrev_b32 v196, 6, v196
v_lshrrev_b32 v197, 4, v1
v_lshlrev_b32 v197, 3, v197
v_add_u32 v196, v196, v197
v_add_u32 v196, {U0}, v196              ; b64 write addr
v_lshlrev_b32 v197, 4, v1
v_add_u32 v197, {U0}, v197
v_lshrrev_b32 v198, 2, v1
v_lshlrev_b32 v198, 12, v198
v_lshlrev_b32 v{VB}, 4, v{VB}
v_add_u32 v198, v198, v{VB}
s_mul_i32 s56, s73, {40*4096}
s_lshl_b32 s57, s72, 8
s_add_u32 s56, s56, s57
s_add_u32 s56, s56, {G_OFF}
s_add_u32 s57, s56, {16*4096}
s_add_u32 s58, s56, {32*4096}
s_waitcnt vmcnt(17)""")
    stamp(a,1)
    for half in range(2):
        for qd in (2*half,2*half+1):
            for hh in range(2):
                for ct in range(3):
                    r=XR0+12*(qd&1)+2*(3*hh+ct)
                    a(f"ds_read_b64_tr_b16 v[{r}:{r+1}], v{VA} offset:{3072*qd+hh*1536+ct*32}")
        a("s_waitcnt lgkmcnt(0)")
        for qd in (2*half,2*half+1):
            for hh in range(2):
                for ct in range(3):
                    r=XR0+12*(qd&1)+2*(3*hh+ct)
                    a(f"ds_write_b64 v196, v[{r}:{r+1}] offset:{3072*qd+ct*1024+hh*32}")
    a("s_waitcnt lgkmcnt(0)")
    for qd in range(4):
        for ct in range(3):
            r=XR0+12*qd+4*ct
            a(f"ds_read_b128 v[{r}:{r+3}], v197 offset:{3072*qd+ct*1024}")
    a("s_waitcnt vmcnt(0)")
    for qd in range(4):
        a(f"s_waitcnt lgkmcnt({3*(3-qd)})")
        for ct in range(3):
            r=XR0+12*qd+4*ct
            if ct==2: a("s_mov_b32 exec_hi, 0")
            a(f"buffer_store_dwordx4 v[{r}:{r+3}], v198, s[{SRD_WS}:{SRD_WS+3}], s{56+ct} offen offset:{64*qd} sc0 sc1")
            if ct==2: a("s_mov_b64 exec, -1")
    for r in range(8):
        for k in range(5):
            sr = LRW+4*r+k if k<4 else LRW+32+r
            a(f"v_lshlrev_b32 v{XF+10*r+2*k}, 16, v{sr}")
            a(f"v_and_b32 v{XF+10*r+2*k+1}, 0xffff0000, v{sr}")
    for r in range(8):
        b=XF+10*r; t=TP+2*r
        a(f"v_pk_add_f32 v[{t}:{t+1}], v[{b}:{b+1}], v[{b+2}:{b+3}]")
    for k in (4,6,8):
        for r in range(8):
            b=XF+10*r; t=TP+2*r
            a(f"v_pk_add_f32 v[{t}:{t+1}], v[{t}:{t+1}], v[{b+k}:{b+k+1}]")
    for r in range(8): a(f"v_add_f32 v{SM+r}, v{TP+2*r}, v{TP+2*r+1}")
    wave_sum(a,[SM+r for r in range(8)])
    for r in range(8): a(f"v_mul_f32 v{SM+r}, 0x{f2u(-1.0/640):08x}, v{SM+r}")
    for r in range(8): a(f"v_readlane_b32 s{78+2*r}, v{SM+r}, 63")
    for r in range(8):
        for k in range(5):
            b=XF+10*r+2*k
            a(f"v_pk_add_f32 v[{b}:{b+1}], v[{b}:{b+1}], s[{78+2*r}:{79+2*r}] op_sel_hi:[1,0]")
    for r in range(8):
        b=XF+10*r; t=TP+2*r
        a(f"v_pk_mul_f32 v[{t}:{t+1}], v[{b}:{b+1}], v[{b}:{b+1}]")
    for k in (2,4,6,8):
        for r in range(8):
            b=XF+10*r+k; t=TP+2*r
            a(f"v_pk_fma_f32 v[{t}:{t+1}], v[{b}:{b+1}], v[{b}:{b+1}], v[{t}:{t+1}]")
    for r in range(8): a(f"v_add_f32 v{SM+r}, v{TP+2*r}, v{TP+2*r+1}")
    wave_sum(a,[SM+r for r in range(8)])
    for r in range(8): a(f"v_readlane_b32 s{79+2*r}, v{SM+r}, 63")
    lk=a.newlabel("L_epk")
    a(f"""v_readfirstlane_b32 s67, v{VD}
s_cmp_lg_u32 s67, 0
s_cbranch_scc1 {lk}""")
    get_epoch(a,VZ,VD,67)
    a(f"""{lk}:
v_mov_b32 v{LRW+1}, s67
v_mov_b32 v{LRW+3}, s67
""")
    for r in range(8):
        a(f"v_writelane_b32 v{LRW}, s{79+2*r}, {r}")
        a(f"v_writelane_b32 v{LRW+2}, s{78+2*r}, {r}")
    a(f"""s_mov_b32 s56, 0x{f2u(1.0/640):08x}
v_mov_b32 v{VB}, 0x{f2u(1e-5):08x}
v_fma_f32 v{LRW}, v{LRW}, s56, v{VB}
v_rsq_f32 v{LRW}, v{LRW}
v_lshlrev_b32 v{VB}, 4, v1
s_lshl_b32 s56, s77, 7
s_add_u32 s56, s56, {ST_OFF}
v_mul_f32 v{LRW+2}, v{LRW+2}, v{LRW}
s_mov_b64 exec, 0xff
buffer_store_dwordx4 v[{LRW}:{LRW+3}], v{VB}, s[{SRD_WS}:{SRD_WS+3}], s56 offen sc0 sc1
s_mov_b64 exec, -1""")
    stamp(a,2)

def gen_stage(a):
    RAW=2
    XC=34
    VA=46; VB=47; VX=48; VZ=49; TT=50
    le=a.newlabel("L_noep")
    a(f"""v_mov_b32 v{VZ}, 0
s_or_b32 s56, s53, s{S_WAVE}
s_cmp_lg_u32 s56, 0
s_cbranch_scc1 {le}
s_memrealtime s[56:57]
s_waitcnt lgkmcnt(0)
s_or_b32 s56, s56, 1
v_mov_b32 v{VA}, s56
s_mov_b64 exec, 1
buffer_store_dword v{VA}, v{VZ}, s[{SRD_DBG}:{SRD_DBG+3}], 0 offen sc0 sc1
s_mov_b64 exec, -1
{le}:
v_sub_u32 v{VA}, 63, v1
v_lshlrev_b32 v{VX}, 2, v{VA}
v_lshlrev_b32 v{VA}, 5, v{VA}
s_lshl_b32 s56, s{S_WAVE}, 2
s_sub_u32 s56, 12, s56
s_lshl_b32 s57, s56, 11
s_add_u32 s57, s57, {ST_OFF}
s_lshl_b32 s58, s56, 8
s_lshl_b32 s59, s64, 12
s_add_u32 s58, s58, s59
s_add_u32 s58, s58, {G_OFF}
s_add_u32 s59, s58, 4096
s_add_u32 s60, s58, 8192
s_add_u32 s61, s57, 4096""")
    KP=80
    a(f"""v_lshlrev_b32 v{VB}, 4, v1
s_min_u32 s62, s{S_WAVE}, 2
s_add_u32 s62, s64, s62
s_lshl_b32 s62, s62, 11
s_add_u32 s62, s62, {KI_OFF}
s_mul_i32 s65, s{S_WAVE}, {REG}
buffer_load_dwordx4 v[{KP}:{KP+3}], v{VB}, s[{SRD_WS}:{SRD_WS+3}], s62 offen
buffer_load_dwordx4 v[{KP+4}:{KP+7}], v{VB}, s[{SRD_WS}:{SRD_WS+3}], s62 offen offset:1024""")
    for jj in range(4):
        o=2048*(3-jj); sb=57 if o<4096 else 61; o%=4096
        a(f"buffer_load_dwordx4 v[{RAW+8*jj}:{RAW+8*jj+3}], v{VA}, s[{SRD_WS}:{SRD_WS+3}], s{sb} offen offset:{o}")
        a(f"buffer_load_dwordx4 v[{RAW+8*jj+4}:{RAW+8*jj+7}], v{VA}, s[{SRD_WS}:{SRD_WS+3}], s{sb} offen offset:{o+16}")
        for k in range(3):
            a(f"buffer_load_dword v{XC+4*k+jj}, v{VX}, s[{SRD_WS}:{SRD_WS+3}], s{58+k} offen offset:{256*(3-jj)}")
    lk=a.newlabel("L_nok")
    a(f"""s_cmp_ge_u32 s{S_WAVE}, s63
s_cbranch_scc1 {lk}
s_waitcnt vmcnt(20)""")
    gen_kexpand(a, KP, 88, 104, 128, 129, 130, 131, 132)
    a(f"""{lk}:
v_add_u32 v{VB}, {U0}, v{VB}""")
    for i in range(4): a(f"v_mov_b32 v{TT+20+i}, 0")
    lz=a.newlabel("L_noz")
    a(f"""s_cmp_lg_u32 s{S_WAVE}, 3
s_cbranch_scc1 {lz}
s_mov_b64 exec, 0xf""")
    for k in range(3):
        a(f"ds_write_b128 v{VB}, v[{TT+20}:{TT+23}] offset:{k*UCH+UC1+4096}")
        a(f"ds_write_b128 v{VB}, v[{TT+20}:{TT+23}] offset:{k*UCH+4096}")
    a(f"""s_mov_b64 exec, -1
{lz}:
s_lshl_b32 s56, s{S_WAVE}, 10
s_add_u32 s56, s56, {U0}
s_mov_b32 m0, s56
s_waitcnt vmcnt(0)""")
    stamp(a,1)
    for jj in range(4):
        r=RAW+8*jj; t=TT+9*(jj%2)
        for k in range(3):
            a(f"v_lshlrev_b32 v{t+2*k}, 16, v{XC+4*k+jj}")
            a(f"v_and_b32 v{t+2*k+1}, 0xffff0000, v{XC+4*k+jj}")
        for k in range(3):
            a(f"v_fma_f32 v{t+2*k}, v{t+2*k}, v{r}, v{r+2}")
            a(f"v_fma_f32 v{t+2*k+1}, v{t+2*k+1}, v{r+4}, v{r+6}")
        for k in range(3):
            a(f"v_cvt_pk_bf16_f32 v{t+6+k}, v{t+2*k+1}, v{t+2*k}")
        if jj>0:
            tp=TT+9*((jj-1)%2)
            for k in range(3):
                a(f"ds_write_addtid_b32 v{tp+6+k} offset:{k*UCH+UC1+256*(jj-1)}")
                a(f"ds_write_addtid_b32 v{tp+6+k} offset:{k*UCH+256*(jj-1)+4}")
    tp=TT+9
    for k in range(3):
        a(f"ds_write_addtid_b32 v{tp+6+k} offset:{k*UCH+UC1+256*3}")
        a(f"ds_write_addtid_b32 v{tp+6+k} offset:{k*UCH+256*3+4}")
    a(f"buffer_load_dword v7, v{VZ}, s[{SRD_DBG}:{SRD_DBG+3}], 0 offen sc0 sc1")

def gen_conv(a):
    VA0=2; VB0=3; VF=4; VAu=5; VBu=6; T=8
    ACC=12
    F=[44,108]
    a(f"""v_and_b32 v{T}, 15, v1
v_lshrrev_b32 v{T+1}, 4, v1
v_and_b32 v{T+2}, 1, v1
v_mul_u32_u24 v{VA0}, {KC1}, v{T+2}
v_lshrrev_b32 v{T+3}, 1, v{T}
v_lshlrev_b32 v{T+3}, 6, v{T+3}
v_add_u32 v{VA0}, v{VA0}, v{T+3}
v_lshlrev_b32 v{T+3}, 4, v{T+1}
v_add_u32 v{VA0}, v{VA0}, v{T+3}
v_mul_u32_u24 v{VB0}, {UC1}, v{T+2}
v_add_u32 v{VB0}, v{VB0}, v{T+3}
v_add_u32 v{T+3}, v{T}, v{T+2}
v_lshlrev_b32 v{T+3}, 2, v{T+3}
v_sub_u32 v{VB0}, v{VB0}, v{T+3}
v_add_u32 v{VB0}, {U0+2*(1824-1792)}, v{VB0}
v_lshlrev_b32 v{VF}, 4, v1
v_add_u32 v{VF}, {YB}, v{VF}
s_lshl_b32 s54, s63, 1
s_mul_i32 s55, s54, s{S_WAVE}
s_add_u32 s56, s55, s54""")
    for i in range(32): a(f"v_mov_b32 v{ACC+i}, 0")
    def addr(su):
        return f"""s_lshr_b32 s57, s{su}, 3
s_and_b32 s58, s{su}, 7
s_lshl_b32 s58, s58, 6
s_mul_i32 s59, s57, {REG}
s_mul_i32 s60, s57, {UCH}
s_add_u32 s59, s59, s58
s_add_u32 s60, s60, s58
v_add_u32 v{VAu}, s59, v{VA0}
v_add_u32 v{VBu}, s60, v{VB0}"""
    def reads(b):
        L=[]
        for k in range(8):
            L.append(f"ds_read_b128 v[{F[b]+4*k}:{F[b]+4*k+3}], v{VAu} offset:{512*k}")
            L.append(f"ds_read_b64 v[{F[b]+32+4*k}:{F[b]+32+4*k+1}], v{VBu} offset:{512*(7-k)}")
            L.append(f"ds_read_b64 v[{F[b]+32+4*k+2}:{F[b]+32+4*k+3}], v{VBu} offset:{512*(7-k)+8}")
        return L
    def mfmas(b):
        prs=[(i,c-i) for c in range(8) for i in range(c+1)]
        prs.sort(key=lambda p:(p[0], p[1]))
        return [f"v_mfma_f32_16x16x32_bf16 v[{ACC+4*(i+c)}:{ACC+4*(i+c)+3}], v[{F[b]+4*i}:{F[b]+4*i+3}], v[{F[b]+32+4*c}:{F[b]+32+4*c+3}], v[{ACC+4*(i+c)}:{ACC+4*(i+c)+3}]" for i,c in prs]
    a("s_waitcnt lgkmcnt(0)")
    stamp(a,5)
    a("s_barrier")
    stamp(a,6)
    a(addr(55))
    for l in reads(0): a(l)
    lloop=a.newlabel("L_cv"); lfl=a.newlabel("L_fl"); lend=a.newlabel("L_cve"); lnofl=a.newlabel("L_nofl")
    a(f"{lloop}:")
    for b in range(2):
        a("s_add_u32 s55, s55, 1")
        a(addr(55))
        a("s_waitcnt lgkmcnt(0)")
        rd=reads(1-b); mf=mfmas(b)
        while mf:
            a(mf.pop(0))
            if rd: a(rd.pop(0))
            if mf and len(rd)<=12:
                a(mf.pop(0))
    a(f"""s_cmp_eq_u32 s55, s56
s_cbranch_scc1 {lend}
s_and_b32 s58, s55, 7
s_cmp_lg_u32 s58, 0
s_cbranch_scc1 {lloop}
s_lshr_b32 s57, s55, 3
s_sub_u32 s57, s57, 1
s_mul_i32 s57, s57, {REG}
v_add_u32 v{T}, s57, v{VF}""")
    a.nop(6)
    for c in range(8): a(f"ds_write_b128 v{T}, v[{ACC+4*c}:{ACC+4*c+3}] offset:{1024*c}")
    for i in range(32): a(f"v_mov_b32 v{ACC+i}, 0")
    a(f"""s_branch {lloop}
{lend}:
s_setprio 3
s_sub_u32 s57, s56, 1
s_lshr_b32 s57, s57, 3
s_mul_i32 s58, s57, {REG}
v_add_u32 v{T}, s58, v{VF}
s_and_b32 s59, s{S_WAVE}, 1
s_cmp_eq_u32 s{S_WAVE}, 2
s_cselect_b32 s60, 1, 0
s_cmp_eq_u32 s63, 3
s_cselect_b32 s59, s60, s59
s_cmp_eq_u32 s59, 0
s_cbranch_scc1 {lnofl}""")
    a.nop(9)
    for c in range(8): a(f"ds_write_b128 v{T}, v[{ACC+4*c}:{ACC+4*c+3}] offset:{1024*c}")
    a(f"""{lnofl}:
s_waitcnt lgkmcnt(0)""")
    stamp(a,7)
    lx=a.newlabel("L_cvx")
    a(f"""s_barrier
s_cmp_lg_u32 s59, 0
s_cbranch_scc1 {lx}""")
    P=F[0]
    for c in range(8): a(f"ds_read_b128 v[{P+4*c}:{P+4*c+3}], v{T} offset:{1024*c}")
    a(f"""v_lshrrev_b32 v{T+1}, 4, v1
v_lshlrev_b32 v{T+1}, 7, v{T+1}
v_and_b32 v{T+2}, 15, v1
v_lshlrev_b32 v{T+2}, 2, v{T+2}
v_add_u32 v{T+1}, v{T+2}, v{T+1}
s_add_u32 s61, s57, s64
s_mul_i32 s57, s61, {GS}
s_add_u32 s57, s57, {Y_OFF}""")
    for c in range(8):
        a(f"s_waitcnt lgkmcnt({7-c})")
        a(f"v_pk_add_f32 v[{P+4*c}:{P+4*c+1}], v[{P+4*c}:{P+4*c+1}], v[{ACC+4*c}:{ACC+4*c+1}]")
        a(f"v_pk_add_f32 v[{P+4*c+2}:{P+4*c+3}], v[{P+4*c+2}:{P+4*c+3}], v[{ACC+4*c+2}:{ACC+4*c+3}]")
        a(f"v_cvt_pk_bf16_f32 v{ACC+4*c}, v{P+4*c}, v{P+4*c+1}")
        a(f"v_cvt_pk_bf16_f32 v{ACC+4*c+1}, v{P+4*c+2}, v{P+4*c+3}")
        if c>0:
            a(f"buffer_store_dword v{ACC+4*(c-1)}, v{T+1}, s[{SRD_WS}:{SRD_WS+3}], s57 offen offset:{512*(c-1)} sc0 sc1")
            a(f"buffer_store_dword v{ACC+4*(c-1)+1}, v{T+1}, s[{SRD_WS}:{SRD_WS+3}], s57 offen offset:{512*(c-1)+64} sc0 sc1")
    a(f"buffer_store_dword v{ACC+28}, v{T+1}, s[{SRD_WS}:{SRD_WS+3}], s57 offen offset:{512*7} sc0 sc1")
    a(f"buffer_store_dword v{ACC+29}, v{T+1}, s[{SRD_WS}:{SRD_WS+3}], s57 offen offset:{512*7+64} sc0 sc1")
    lk=a.newlabel("L_cepk")
    a(f"""v_mov_b32 v{T}, 0
s_waitcnt vmcnt(0)
v_readfirstlane_b32 s67, v7
s_cmp_lg_u32 s67, 0
s_cbranch_scc1 {lk}""")
    get_epoch(a,T,7,67)
    a(f"""{lk}:
s_lshl_b32 s61, s61, 7
s_add_u32 s61, s61, {FL_OFF}
v_mov_b32 v7, s67
s_mov_b64 exec, 1
buffer_store_dword v7, v{T}, s[{SRD_WS}:{SRD_WS+3}], s61 offen sc0 sc1
s_mov_b64 exec, -1""")
    a(f"{lx}:")

def wave_sum(a, regs):
    for mod in ("row_shr:1","row_shr:2","row_shr:4","row_shr:8"):
        for r in regs:
            a(f"v_add_f32_dpp v{r}, v{r}, v{r} {mod} row_mask:0xf bank_mask:0xf bound_ctrl:1")
    for r in regs:
        a(f"v_add_f32_dpp v{r}, v{r}, v{r} row_bcast:15 row_mask:0xa bank_mask:0xf")
    for r in regs:
        a(f"v_add_f32_dpp v{r}, v{r}, v{r} row_bcast:31 row_mask:0xc bank_mask:0xf")

def gen_gemm1(a, opt):
    NXS=7; WR=4
    XL=WR*12288
    XG=2; XW=3; XR=4; WS=5; WRD=8; T=11
    VZ=15; ONES=16; ACC=20; CS=68; FR=84; XS=132; EP=244; STR=246
    B1R=250
    vm=VM(a)
    a("s_and_b32 s53, s2, 255\ns_and_b32 s54, s53, 7\ns_lshr_b32 s55, s53, 3")
    if opt.get("map1","loc")=="loc":
        a("s_lshl_b32 s56, s54, 1\ns_lshr_b32 s57, s55, 4\ns_add_u32 s56, s56, s57\ns_and_b32 s57, s55, 15")
    else:
        a("""s_and_b32 s56, s54, 3
s_lshl_b32 s56, s56, 2
s_lshr_b32 s57, s55, 3
s_add_u32 s56, s56, s57
s_lshr_b32 s57, s54, 2
s_lshl_b32 s57, s57, 3
s_and_b32 s58, s55, 7
s_add_u32 s57, s57, s58""")
    a(f"""s_lshl_b32 s60, s56, 7
s_lshl_b32 s61, s{S_WAVE}, 5
s_add_u32 s60, s60, s61
s_mul_i32 s61, s60, 1280
v_lshrrev_b32 v{T}, 3, v1
v_mul_u32_u24 v{XG}, 1280, v{T}
v_and_b32 v{T+1}, 7, v1
v_lshlrev_b32 v{T+2}, 4, v{T+1}
v_add_u32 v{XG}, v{XG}, v{T+2}
v_add_u32 v{XG}, s61, v{XG}""")
    ROT=opt.get("rot","2")
    if opt.get("map1","loc")=="loc":
        a("s_and_b32 s70, s56, 1\ns_mul_i32 s70, s70, 5\ns_add_u32 s70, s70, s57")
    else:
        a("s_and_b32 s70, s56, 3\ns_mul_i32 s70, s70, 3\ns_and_b32 s71, s57, 7\ns_add_u32 s70, s70, s71")
    if ROT=="2": a("s_add_u32 s70, s70, s54")
    if ROT=="0": a("s_mov_b32 s70, 0")
    a("""s_mul_i32 s71, s70, 6554
s_lshr_b32 s71, s71, 16
s_mul_i32 s71, s71, 10
s_sub_u32 s70, s70, s71
s_lshl_b32 s70, s70, 7""")
    for S in range(10):
        a(f"""s_add_u32 s71, s70, {128*S}
s_sub_u32 s72, s71, 1280
s_cmp_ge_u32 s71, 1280
s_cselect_b32 s{80+S}, s72, s71""")
    items=[]
    for S in range(10):
        items+=[("x",S,0),("w",S,0),("x",S,1),("w",S,1),("x",S,2),("w",S,2),("x",S,3)]
    st={"wr":-1,"bar":-1,"wok":False}
    def can(it):
        k,n,_=it
        if k=="x": return n-NXS<=st["wr"]
        if not st["wok"]: return False
        return n<WR or st["bar"]>=n-WR+1
    def pump(n=1):
        c=0
        while c<n:
            idx=next((i for i,it in enumerate(items) if can(it)),None)
            if idx is None: return
            k,m,h=items.pop(idx)
            if k=="x":
                r=XS+16*(m%NXS)+4*h
                a(f"s_add_u32 s65, s{80+m}, {h*8*1280}")
                a(f"buffer_load_dwordx4 v[{r}:{r+3}], v{XG}, s[{SRD_X}:{SRD_X+3}], s65 offen")
            else:
                a(f"s_mul_i32 s65, s{80+m}, 1536")
                a(f"s_add_u32 m0, s64, {(m%WR)*12288+1024*h}")
                a(f"buffer_load_dwordx4 v{WS+h}, s[{SRD_W}:{SRD_W+3}], s65 offen lds")
            vm.issue((k,m)); c+=1
    def spaced(lines, every):
        for i,l in enumerate(lines):
            a(l)
            if every and i%every==every-1: pump(1)
    pump(4)
    a(f"s_mul_i32 s62, s57, 192\ns_mul_i32 s63, s{S_WAVE}, {16*3072}\ns_add_u32 s62, s62, s63\ns_mul_i32 s64, s{S_WAVE}, 3072")
    for i in range(3):
        a(f"""v_add_u32 v{T}, {64*i}, v1
v_mul_u32_u24 v{T+1}, 5462, v{T}
v_lshrrev_b32 v{T+1}, 16, v{T+1}
v_mul_u32_u24 v{T+2}, 12, v{T+1}
v_sub_u32 v{T+2}, v{T}, v{T+2}
v_lshlrev_b32 v{T+2}, 4, v{T+2}
v_mul_u32_u24 v{T+1}, 3072, v{T+1}
v_add_u32 v{T+1}, v{T+1}, v{T+2}
v_add_u32 v{WS+i}, s62, v{T+1}""")
    st["wok"]=True
    pump(3)
    setup=f"""s_lshl_b32 s66, s{S_WAVE}, 13
s_add_u32 s66, s66, {XL}
v_lshrrev_b32 v{T}, 3, v1
v_lshrrev_b32 v{T+1}, 1, v{T}
v_and_b32 v{T+2}, 7, v1
v_xor_b32 v{T+1}, v{T+1}, v{T+2}
v_lshlrev_b32 v{T+1}, 4, v{T+1}
v_lshlrev_b32 v{T}, 7, v{T}
v_add_u32 v{XW}, v{T}, v{T+1}
v_add_u32 v{XW}, s66, v{XW}
v_and_b32 v{T}, 31, v1
v_bfe_u32 v{T+1}, v1, 1, 3
v_lshrrev_b32 v{T+2}, 5, v1
v_xor_b32 v{T+1}, v{T+1}, v{T+2}
v_lshlrev_b32 v{T+1}, 4, v{T+1}
v_lshlrev_b32 v{T}, 7, v{T}
v_add_u32 v{XR}, v{T}, v{T+1}
v_add_u32 v{XR}, s66, v{XR}
s_cmp_eq_u32 s{S_WAVE}, 3
s_cselect_b32 s67, 0, s{S_WAVE}
s_add_u32 s68, s67, 1
s_cmp_eq_u32 s68, 3
s_cselect_b32 s68, 0, s68
s_add_u32 s69, s68, 1
s_cmp_eq_u32 s69, 3
s_cselect_b32 s69, 0, s69
v_lshrrev_b32 v{T}, 5, v1
v_lshlrev_b32 v{T}, 3, v{T}
v_bfe_u32 v{T+1}, v1, 2, 2
v_add_u32 v{T}, v{T}, v{T+1}
v_mul_u32_u24 v{T}, 192, v{T}
v_bfe_u32 v{T+1}, v1, 4, 1
v_lshlrev_b32 v{T+1}, 5, v{T+1}
v_add_u32 v{T}, v{T}, v{T+1}
v_and_b32 v{T+1}, 3, v1
v_lshlrev_b32 v{T+1}, 3, v{T+1}
v_add_u32 v{T}, v{T}, v{T+1}
v_mov_b32 v{VZ}, 0""".split("\n")
    for ft in range(3):
        setup+=[f"s_lshl_b32 s71, s{67+ft}, 6", f"v_add_u32 v{WRD+ft}, s71, v{T}"]
    setup+=[f"v_mov_b32 v{ONES+i}, 0x3f803f80" for i in range(4)]+[f"v_mov_b32 v{ACC+i}, 0" for i in range(64)]
    spaced(setup, int(opt.get("e1",16)))
    def wrx(S,h):
        assert not any(it[0]=="x" and it[1]==S for it in items), ("x not issued",S)
        if h==0: vm.wait_for(("x",S))
        r=XS+16*(S%NXS)+4*h
        a(f"ds_write_b128 v{XW if h%2==0 else F2}, v[{r}:{r+3}] offset:{(S&1)*4096+1024*h}")
        if h==3: st["wr"]=S
    F2=251
    a(f"v_xor_b32 v{F2}, 64, v{XW}")
    def reads(u):
        S=u//4; ks=u%4; fb=FR+16*(u%3)
        wo=(S%WR)*12288+ks*16*192
        out=[f"ds_read_b128 v[{fb+12}:{fb+15}], v{XRK[ks]} offset:{(S&1)*4096}"]
        for i in range(3):
            out.append(f"ds_read_b64_tr_b16 v[{fb+4*i}:{fb+4*i+1}], v{WRD+i} offset:{wo}")
            out.append(f"ds_read_b64_tr_b16 v[{fb+4*i+2}:{fb+4*i+3}], v{WRD+i} offset:{wo+768}")
        return out
    XRK=[XR,252,253,254]
    for ks in range(1,4): a(f"v_xor_b32 v{XRK[ks]}, {32*ks}, v{XR}")
    def mfmas(u):
        fb=FR+16*(u%3); out=[]
        for ft in range(3):
            c=ACC+16*ft
            out.append(f"v_mfma_f32_32x32x16_bf16 v[{c}:{c+15}], v[{fb+4*ft}:{fb+4*ft+3}], v[{fb+12}:{fb+15}], v[{c}:{c+15}]")
        out.append(f"v_mfma_f32_32x32x16_bf16 v[{CS}:{CS+15}], v[{fb}:{fb+3}], v[{ONES}:{ONES+3}], v[{CS}:{CS+15}]")
        return out
    for h in range(4): wrx(0,h)
    vm.wait_for(("w",0))
    a("s_waitcnt lgkmcnt(0)\ns_barrier")
    st["bar"]=0
    stamp(a,1)
    for l in reads(0)+reads(1): a(l)
    pump(2)
    Q=int(opt.get("q",2))
    lq=14
    for u in range(40):
        S=u//4; ks=u%4
        if u==20: stamp(a,2)
        PU=int(opt.get("pu",28))
        if PROF and PU<=u<PU+4: a(f"s_memtime s[{90+2*(u-PU)}:{91+2*(u-PU)}]")
        if PROF and u==PU+4:
            a("s_memtime s[70:71]\ns_waitcnt lgkmcnt(0)")
            for i in range(1,4): a(f"s_sub_u32 s{90+2*i}, s{90+2*i}, s90\nv_writelane_b32 v255, s{90+2*i}, {8+i}")
            a("s_sub_u32 s70, s70, s90\nv_writelane_b32 v255, s70, 12")
        nb = (u+2)<40
        isbar = nb and (u+2)%4==0
        mf=mfmas(u); rd=reads(u+2) if nb else []
        a(f"s_waitcnt lgkmcnt({min(15,st.get('after',7))})")
        Sw=(u+6)//4; hw=(u+6)%4
        wr=[(Sw,hw)] if Sw<10 else []
        if u<2: wr=[(1,2*u),(1,2*u+1)]
        after=0
        q=Q
        for i in range(4):
            a(mf[i])
            if isbar:
                if i==0 and q>0: pump(1); q-=1
                if i==1:
                    assert not any(it[0]=="w" and it[1]==S+1 for it in items), ("w not issued",S+1)
                    vm.wait_for(("w",S+1))
                    a("s_waitcnt lgkmcnt(0)\ns_barrier")
                    st["bar"]=S+1; after=0
                nr = 0 if i<1 else (3 if i<3 else 1)
            else:
                nr = 2
            for _ in range(nr):
                if rd: a(rd.pop(0)); after+=1
            if not isbar and q>0 and i in (1,2): pump(1); q-=1
            if isbar and i==2 and q>0: pump(1); q-=1
            if (i==3 or (i==2 and len(wr)>1)) and wr:
                wrx(*wr.pop(0)); after+=1
        assert not rd and not wr
        st["after"]=after; lq=1
        if u==24:
            a(f"buffer_load_dword v{EP}, v{VZ}, s[{SRD_DBG}:{SRD_DBG+3}], 0 offen sc0 sc1"); vm.issue("ep")
            a(f"""v_lshlrev_b32 v{T}, 2, v1
s_mul_i32 s70, s57, 192
v_add_u32 v{T}, s70, v{T}
global_load_dword v{B1R}, v{T}, s[{S_B1}:{S_B1+1}]""".replace("v_lshlrev_b32 v%d, 2, v1"%T, "v_min_u32 v%d, 47, v1\nv_lshlrev_b32 v%d, 2, v%d"%(T,T,T)))
            vm.issue("b1")
        if u==34:
            a(f"""v_and_b32 v{T+1}, 31, v1
v_lshlrev_b32 v{T+1}, 4, v{T+1}
s_lshl_b32 s71, s60, 4
s_add_u32 s71, s71, {ST_OFF}
buffer_load_dwordx4 v[{STR}:{STR+3}], v{T+1}, s[{SRD_WS}:{SRD_WS+3}], s71 offen sc0 sc1""")
            vm.issue("st")
    assert not items
    stamp(a,3)
    CSL=2*12288; B1L=CSL+512
    lk=a.newlabel("L_gek"); lp=a.newlabel("L_gp"); ld=a.newlabel("L_gpd")
    a(f"""s_waitcnt vmcnt(0)
v_lshrrev_b32 v{T}, 5, v1
v_lshlrev_b32 v{T}, 4, v{T}                ; 16h
s_lshl_b32 s70, s67, 7
s_add_u32 s70, s70, {CSL}
v_add_u32 v{T+2}, s70, v{T}
v_lshlrev_b32 v{FR}, 16, v{B1R}
v_and_b32 v{FR+1}, 0xffff0000, v{B1R}
v_lshlrev_b32 v{T+3}, 3, v1
v_add_u32 v{T+3}, {B1L}, v{T+3}
v_readfirstlane_b32 s76, v{EP}
s_mov_b32 exec_lo, 1
s_mov_b32 exec_hi, 1""")
    for q_ in range(4): a(f"ds_write_b128 v{T+2}, v[{CS+4*q_}:{CS+4*q_+3}] offset:{32*q_}")
    a(f"""s_mov_b32 exec_lo, -1
s_mov_b32 exec_hi, 0xffff
ds_write_b64 v{T+3}, v[{FR}:{FR+1}]
s_mov_b64 exec, -1
s_cmp_lg_u32 s76, 0
s_cbranch_scc1 {lk}""")
    get_epoch(a,VZ,EP,76)
    a(f"""{lk}:
s_mov_b32 s98, {1 if NOWAIT else 200000}
{lp}:
v_xor_b32 v{T+2}, s76, v{STR+1}
v_xor_b32 v{T+3}, s76, v{STR+3}
v_or_b32 v{T+2}, v{T+2}, v{T+3}
v_cmp_ne_u32 vcc, 0, v{T+2}
s_nop 1
s_cmp_eq_u64 vcc, 0
s_cbranch_scc1 {ld}
s_sub_u32 s98, s98, 1
s_cmp_eq_u32 s98, 0
s_cbranch_scc1 {ld}
s_sleep 2
buffer_load_dwordx4 v[{STR}:{STR+3}], v{T+1}, s[{SRD_WS}:{SRD_WS+3}], s71 offen sc0 sc1
s_waitcnt vmcnt(0)
s_branch {lp}
{ld}:
s_waitcnt lgkmcnt(0)
s_barrier""")
    stamp(a,4)
    CV=XS
    BV=XS+48
    H=FR
    OUT=XS+96
    for ft in range(3):
        a(f"s_lshl_b32 s70, s{67+ft}, 7\nv_add_u32 v{T+2}, s70, v{T}")
        for q_ in range(4):
            a(f"ds_read_b128 v[{CV+16*ft+4*q_}:{CV+16*ft+4*q_+3}], v{T+2} offset:{CSL+32*q_}")
            a(f"ds_read_b128 v[{BV+16*ft+4*q_}:{BV+16*ft+4*q_+3}], v{T+2} offset:{B1L+32*q_}")
    a(f"""s_lshl_b32 s70, s56, 1
s_lshr_b32 s71, s{S_WAVE}, 1
s_add_u32 s70, s70, s71
s_mul_i32 s70, s70, 48
s_mul_i32 s71, s57, 3
s_add_u32 s70, s70, s71
s_and_b32 s71, s{S_WAVE}, 1
s_lshl_b32 s71, s71, 11
s_add_u32 s71, s71, {ACT_OFF}
v_and_b32 v{T+2}, 15, v1
v_lshlrev_b32 v{T+2}, 4, v{T+2}
v_lshlrev_b32 v{T+3}, 4, v{T}
v_add_u32 v{T+2}, v{T+2}, v{T+3}
v_bfe_u32 v{T+3}, v1, 4, 1
v_lshlrev_b32 v{T+3}, 10, v{T+3}
v_add_u32 v{T+2}, v{T+2}, v{T+3}
s_mov_b32 s74, 0x{LOG2E:08x}
s_mov_b32 s75, 0x{LOG2E:08x}
s_mov_b32 s78, 0x{f2u(28.0):08x}""")
    for ft in range(3):
        a(f"""s_add_u32 s72, s70, s{67+ft}
s_lshl_b32 s72, s72, 12
s_add_u32 s72, s72, s71
s_waitcnt lgkmcnt({min(15,8*(2-ft))})""")
        o=OUT+8*(ft&1)
        stages=[
          lambda k,h,e,d,c: [f"v_pk_fma_f32 v[{h}:{h+1}], v[{CV+16*ft+2*k}:{CV+16*ft+2*k+1}], v[{STR+2}:{STR+3}], v[{BV+16*ft+2*k}:{BV+16*ft+2*k+1}] op_sel:[0,0,0] op_sel_hi:[1,0,1]"],
          lambda k,h,e,d,c: [f"v_pk_fma_f32 v[{h}:{h+1}], v[{c}:{c+1}], v[{STR}:{STR+1}], v[{h}:{h+1}] op_sel:[0,0,0] op_sel_hi:[1,0,1]"],
          lambda k,h,e,d,c: [f"v_pk_mul_f32 v[{e}:{e+1}], v[{h}:{h+1}], s[74:75]"],
          lambda k,h,e,d,c: [f"v_min_f32 v{e}, s78, v{e}", f"v_min_f32 v{e+1}, s78, v{e+1}"],
          lambda k,h,e,d,c: [f"v_exp_f32 v{e}, v{e}", f"v_exp_f32 v{e+1}, v{e+1}"],
          lambda k,h,e,d,c: [f"v_pk_add_f32 v[{d}:{d+1}], v[{e}:{e+1}], 2.0 op_sel_hi:[1,0]"],
          lambda k,h,e,d,c: [f"v_pk_fma_f32 v[{d}:{d+1}], v[{e}:{e+1}], v[{d}:{d+1}], 2.0 op_sel_hi:[1,1,0]"],
          lambda k,h,e,d,c: [f"v_rcp_f32 v{d}, v{d}", f"v_rcp_f32 v{d+1}, v{d+1}"],
          lambda k,h,e,d,c: [f"v_pk_mul_f32 v[{d}:{d+1}], v[{d}:{d+1}], v[{h}:{h+1}]"],
          lambda k,h,e,d,c: [f"v_pk_fma_f32 v[{h}:{h+1}], v[{d}:{d+1}], -2.0, v[{h}:{h+1}] op_sel_hi:[1,0,1]"],
          lambda k,h,e,d,c: [f"v_cvt_pk_bf16_f32 v{o+k}, v{h}, v{h+1}"],
        ]
        for stg in stages:
            for k in range(8):
                h=H+6*k
                for l in stg(k,h,h+2,h+4,ACC+16*ft+2*k): a(l)
        a(f"buffer_store_dwordx4 v[{o}:{o+3}], v{T+2}, s[{SRD_WS}:{SRD_WS+3}], s72 offen")
        a(f"buffer_store_dwordx4 v[{o+4}:{o+7}], v{T+2}, s[{SRD_WS}:{SRD_WS+3}], s72 offen offset:512")

def gen_kernelA(opt):
    a=Asm()
    a(f"""s_cmp_ge_u32 s2, 512
s_cbranch_scc1 L_A_end
s_load_dwordx16 s[4:19], s[0:1], 0
s_load_dwordx16 s[20:35], s[0:1], 64
v_and_b32 v1, 63, v0
v_lshrrev_b32 v2, 6, v0
v_readfirstlane_b32 s{S_WAVE}, v2
s_waitcnt lgkmcnt(0)""")
    srd(a,SRD_WS,S_WS,WS_END); srd(a,SRD_X,S_X,2048*1280); srd(a,SRD_DBG,S_DBG,256)
    if PROF: a("v_mov_b32 v255, 0")
    stamp(a,0); stampc(a,14)
    SW=opt.get("swap","0")=="1"
    a(("s_cmp_lt_u32 s2, 256" if SW else "s_cmp_ge_u32 s2, 256")+"\ns_cbranch_scc1 L_A_gemm")
    if opt.get("only")=="gemm1": a("s_endpgm")
    PR=int(opt.get("prio",0))
    if PR: a(f"s_setprio {PR}")
    srd(a,SRD_W,S_W2,1536*1280)
    a(f"""s_and_b32 s53, s2, 255
s_and_b32 s54, s53, 7
s_mul_i32 s54, s54, 80
s_lshr_b32 s55, s53, 3
s_mul_i32 s56, s55, 3
s_lshl_b32 s57, s55, 1
s_add_u32 s57, s57, 16
s_cmp_lt_u32 s55, 16
s_cselect_b32 s63, 3, 2
s_cselect_b32 s56, s56, s57
s_add_u32 s64, s54, s56
s_cmp_eq_u32 s{S_WAVE}, 3
s_cbranch_scc1 L_A_aux
s_cmp_ge_u32 s{S_WAVE}, s63
s_cbranch_scc1 L_A_pend
s_add_u32 s54, s64, s{S_WAVE}
s_mul_i32 s55, s{S_WAVE}, {REG}""")
    SK=opt.get("skip","").split(",")
    global SKIP; SKIP=SK
    if "kgen" not in SK: gen_kgen(a)
    stampc(a,3)
    if "w2f" not in SK: gen_w2f(a)
    a("s_branch L_A_pend\nL_A_aux:")
    if "aux" not in SK: gen_aux(a)
    a("L_A_pend:")
    stamp(a,8); stamp_flush(a)
    a("s_endpgm\nL_A_gemm:")
    if int(opt.get("gprio",1)): a(f"s_setprio {int(opt.get('gprio',1))}")
    if opt.get("only")=="conv": a("s_endpgm")
    srd(a,SRD_W,S_W1,640*3072)
    gen_gemm1(a,opt)
    stamp(a,8); stamp_flush(a)
    a("L_A_end:\ns_endpgm")
    return a.text()

def gen_kernelB(opt):
    a=Asm('b'); vm=VM(a)
    NS=4; PRE=3
    T=2; VL=6; VL2=7; XA=8; ID=10
    VM4=16
    WA=[None,20,21,22]; RA=23; YA=24; FA_=25; VZ=26; EP=27
    ACC=28
    SB=108
    a(f"""s_cmp_ge_u32 s2, 512
s_cbranch_scc1 L_B_end
s_load_dwordx2 s[4:5], s[0:1], 0
s_load_dwordx4 s[28:31], s[0:1], 104
s_load_dwordx2 s[8:9], s[0:1], 120
v_and_b32 v1, 63, v0
v_lshrrev_b32 v2, 6, v0
v_readfirstlane_b32 s{S_WAVE}, v2
s_and_b32 s53, s2, 255
s_and_b32 s54, s53, 7
s_lshr_b32 s55, s53, 3
s_waitcnt lgkmcnt(0)""")
    srd(a,SRD_WS,8,WS_END); srd(a,SRD_DBG,30,256)
    if PROF: a("v_mov_b32 v255, 0")
    stamp(a,0); stampc(a,14)
    a(f"""s_cmp_ge_u32 s2, 256
s_cbranch_scc1 L_B_gemm
s_mul_i32 s54, s54, 80
s_mul_i32 s56, s55, 3
s_lshl_b32 s57, s55, 1
s_add_u32 s57, s57, 16
s_cmp_lt_u32 s55, 16
s_cselect_b32 s63, 3, 2
s_cselect_b32 s56, s56, s57
s_add_u32 s64, s54, s56""")
    if int(opt.get("cprio",1)): a(f"s_setprio {int(opt.get('cprio',1))}")
    gen_stage(a)
    a(f"s_setprio {int(opt.get('cprio2',0))}")
    gen_conv(a)
    stamp(a,8); stamp_flush(a,1)
    a("s_endpgm\nL_B_gemm:")
    if int(opt.get("g2prio",0)): a(f"s_setprio {int(opt.get('g2prio',0))}")
    srd(a,SRD_X,4,2048*1280); srd(a,SRD_W,28,2048*1280)
    a(f"""s_lshl_b32 s56, s54, 2
s_lshr_b32 s57, s55, 3
s_add_u32 s56, s56, s57         ; tb
s_and_b32 s57, s55, 7           ; db
v_lshlrev_b32 v{VL}, 4, v1
v_add_u32 v{VL2}, 4096, v{VL}
s_mul_i32 s58, s{S_WAVE}, 12
s_mul_i32 s59, s56, 48
s_add_u32 s59, s59, s58
s_lshl_b32 s59, s59, 12
s_add_u32 s59, s59, {ACT_OFF}
s_mul_i32 s60, s57, 48
s_add_u32 s60, s60, s58
s_mul_i32 s60, s60, 5120
s_add_u32 s60, s60, {W2F_OFF}""")
    for k in range(4):
        a(f"""s_add_u32 s61, s{S_WAVE}, {k}
s_and_b32 s61, s61, 3
s_lshl_b32 s{66+k}, s61, 10
v_add_u32 v{VM4+k}, s{66+k}, v{VL}""")
    RB=opt.get("rotb","0")!="0"
    if RB:
        a("""s_and_b32 s70, s56, 3
s_mul_i32 s70, s70, 3
s_add_u32 s70, s70, s57
s_sub_u32 s71, s70, 12
s_cmp_ge_u32 s70, 12
s_cselect_b32 s70, s71, s70""")
        for j in range(12):
            a(f"""s_add_u32 s71, s70, {j}
s_sub_u32 s72, s71, 12
s_cmp_ge_u32 s71, 12
s_cselect_b32 s{86+j}, s72, s71""")
    def ldl(j):
        b=SB+36*(j%NS); L=[]
        seq=[("w",0),("a",0),("a",1),("w",1),("a",2),("a",3),("w",2),("w",3),("w",4)]
        for i,(kind,n) in enumerate(seq):
            pre = f"s_add_u32 s61, s60, {5120*j}\ns_add_u32 s62, s59, {4096*j}\n" if i==0 else ""
            if RB and i==0: pre = f"s_mul_i32 s61, s{86+j}, 5120\ns_add_u32 s61, s61, s60\ns_lshl_b32 s62, s{86+j}, 12\ns_add_u32 s62, s62, s59\n"
            if kind=="w":
                if n<4: L.append(pre+f"buffer_load_dwordx4 v[{b+4*n}:{b+4*n+3}], v{VL}, s[{SRD_WS}:{SRD_WS+3}], s61 offen offset:{1024*n}")
                else:   L.append(pre+f"buffer_load_dwordx4 v[{b+16}:{b+19}], v{VL2}, s[{SRD_WS}:{SRD_WS+3}], s61 offen")
            else:
                L.append(pre+f"buffer_load_dwordx4 v[{b+20+4*n}:{b+23+4*n}], v{VM4+n}, s[{SRD_WS}:{SRD_WS+3}], s62 offen")
        return [(l,("s",j)) for l in L]
    def ld(j):
        for l,t in ldl(j):
            a(l); vm.issue(t)
    ld(0)
    for i in range(40): a(f"v_mov_b32 v{ACC+i}, 0")
    ld(1)
    for i in range(40,80): a(f"v_mov_b32 v{ACC+i}, 0")
    a(f"""v_and_b32 v{T}, 15, v1
v_lshrrev_b32 v{T+1}, 4, v1
v_lshrrev_b32 v{T+2}, 2, v{T}
v_mul_u32_u24 v{T+2}, 20, v{T+2}
v_and_b32 v{T+3}, 3, v{T}
v_add_u32 v{T+2}, v{T+2}, v{T+3}
v_mul_u32_u24 v{T+2}, {GS}, v{T+2}
v_lshlrev_b32 v{T+3}, 4, v{T+1}
v_add_u32 v{YA}, v{T+2}, v{T+3}
s_mul_i32 s63, s57, {80*GS}
s_lshl_b32 s64, s56, 7
s_add_u32 s63, s63, s64
s_lshr_b32 s64, s{S_WAVE}, 1
s_lshl_b32 s64, s64, 6
s_add_u32 s63, s63, s64
s_add_u32 s63, s63, {Y_OFF}
v_mul_u32_u24 v{XA}, 1280, v{T}
v_mul_u32_u24 v{T+3}, 40, v{T+1}
v_add_u32 v{XA}, v{XA}, v{T+3}
s_lshl_b32 s64, s56, 2
s_add_u32 s64, s64, s{S_WAVE}
s_mul_i32 s64, s64, {16*1280}
s_mul_i32 s65, s57, 160
s_add_u32 s64, s64, s65
s_and_b32 s65, s{S_WAVE}, 1
s_lshl_b32 s65, s65, 4
v_add_u32 v{ID+4}, s65, v{T}
v_lshlrev_b32 v{T+3}, 3, v{T+1}
v_sub_u32 v{T+3}, v{ID+4}, v{T+3}
v_mov_b32 v{ID+4}, 0x3f80
v_mov_b32 v{ID+5}, 0x3f800000""")
    ld(2)
    for k in range(4):
        a(f"""v_cmp_eq_u32 vcc, {2*k}, v{T+3}
v_cndmask_b32 v{ID+k}, 0, v{ID+4}, vcc
v_cmp_eq_u32 vcc, {2*k+1}, v{T+3}
v_cndmask_b32 v{ID+k}, v{ID+k}, v{ID+5}, vcc""")
    for k in range(1,4):
        a(f"""s_mul_i32 s70, s{66+k}, 15
s_add_u32 s70, s70, {(k-1)*5120}
v_add_u32 v{WA[k]}, s70, v{VL}""")
    a(f"""s_mul_i32 s70, s66, 15
v_add_u32 v{RA}, s70, v{VL}
v_mov_b32 v{VZ}, 0
v_min_u32 v{FA_}, 15, v1
v_lshlrev_b32 v{FA_}, 7, v{FA_}
v_lshlrev_b32 v{T}, 7, v1
s_mul_i32 s71, s57, {80*128}
s_add_u32 s71, s71, {FL_OFF}
s_add_u32 s72, s71, 8192""")
    XV=SB+0
    xl=[(f"buffer_load_dwordx4 v[{XV}:{XV+3}], v{XA}, s[{SRD_X}:{SRD_X+3}], s64 offen","x"),
        (f"buffer_load_dwordx4 v[{XV+4}:{XV+7}], v{XA}, s[{SRD_X}:{SRD_X+3}], s64 offen offset:16","x"),
        (f"buffer_load_dwordx2 v[{XV+8}:{XV+9}], v{XA}, s[{SRD_X}:{SRD_X+3}], s64 offen offset:32","x"),
        (f"buffer_load_dword v{EP}, v{VZ}, s[{SRD_DBG}:{SRD_DBG+3}], 0 offen sc0 sc1","ep")]
    FLG=SB+56
    fl=[(f"buffer_load_dword v{FLG}, v{T}, s[{SRD_WS}:{SRD_WS+3}], s71 offen sc0 sc1","fl"),
        (f"buffer_load_dword v{FLG+1}, v{FA_}, s[{SRD_WS}:{SRD_WS+3}], s72 offen sc0 sc1","fl")]
    for j in range(12):
        vm.wait_for(("s",j))
        if j==0: stamp(a,1)
        if PROF and j%2==0: a(f"s_memtime s[{74+j}:{75+j}]")
        b=SB+36*(j%NS)
        order=[(dt,k) for dt in range(5) for k in range(4)]
        if j==11: order=[(dt,k) for k in (1,2,3,0) for dt in range(5)]
        lq = ldl(j+PRE) if j+PRE<12 else (xl if j==9 else (fl if j==11 else []))
        for n,(dt,k) in enumerate(order):
            c=ACC+(dt*4+k)*4
            a(f"v_mfma_f32_16x16x32_bf16 v[{c}:{c+3}], v[{b+4*dt}:{b+4*dt+3}], v[{b+20+4*k}:{b+23+4*k}], v[{c}:{c+3}]")
            if n%2==1 and lq:
                l,t=lq.pop(0); a(l); vm.issue(t)
        assert not lq
    stamp(a,2)
    if PROF:
        for j in range(2,12,2):
            a(f"s_sub_u32 s{74+j}, s{74+j}, s74\nv_writelane_b32 v255, s{74+j}, {8+j//2}")
    XF=SB+12
    YF=SB+36
    FLG=SB+56
    RD=SB+72
    lk=a.newlabel("L_bepk"); lp=a.newlabel("L_bp"); ldn=a.newlabel("L_bpd"); llate=a.newlabel("L_blate"); ljoin=a.newlabel("L_bjoin")
    def yloads():
        for dt in range(5):
            a(f"s_add_u32 s73, s63, {4*GS*dt}")
            a(f"buffer_load_dwordx4 v[{YF+4*dt}:{YF+4*dt+3}], v{YA}, s[{SRD_WS}:{SRD_WS+3}], s73 offen sc0 sc1")
    def flagchk():
        a(f"""v_xor_b32 v{FLG}, s67, v{FLG}
v_xor_b32 v{FLG+1}, s67, v{FLG+1}
v_or_b32 v{FLG}, v{FLG}, v{FLG+1}
v_cmp_ne_u32 vcc, 0, v{FLG}
s_nop 1
s_cmp_eq_u64 vcc, 0""")
    a(f"""s_waitcnt vmcnt(0)
v_readfirstlane_b32 s67, v{EP}
s_mov_b32 s79, 0
s_cmp_eq_u32 s67, 0
s_cbranch_scc1 {llate}""")
    flagchk()
    a(f"""s_cbranch_scc0 {llate}
s_mov_b32 s79, 1""")
    yloads()
    a(f"{llate}:")
    for k in range(1,4):
        for dt in range(5):
            c=ACC+(dt*4+k)*4
            a(f"ds_write_b128 v{WA[k]}, v[{c}:{c+3}] offset:{dt*1024}")
    for k in range(10):
        a(f"v_lshlrev_b32 v{XF+2*k}, 16, v{XV+k}")
        a(f"v_and_b32 v{XF+2*k+1}, 0xffff0000, v{XV+k}")
    a(f"""s_mov_b32 s98, {1 if NOWAIT else 200000}
s_waitcnt lgkmcnt(0)
s_barrier""")
    for p in range(3):
        for dt in range(5):
            r=RD+20*p+4*dt
            a(f"ds_read_b128 v[{r}:{r+3}], v{RA} offset:{p*5120+dt*1024}")
    a(f"""s_cmp_eq_u32 s79, 1
s_cbranch_scc1 {ljoin}
s_cmp_lg_u32 s67, 0
s_cbranch_scc1 {lp}""")
    get_epoch(a,VZ,EP,67)
    a(f"""s_mov_b32 s98, {1 if NOWAIT else 200000}
{lp}:
buffer_load_dword v{FLG}, v{T}, s[{SRD_WS}:{SRD_WS+3}], s71 offen sc0 sc1
buffer_load_dword v{FLG+1}, v{FA_}, s[{SRD_WS}:{SRD_WS+3}], s72 offen sc0 sc1
s_waitcnt vmcnt(0)""")
    flagchk()
    a(f"""s_cbranch_scc1 {ldn}
s_sub_u32 s98, s98, 1
s_cmp_eq_u32 s98, 0
s_cbranch_scc1 {ldn}
s_sleep 2
s_branch {lp}
{ldn}:""")
    yloads()
    a(f"{ljoin}:")
    stamp(a,4)
    for p in range(3):
        a(f"s_waitcnt lgkmcnt({5*(2-p)})")
        for k in range(10):
            a(f"v_pk_add_f32 v[{XF+2*k}:{XF+2*k+1}], v[{XF+2*k}:{XF+2*k+1}], v[{RD+20*p+2*k}:{RD+20*p+2*k+1}]")
    for dt in range(5):
        c=ACC+(dt*4)*4
        a(f"s_waitcnt vmcnt({4-dt})")
        a(f"v_mfma_f32_16x16x32_bf16 v[{c}:{c+3}], v[{YF+4*dt}:{YF+4*dt+3}], v[{ID}:{ID+3}], v[{c}:{c+3}]")
    for dt in range(5):
        c=ACC+(dt*4)*4
        for h in range(2):
            a(f"v_pk_add_f32 v[{XF+4*dt+2*h}:{XF+4*dt+2*h+1}], v[{XF+4*dt+2*h}:{XF+4*dt+2*h+1}], v[{c+2*h}:{c+2*h+1}]")
    for k in range(10):
        a(f"v_cvt_pk_bf16_f32 v{XV+k}, v{XF+2*k}, v{XF+2*k+1}")
    a(f"""buffer_store_dwordx4 v[{XV}:{XV+3}], v{XA}, s[{SRD_W}:{SRD_W+3}], s64 offen
buffer_store_dwordx4 v[{XV+4}:{XV+7}], v{XA}, s[{SRD_W}:{SRD_W+3}], s64 offen offset:16
buffer_store_dwordx2 v[{XV+8}:{XV+9}], v{XA}, s[{SRD_W}:{SRD_W+3}], s64 offen offset:32""")
    stamp(a,3); stamp_flush(a,1)
    a("L_B_end:\ns_endpgm")
    return a.text(), LDS_A

HEADER = open("parallel_sum__ssm_conv_s4__dense_activation_mish__prompt.s.ref").read().split("; Override launch")[0]

def kd(name, vgpr, accum, sgpr=102):
    return f""".amdhsa_kernel {name}
  .amdhsa_next_free_vgpr {vgpr}
  .amdhsa_next_free_sgpr {sgpr}
  .amdhsa_accum_offset {accum}
  .amdhsa_group_segment_fixed_size 0
  .amdhsa_kernarg_size 128
  .amdhsa_user_sgpr_count 2
  .amdhsa_user_sgpr_kernarg_segment_ptr 1
  .amdhsa_system_sgpr_workgroup_id_x 1
.end_amdhsa_kernel
"""

def build(opt):
    A=gen_kernelA(opt); B,ldsB=gen_kernelB(opt)
    s=HEADER
    s+=f"; @launch kernel=stage_a_kernel grid=(512,1,1) block=(256,1,1) lds={LDS_A}\n"
    s+=f"; @launch kernel=stage_b_kernel grid=(512,1,1) block=(256,1,1) lds={ldsB}\n"
    if opt.get("rep2"): s+=f"; @launch kernel=stage_b_kernel grid=(512,1,1) block=(256,1,1) lds={ldsB}\n"
    s+='.amdgcn_target "amdgcn-amd-amdhsa--gfx950"\n.text\n'
    for name,body in (("stage_a_kernel",A),("stage_b_kernel",B)):
        s+=f".globl {name}\n.p2align 8\n.type {name},@function\n{name}:\n{body}"
    s+='.section .rodata,"a"\n.p2align 6\n'+kd("stage_a_kernel",256,256)+".p2align 6\n"+kd("stage_b_kernel",256,256)
    return s

if __name__=="__main__":
    opt={}
    out=sys.argv[1] if len(sys.argv)>1 else "parallel_sum__ssm_conv_s4__dense_activation_mish__prompt.s"
    for kv in sys.argv[2:]:
        k,v=kv.split("="); opt[k]=v
    PROF = opt.get("prof","0")=="1"
    NOWAIT = "only" in opt or "skip" in opt
    open(out,"w").write(build(opt))
    print("wrote",out)
```

```python
import sys, struct
from asmlib import Asm, VM

def f2u(x): return struct.unpack("<I", struct.pack("<f", x))[0]

GS      = 4160
G_OFF   = 0
ST_OFF  = 0x280000
FL_OFF  = 0x290000
Y_OFF   = 0x2B0000
W2F_OFF = 0x540000
ACT_OFF = 0x720000
KI_OFF  = 0xD20000
KIS     = 9216
WS_END  = 0x1500000
TS_OFF  = 0x1400000
TROW = 272
REG  = 17408
KC1  = 4576
YB   = 9120
U0   = 3*REG
UCH  = 8448
UC1  = 4224
LDS_A = 81920
LOG2E = 0x3fb8aa3b; LOG2E_LO = 0x32a5705f; LN2 = 0x3f317218

S_X=4; S_ARE=6; S_AIM=8; S_BRE=10; S_BIM=12; S_CRE=14; S_CIM=16; S_LDT=18
S_DSK=20; S_W1=24; S_B1=26; S_W2=28; S_OUT=30; S_DBG=32; S_WS=34
SRD_WS=36; SRD_X=40; SRD_W=44; SRD_DBG=48
S_WAVE=52
PROF=False
NOWAIT=False
SKIP=[]

def srd(a, dst, ptr, nbytes):
    a(f"""s_mov_b32 s{dst}, s{ptr}
s_and_b32 s{dst+1}, s{ptr+1}, 0xffff
s_mov_b32 s{dst+2}, {nbytes}
s_mov_b32 s{dst+3}, 0x00020000""")

def cmul(dst, z, m, t, conj=False):
    if not conj:
        return [f"v_pk_mul_f32 v[{t}:{t+1}], v[{z}:{z+1}], v[{m}:{m+1}] op_sel:[0,0] op_sel_hi:[0,1]",
                f"v_pk_fma_f32 v[{dst}:{dst+1}], v[{z}:{z+1}], v[{m}:{m+1}], v[{t}:{t+1}] op_sel:[1,1,0] op_sel_hi:[1,0,1] neg_lo:[0,1,0]"]
    return [f"v_pk_mul_f32 v[{t}:{t+1}], v[{z}:{z+1}], v[{m}:{m+1}] op_sel:[0,0] op_sel_hi:[0,1] neg_hi:[0,1]",
            f"v_pk_fma_f32 v[{dst}:{dst+1}], v[{z}:{z+1}], v[{m}:{m+1}], v[{t}:{t+1}] op_sel:[1,1,0] op_sel_hi:[1,0,1]"]

def stamp(a, idx, reg=255):
    if not PROF: return
    a(f"""s_memrealtime s[100:101]
s_waitcnt lgkmcnt(0)
v_writelane_b32 v{reg}, s100, {idx}""")
def stampc(a, idx, reg=255):
    if not PROF: return
    a(f"""s_memtime s[100:101]
s_waitcnt lgkmcnt(0)
v_writelane_b32 v{reg}, s100, {idx}""")
def stamp_flush(a, kern=0, reg=255, tmp=254):
    if not PROF: return
    stampc(a,15,reg)
    a(f"""s_lshl_b32 s100, s2, 2
s_add_u32 s100, s100, s{S_WAVE}
s_lshl_b32 s100, s100, 6
s_add_u32 s100, s100, {TS_OFF+kern*0x40000}
v_lshlrev_b32 v{tmp}, 2, v1
s_mov_b64 exec, 0xffff
buffer_store_dword v{reg}, v{tmp}, s[{SRD_WS}:{SRD_WS+3}], s100 offen
s_mov_b64 exec, -1""")

def get_epoch(a, vz, vt, sdst):
    lp=a.newlabel("L_ep"); ld=a.newlabel("L_epd")
    a(f"""s_mov_b32 s98, {1 if NOWAIT else 200000}
{lp}:
buffer_load_dword v{vt}, v{vz}, s[{SRD_DBG}:{SRD_DBG+3}], 0 offen sc0 sc1
s_waitcnt vmcnt(0)
v_readfirstlane_b32 s{sdst}, v{vt}
s_cmp_lg_u32 s{sdst}, 0
s_cbranch_scc1 {ld}
s_sleep 2
s_sub_u32 s98, s98, 1
s_cmp_lg_u32 s98, 0
s_cbranch_scc1 {lp}
{ld}:""")

def gen_kgen(a):
    RAW=2; P=14
    A2=20; B2=21; DT=22; VT=23
    Z=24; C=26; T=28; T2=30; E1=32; E2=34; E4=36; E8=38; E248=40; X=42; Y=43; S_=44; CO=45
    PKS=[46,47,48,49]; ONE=50
    FA=51; FB=52
    ACC=56
    FR=72
    arrs=[S_ARE,S_AIM,S_BRE,S_BIM,S_CRE,S_CIM]
    a(f"""s_mul_i32 s56, s54, 384
v_lshlrev_b32 v{X}, 2, v1
v_add_u32 v{X}, s56, v{X}
v_lshlrev_b32 v{Y}, 1, v1
v_add_u32 v{Y}, s56, v{Y}
s_lshr_b32 s57, s54, 1
s_lshl_b32 s57, s57, 2
s_load_dword s58, s[{S_LDT}:{S_LDT+1}], s57
s_load_dword s59, s[{S_DSK}:{S_DSK+1}], s57""")
    for i,s in enumerate(arrs):
        a(f"global_load_dword v{RAW+i}, v{X}, s[{s}:{s+1}]")
    for i in range(6): a(f"v_mov_b32 v{RAW+6+i}, 0")
    for i,s in enumerate(arrs):
        a(f"global_load_short_d16_hi v{RAW+6+i}, v{Y}, s[{s}:{s+1}] offset:256")
    a(f"""s_mov_b32 m0, s55
v_and_b32 v{FB}, 31, v1
v_mul_u32_u24 v{FB}, {TROW}, v{FB}
v_lshrrev_b32 v{FA}, 5, v1
v_lshlrev_b32 v{FA}, 4, v{FA}
v_add_u32 v{FB}, v{FB}, v{FA}
v_add_u32 v{FB}, s55, v{FB}
v_add_u32 v{FA}, {32*TROW}, v{FB}""")
    for i in range(16): a(f"v_mov_b32 v{ACC+i}, 0")
    a(f"""s_waitcnt lgkmcnt(0)
s_and_b32 s57, s54, 1
s_lshl_b32 s57, s57, 4
s_lshr_b32 s58, s58, s57
s_lshl_b32 s58, s58, 16
s_lshr_b32 s59, s59, s57
s_lshl_b32 s59, s59, 16
s_mov_b32 s60, 0x{LOG2E:08x}
s_mov_b32 s61, 0x{LOG2E_LO:08x}
s_mov_b32 s62, 0x{LN2:08x}
v_mov_b32 v{X}, s58
v_mul_f32 v{Y}, s60, v{X}
v_fma_f32 v{S_}, v{X}, s60, -v{Y}
v_fma_f32 v{S_}, v{X}, s61, v{S_}
v_exp_f32 v{Y}, v{Y}
v_mul_f32 v{S_}, s62, v{S_}
v_fma_f32 v{Y}, v{Y}, v{S_}, v{Y}
v_cvt_pk_bf16_f32 v{Y}, v{Y}, v{Y}
v_lshlrev_b32 v{DT}, 16, v{Y}
v_mov_b32 v{ONE}, 0x3f80
s_waitcnt vmcnt(6)""")
    stamp(a,1); stampc(a,2)
    DX=[136,137,138]; DY=[139,140,141]; DS=[142,143,144]; DC=[145,146,147]
    def setup(g):
        L=[]
        for i in range(6):
            if g==0: L.append(f"v_lshlrev_b32 v{P+i}, 16, v{RAW+i}")
            elif g==1: L.append(f"v_and_b32 v{P+i}, 0xffff0000, v{RAW+i}")
        src=[(P+i) if g<2 else (RAW+6+i) for i in range(6)]
        ar,ai,br,bi,cr,ci=src
        L+=[f"v_mul_f32 v{A2}, v{ar}, v{DT}", f"v_mul_f32 v{B2}, v{ai}, v{DT}",
            f"v_mul_f32 v{A2}, s60, v{A2}", f"v_mul_f32 v{B2}, 0.15915494, v{B2}"]
        lam=[1,8,248]; dst=[E1,E8,E248]
        for k in (1,2):
            L+=[f"v_mul_f32 v{DY[k]}, 0x{f2u(float(lam[k])):08x}, v{B2}", f"v_mul_f32 v{DX[k]}, 0x{f2u(float(lam[k])):08x}, v{A2}"]
        L+=[f"v_fract_f32 v{DY[0]}, v{B2}", f"v_fract_f32 v{DY[1]}, v{DY[1]}", f"v_fract_f32 v{DY[2]}, v{DY[2]}",
            f"v_exp_f32 v{DX[0]}, v{A2}", f"v_exp_f32 v{DX[1]}, v{DX[1]}", f"v_exp_f32 v{DX[2]}, v{DX[2]}"]
        for k in range(3): L+=[f"v_sin_f32 v{DS[k]}, v{DY[k]}", f"v_cos_f32 v{DC[k]}, v{DY[k]}"]
        L+=[f"v_mul_f32 v{Z}, v{cr}, v{br}", f"v_mul_f32 v{Z+1}, v{cr}, v{bi}",
            f"v_fma_f32 v{Z}, -v{ci}, v{bi}, v{Z}", f"v_fma_f32 v{Z+1}, v{ci}, v{br}, v{Z+1}",
            f"v_mul_f32 v{Z}, v{Z}, v{DT}", f"v_mul_f32 v{Z+1}, -v{Z+1}, v{DT}"]
        for k in range(3): L+=[f"v_mul_f32 v{dst[k]+1}, v{DX[k]}, v{DS[k]}", f"v_mul_f32 v{dst[k]}, v{DX[k]}, v{DC[k]}"]
        L+=cmul(E2,E1,E1,T)+cmul(E4,E2,E2,T)
        return L
    rowseq=[(E1,[1]),(E1,[2]),(E1,[3]),(E1,[4]),(E1,[5]),(E1,[6]),(E1,[7]),(E1,[]),
            (E248,[8]),(E2,[9]),(E2,[10,12]),(E2,[13]),(E2,[14]),
            (E248,[16]),(E4,[17,20]),(E4,[21]),(E248,[18]),(E4,[19,22]),(E4,[23]),
            (E248,[24]),(E8,[28]),(E248,[25]),(E8,[29]),(E248,[26]),(E8,[30]),(E248,[27]),(E8,[31])]
    for l in setup(0): a(l)
    pend=[]
    for g in range(3):
        if g==0: stampc(a,9)
        wq=[]
        pk=0
        def cvt(src, rows):
            nonlocal pk
            r=PKS[pk%4]; pk+=1
            a(f"v_cvt_pk_bf16_f32 v{r}, v{src}, v{src+1}")
            return [f"ds_write_addtid_b32 v{r} offset:{x*TROW}" for x in rows]
        a(f"ds_write_addtid_b32 v{ONE}")
        wq=cvt(Z,[32])+cvt(E8,[1])
        cur=E8
        for j in range(2,32):
            k=j-2
            c1=cmul(C,cur,E8,T); cur=C
            c2=cmul(Z,Z,rowseq[k][0],T2,conj=True) if k<len(rowseq) else []
            a(c1[0])
            if c2: a(c2[0])
            a(c1[1])
            if c2: a(c2[1])
            nq=cvt(C,[j])
            if c2 and rowseq[k][1]: nq+=cvt(Z,[32+r for r in rowseq[k][1]])
            while wq: a(wq.pop(0))
            if pend and j%3==0: a(pend.pop(0))
            wq=nq
        for w in wq: a(w)
        assert not pend
        if g==0: stampc(a,10)
        if g==1: a("s_waitcnt vmcnt(0)")
        a("s_waitcnt lgkmcnt(0)")
        for q in range(8):
            a(f"ds_read_b128 v[{FR+8*q}:{FR+8*q+3}], v{FA} offset:{32*q}")
            a(f"ds_read_b128 v[{FR+8*q+4}:{FR+8*q+7}], v{FB} offset:{32*q}")
        if g<2:
            for l in setup(g+1): a(l)
        a("s_waitcnt lgkmcnt(0)")
        stampc(a,11 if g==0 else (12 if g==1 else 13))
        pend=[f"v_mfma_f32_32x32x16_bf16 v[{ACC}:{ACC+15}], v[{FR+8*q}:{FR+8*q+3}], v[{FR+8*q+4}:{FR+8*q+7}], v[{ACC}:{ACC+15}]" for q in range(8)]
    for m in pend: a(m)
    a(f"""v_lshlrev_b32 v{Y}, 4, v1
s_lshl_b32 s56, s54, 11
s_add_u32 s56, s56, {KI_OFF}
s_mov_b64 exec, 1
v_add_f32 v{ACC}, s59, v{ACC}
s_mov_b64 exec, -1""")
    for i in range(8): a(f"v_cvt_pk_bf16_f32 v{FR+i}, v{ACC+2*i}, v{ACC+2*i+1}")
    a(f"buffer_store_dwordx4 v[{FR}:{FR+3}], v{Y}, s[{SRD_WS}:{SRD_WS+3}], s56 offen sc0 sc1")
    a(f"buffer_store_dwordx4 v[{FR+4}:{FR+7}], v{Y}, s[{SRD_WS}:{SRD_WS+3}], s56 offen offset:1024 sc0 sc1")

def gen_kexpand(a, KP, ACC, Q, X, Y, S_, CO, Z):
    for i in range(4): a(f"v_mov_b32 v{Z+i}, 0")
    a(f"""v_lshlrev_b32 v{S_}, 4, v1
v_add_u32 v{S_}, s65, v{S_}
v_and_b32 v{X}, 31, v1
v_lshlrev_b32 v{X}, 4, v{X}
v_lshrrev_b32 v{Y}, 5, v1
v_lshlrev_b32 v{Y}, 3, v{Y}
v_add_u32 v{X}, v{X}, v{Y}
v_add_u32 v{X}, s65, v{X}
v_cmp_lt_u32 vcc, 31, v1
s_mov_b32 exec_hi, 0
ds_write_b128 v{S_}, v[{Z}:{Z+3}]
ds_write_b128 v{S_}, v[{Z}:{Z+3}] offset:{KC1}
s_mov_b64 exec, -1""")
    for i in range(8):
        a(f"v_lshlrev_b32 v{ACC+2*i}, 16, v{KP+i}")
        a(f"v_and_b32 v{ACC+2*i+1}, 0xffff0000, v{KP+i}")
    ac=lambda i: ACC+i
    a(f"v_cndmask_b32 v{S_}, v{ac(8)}, v{ac(9)}, vcc")
    a(f"v_cndmask_b32 v{CO}, v{ac(10)}, v{ac(11)}, vcc")
    blocks=[(0,[ac(0),ac(1),ac(2),ac(3)]),(256,[ac(4),ac(4),ac(5),ac(6)]),(512,[ac(8),ac(8),S_,ac(9)]),(768,[ac(10),ac(10),CO,ac(11)])]
    for n,(base,e) in enumerate(blocks):
        p=Q+4*n
        a(f"v_cvt_pk_bf16_f32 v{p}, v{e[0]}, v{e[1]}")
        a(f"v_cvt_pk_bf16_f32 v{p+1}, v{e[2]}, v{e[3]}")
        a(f"v_cvt_pk_bf16_f32 v{p+2}, v{e[1]}, v{e[2]}")
    for b in range(4):
        p=Q+16+2*b
        a(f"v_cvt_pk_bf16_f32 v{p}, v{ac(12+b)}, v{ac(12+b)}")
        a(f"v_mov_b32 v{p+1}, v{p}")
    for n,(base,e) in enumerate(blocks):
        p=Q+4*n
        a(f"ds_write_b64 v{X}, v[{p}:{p+1}] offset:{KC1+2*(base+224)}")
        a(f"ds_write_b16 v{X}, v{p} offset:{2*(base+225)}")
        a(f"ds_write_b32 v{X}, v{p+2} offset:{2*(base+226)}")
        a(f"ds_write_b16_d16_hi v{X}, v{p+1} offset:{2*(base+228)}")
    for b in range(4):
        p=Q+16+2*b; base=1024+256*b
        a(f"ds_write_b64 v{X}, v[{p}:{p+1}] offset:{KC1+2*(base+224)}")
        a(f"ds_write_b16 v{X}, v{p} offset:{2*(base+225)}")
        a(f"ds_write_b32 v{X}, v{p} offset:{2*(base+226)}")
        a(f"ds_write_b16 v{X}, v{p} offset:{2*(base+228)}")
    a("s_mov_b64 exec, 0x55555555")
    for b in range(4):
        p=Q+16+2*b
        a(f"ds_write_b16 v{X}, v{p} offset:{KC1+2*(1024+256*b+4+224)}")
        a(f"ds_write_b16 v{X}, v{p} offset:{2*(1024+256*b+4+225)}")
    a("s_mov_b64 exec, -1")

def gen_w2f(a):
    RAW=2; VA=100; VB=101; VC=102
    lx=a.newlabel("L_w2x")
    a(f"""s_mul_i32 s56, s54, 13108
s_lshr_b32 s56, s56, 16
s_mul_i32 s57, s56, 5
s_sub_u32 s57, s54, s57
s_cmp_ge_u32 s57, 3
s_cbranch_scc1 {lx}
s_mul_i32 s56, s56, 3
s_add_u32 s57, s56, s57
s_lshr_b32 s58, s57, 3
s_and_b32 s59, s57, 7
s_mul_i32 s60, s58, {32*1280}
s_mul_i32 s61, s59, 160
s_add_u32 s60, s60, s61
s_mul_i32 s59, s59, 48
s_add_u32 s59, s59, s58
s_mul_i32 s59, s59, 5120
s_add_u32 s68, s59, {W2F_OFF}""")
    for i in range(5):
        a(f"""v_add_u32 v{VA}, {64*i}, v1
v_mul_u32_u24 v{VB}, 6554, v{VA}
v_lshrrev_b32 v{VB}, 16, v{VB}
v_mul_u32_u24 v{VC}, 10, v{VB}
v_sub_u32 v{VC}, v{VA}, v{VC}
v_lshlrev_b32 v{VC}, 4, v{VC}
v_mul_u32_u24 v{VB}, 1280, v{VB}
v_add_u32 v{VB}, v{VB}, v{VC}
s_add_u32 m0, s55, {1024*i}
buffer_load_dwordx4 v{VB}, s[{SRD_W}:{SRD_W+3}], s60 offen lds""")
    a(f"""v_lshrrev_b32 v{VA}, 5, v1
v_lshlrev_b32 v{VA}, 4, v{VA}
v_bfe_u32 v{VB}, v1, 2, 3
v_add_u32 v{VA}, v{VA}, v{VB}
v_mul_u32_u24 v{VA}, 160, v{VA}
v_and_b32 v{VB}, 3, v1
v_mul_u32_u24 v{VB}, 40, v{VB}
v_add_u32 v{VA}, v{VA}, v{VB}
v_add_u32 v{VA}, s55, v{VA}
v_lshlrev_b32 v{VB}, 4, v1
v_add_u32 v{VC}, 4096, v{VB}
s_waitcnt vmcnt(0)""")
    for nt in range(5):
        r=RAW+4*nt
        a(f"ds_read_b64_tr_b16 v[{r}:{r+1}], v{VA} offset:{8*nt}")
        a(f"ds_read_b64_tr_b16 v[{r+2}:{r+3}], v{VA} offset:{8*nt+1280}")
    for nt in range(5):
        r=RAW+4*nt
        a(f"s_waitcnt lgkmcnt({2*(4-nt)})")
        if nt<4: a(f"buffer_store_dwordx4 v[{r}:{r+3}], v{VB}, s[{SRD_WS}:{SRD_WS+3}], s68 offen offset:{1024*nt} sc0 sc1")
        else: a(f"buffer_store_dwordx4 v[{r}:{r+3}], v{VC}, s[{SRD_WS}:{SRD_WS+3}], s68 offen sc0 sc1")
    a(f"{lx}:")

def gen_aux(a):
    RAW=2
    XC=130
    VA=200; VB=201; VC=202; VD=203; VZ=204; VX=205
    a(f"v_mov_b32 v{VZ}, 0")
    le=a.newlabel("L_noep")
    a(f"""s_cmp_lg_u32 s53, 0
s_cbranch_scc1 {le}
s_memrealtime s[56:57]
s_waitcnt lgkmcnt(0)
s_or_b32 s56, s56, 1
v_mov_b32 v{VA}, s56
s_mov_b64 exec, 1
buffer_store_dword v{VA}, v{VZ}, s[{SRD_DBG}:{SRD_DBG+3}], 0 offen sc0 sc1
s_mov_b64 exec, -1
{le}:""")
    a(f"""s_and_b32 s72, s53, 7
s_lshl_b32 s72, s72, 1
s_lshr_b32 s73, s53, 7
s_add_u32 s72, s72, s73
s_lshr_b32 s73, s53, 3
s_and_b32 s73, s73, 15
s_lshl_b32 s77, s72, 4
s_add_u32 s77, s77, s73
s_mul_i32 s56, s72, {128*1280}
s_mul_i32 s57, s73, 80
s_add_u32 s56, s56, s57""")
    for i in range(3):
        a(f"""v_add_u32 v{VA}, {64*i}, v1
v_mul_u32_u24 v{VB}, 10923, v{VA}
v_lshrrev_b32 v{VB}, 16, v{VB}
v_mul_u32_u24 v{VC}, 6, v{VB}
v_sub_u32 v{VC}, v{VA}, v{VC}
v_lshlrev_b32 v{VC}, 4, v{VC}
v_mul_u32_u24 v{VB}, 1280, v{VB}
v_add_u32 v{196+i}, v{VB}, v{VC}""")
    for qd in range(4):
        for i in range(3):
            a(f"s_mov_b32 m0, {U0+3072*qd+1024*i}")
            a(f"buffer_load_dwordx4 v{196+i}, s[{SRD_X}:{SRD_X+3}], s56 offen lds")
        if qd<3: a(f"s_add_u32 s56, s56, {32*1280}")
    LRW=2; XF=42; SM=122; TP=130
    a(f"v_mul_u32_u24 v{VA}, 20, v1\ns_mul_i32 s56, s77, {8*1280}")
    for r in range(8):
        a(f"buffer_load_dwordx4 v[{LRW+4*r}:{LRW+4*r+3}], v{VA}, s[{SRD_X}:{SRD_X+3}], s56 offen")
        a(f"buffer_load_dword v{LRW+32+r}, v{VA}, s[{SRD_X}:{SRD_X+3}], s56 offen offset:16")
        if r<7: a(f"s_add_u32 s56, s56, 1280")
    a(f"buffer_load_dword v{VD}, v{VZ}, s[{SRD_DBG}:{SRD_DBG+3}], 0 offen sc0 sc1")
    XR0=146
    a(f"""v_lshrrev_b32 v{VA}, 2, v1
v_mul_u32_u24 v{VA}, 96, v{VA}
v_and_b32 v{VB}, 3, v1
v_lshlrev_b32 v{VC}, 3, v{VB}
v_add_u32 v{VA}, v{VA}, v{VC}
v_add_u32 v{VA}, {U0}, v{VA}
v_and_b32 v196, 15, v1
v_lshlrev_b32 v196, 6, v196
v_lshrrev_b32 v197, 4, v1
v_lshlrev_b32 v197, 3, v197
v_add_u32 v196, v196, v197
v_add_u32 v196, {U0}, v196              ; b64 write addr
v_lshlrev_b32 v197, 4, v1
v_add_u32 v197, {U0}, v197
v_lshrrev_b32 v198, 2, v1
v_lshlrev_b32 v198, 12, v198
v_lshlrev_b32 v{VB}, 4, v{VB}
v_add_u32 v198, v198, v{VB}
s_mul_i32 s56, s73, {40*4096}
s_lshl_b32 s57, s72, 8
s_add_u32 s56, s56, s57
s_add_u32 s56, s56, {G_OFF}
s_add_u32 s57, s56, {16*4096}
s_add_u32 s58, s56, {32*4096}
s_waitcnt vmcnt(17)""")
    stamp(a,1)
    for half in range(2):
        for qd in (2*half,2*half+1):
            for hh in range(2):
                for ct in range(3):
                    r=XR0+12*(qd&1)+2*(3*hh+ct)
                    a(f"ds_read_b64_tr_b16 v[{r}:{r+1}], v{VA} offset:{3072*qd+hh*1536+ct*32}")
        a("s_waitcnt lgkmcnt(0)")
        for qd in (2*half,2*half+1):
            for hh in range(2):
                for ct in range(3):
                    r=XR0+12*(qd&1)+2*(3*hh+ct)
                    a(f"ds_write_b64 v196, v[{r}:{r+1}] offset:{3072*qd+ct*1024+hh*32}")
    a("s_waitcnt lgkmcnt(0)")
    for qd in range(4):
        for ct in range(3):
            r=XR0+12*qd+4*ct
            a(f"ds_read_b128 v[{r}:{r+3}], v197 offset:{3072*qd+ct*1024}")
    a("s_waitcnt vmcnt(0)")
    for qd in range(4):
        a(f"s_waitcnt lgkmcnt({3*(3-qd)})")
        for ct in range(3):
            r=XR0+12*qd+4*ct
            if ct==2: a("s_mov_b32 exec_hi, 0")
            a(f"buffer_store_dwordx4 v[{r}:{r+3}], v198, s[{SRD_WS}:{SRD_WS+3}], s{56+ct} offen offset:{64*qd} sc0 sc1")
            if ct==2: a("s_mov_b64 exec, -1")
    for r in range(8):
        for k in range(5):
            sr = LRW+4*r+k if k<4 else LRW+32+r
            a(f"v_lshlrev_b32 v{XF+10*r+2*k}, 16, v{sr}")
            a(f"v_and_b32 v{XF+10*r+2*k+1}, 0xffff0000, v{sr}")
    for r in range(8):
        b=XF+10*r; t=TP+2*r
        a(f"v_pk_add_f32 v[{t}:{t+1}], v[{b}:{b+1}], v[{b+2}:{b+3}]")
    for k in (4,6,8):
        for r in range(8):
            b=XF+10*r; t=TP+2*r
            a(f"v_pk_add_f32 v[{t}:{t+1}], v[{t}:{t+1}], v[{b+k}:{b+k+1}]")
    for r in range(8): a(f"v_add_f32 v{SM+r}, v{TP+2*r}, v{TP+2*r+1}")
    wave_sum(a,[SM+r for r in range(8)])
    for r in range(8): a(f"v_mul_f32 v{SM+r}, 0x{f2u(-1.0/640):08x}, v{SM+r}")
    for r in range(8): a(f"v_readlane_b32 s{78+2*r}, v{SM+r}, 63")
    for r in range(8):
        for k in range(5):
            b=XF+10*r+2*k
            a(f"v_pk_add_f32 v[{b}:{b+1}], v[{b}:{b+1}], s[{78+2*r}:{79+2*r}] op_sel_hi:[1,0]")
    for r in range(8):
        b=XF+10*r; t=TP+2*r
        a(f"v_pk_mul_f32 v[{t}:{t+1}], v[{b}:{b+1}], v[{b}:{b+1}]")
    for k in (2,4,6,8):
        for r in range(8):
            b=XF+10*r+k; t=TP+2*r
            a(f"v_pk_fma_f32 v[{t}:{t+1}], v[{b}:{b+1}], v[{b}:{b+1}], v[{t}:{t+1}]")
    for r in range(8): a(f"v_add_f32 v{SM+r}, v{TP+2*r}, v{TP+2*r+1}")
    wave_sum(a,[SM+r for r in range(8)])
    for r in range(8): a(f"v_readlane_b32 s{79+2*r}, v{SM+r}, 63")
    lk=a.newlabel("L_epk")
    a(f"""v_readfirstlane_b32 s67, v{VD}
s_cmp_lg_u32 s67, 0
s_cbranch_scc1 {lk}""")
    get_epoch(a,VZ,VD,67)
    a(f"""{lk}:
v_mov_b32 v{LRW+1}, s67
v_mov_b32 v{LRW+3}, s67
""")
    for r in range(8):
        a(f"v_writelane_b32 v{LRW}, s{79+2*r}, {r}")
        a(f"v_writelane_b32 v{LRW+2}, s{78+2*r}, {r}")
    a(f"""s_mov_b32 s56, 0x{f2u(1.0/640):08x}
v_mov_b32 v{VB}, 0x{f2u(1e-5):08x}
v_fma_f32 v{LRW}, v{LRW}, s56, v{VB}
v_rsq_f32 v{LRW}, v{LRW}
v_lshlrev_b32 v{VB}, 4, v1
s_lshl_b32 s56, s77, 7
s_add_u32 s56, s56, {ST_OFF}
v_mul_f32 v{LRW+2}, v{LRW+2}, v{LRW}
s_mov_b64 exec, 0xff
buffer_store_dwordx4 v[{LRW}:{LRW+3}], v{VB}, s[{SRD_WS}:{SRD_WS+3}], s56 offen sc0 sc1
s_mov_b64 exec, -1""")
    stamp(a,2)

def gen_stage(a):
    RAW=2
    XC=34
    VA=46; VB=47; VX=48; VZ=49; TT=50
    le=a.newlabel("L_noep")
    a(f"""v_mov_b32 v{VZ}, 0
s_or_b32 s56, s53, s{S_WAVE}
s_cmp_lg_u32 s56, 0
s_cbranch_scc1 {le}
s_memrealtime s[56:57]
s_waitcnt lgkmcnt(0)
s_or_b32 s56, s56, 1
v_mov_b32 v{VA}, s56
s_mov_b64 exec, 1
buffer_store_dword v{VA}, v{VZ}, s[{SRD_DBG}:{SRD_DBG+3}], 0 offen sc0 sc1
s_mov_b64 exec, -1
{le}:
v_sub_u32 v{VA}, 63, v1
v_lshlrev_b32 v{VX}, 2, v{VA}
v_lshlrev_b32 v{VA}, 5, v{VA}
s_lshl_b32 s56, s{S_WAVE}, 2
s_sub_u32 s56, 12, s56
s_lshl_b32 s57, s56, 11
s_add_u32 s57, s57, {ST_OFF}
s_lshl_b32 s58, s56, 8
s_lshl_b32 s59, s64, 12
s_add_u32 s58, s58, s59
s_add_u32 s58, s58, {G_OFF}
s_add_u32 s59, s58, 4096
s_add_u32 s60, s58, 8192
s_add_u32 s61, s57, 4096""")
    KP=80
    a(f"""v_lshlrev_b32 v{VB}, 4, v1
s_min_u32 s62, s{S_WAVE}, 2
s_add_u32 s62, s64, s62
s_lshl_b32 s62, s62, 11
s_add_u32 s62, s62, {KI_OFF}
s_mul_i32 s65, s{S_WAVE}, {REG}
buffer_load_dwordx4 v[{KP}:{KP+3}], v{VB}, s[{SRD_WS}:{SRD_WS+3}], s62 offen
buffer_load_dwordx4 v[{KP+4}:{KP+7}], v{VB}, s[{SRD_WS}:{SRD_WS+3}], s62 offen offset:1024""")
    for jj in range(4):
        o=2048*(3-jj); sb=57 if o<4096 else 61; o%=4096
        a(f"buffer_load_dwordx4 v[{RAW+8*jj}:{RAW+8*jj+3}], v{VA}, s[{SRD_WS}:{SRD_WS+3}], s{sb} offen offset:{o}")
        a(f"buffer_load_dwordx4 v[{RAW+8*jj+4}:{RAW+8*jj+7}], v{VA}, s[{SRD_WS}:{SRD_WS+3}], s{sb} offen offset:{o+16}")
        for k in range(3):
            a(f"buffer_load_dword v{XC+4*k+jj}, v{VX}, s[{SRD_WS}:{SRD_WS+3}], s{58+k} offen offset:{256*(3-jj)}")
    lk=a.newlabel("L_nok")
    a(f"""s_cmp_ge_u32 s{S_WAVE}, s63
s_cbranch_scc1 {lk}
s_waitcnt vmcnt(20)""")
    gen_kexpand(a, KP, 88, 104, 128, 129, 130, 131, 132)
    a(f"""{lk}:
v_add_u32 v{VB}, {U0}, v{VB}""")
    for i in range(4): a(f"v_mov_b32 v{TT+20+i}, 0")
    lz=a.newlabel("L_noz")
    a(f"""s_cmp_lg_u32 s{S_WAVE}, 3
s_cbranch_scc1 {lz}
s_mov_b64 exec, 0xf""")
    for k in range(3):
        a(f"ds_write_b128 v{VB}, v[{TT+20}:{TT+23}] offset:{k*UCH+UC1+4096}")
        a(f"ds_write_b128 v{VB}, v[{TT+20}:{TT+23}] offset:{k*UCH+4096}")
    a(f"""s_mov_b64 exec, -1
{lz}:
s_lshl_b32 s56, s{S_WAVE}, 10
s_add_u32 s56, s56, {U0}
s_mov_b32 m0, s56
s_waitcnt vmcnt(0)""")
    stamp(a,1)
    for jj in range(4):
        r=RAW+8*jj; t=TT+9*(jj%2)
        for k in range(3):
            a(f"v_lshlrev_b32 v{t+2*k}, 16, v{XC+4*k+jj}")
            a(f"v_and_b32 v{t+2*k+1}, 0xffff0000, v{XC+4*k+jj}")
        for k in range(3):
            a(f"v_fma_f32 v{t+2*k}, v{t+2*k}, v{r}, v{r+2}")
            a(f"v_fma_f32 v{t+2*k+1}, v{t+2*k+1}, v{r+4}, v{r+6}")
        for k in range(3):
            a(f"v_cvt_pk_bf16_f32 v{t+6+k}, v{t+2*k+1}, v{t+2*k}")
        if jj>0:
            tp=TT+9*((jj-1)%2)
            for k in range(3):
                a(f"ds_write_addtid_b32 v{tp+6+k} offset:{k*UCH+UC1+256*(jj-1)}")
                a(f"ds_write_addtid_b32 v{tp+6+k} offset:{k*UCH+256*(jj-1)+4}")
    tp=TT+9
    for k in range(3):
        a(f"ds_write_addtid_b32 v{tp+6+k} offset:{k*UCH+UC1+256*3}")
        a(f"ds_write_addtid_b32 v{tp+6+k} offset:{k*UCH+256*3+4}")
    a(f"buffer_load_dword v7, v{VZ}, s[{SRD_DBG}:{SRD_DBG+3}], 0 offen sc0 sc1")

def gen_conv(a):
    VA0=2; VB0=3; VF=4; VAu=5; VBu=6; T=8
    ACC=12
    F=[44,108]
    a(f"""v_and_b32 v{T}, 15, v1
v_lshrrev_b32 v{T+1}, 4, v1
v_and_b32 v{T+2}, 1, v1
v_mul_u32_u24 v{VA0}, {KC1}, v{T+2}
v_lshrrev_b32 v{T+3}, 1, v{T}
v_lshlrev_b32 v{T+3}, 6, v{T+3}
v_add_u32 v{VA0}, v{VA0}, v{T+3}
v_lshlrev_b32 v{T+3}, 4, v{T+1}
v_add_u32 v{VA0}, v{VA0}, v{T+3}
v_mul_u32_u24 v{VB0}, {UC1}, v{T+2}
v_add_u32 v{VB0}, v{VB0}, v{T+3}
v_add_u32 v{T+3}, v{T}, v{T+2}
v_lshlrev_b32 v{T+3}, 2, v{T+3}
v_sub_u32 v{VB0}, v{VB0}, v{T+3}
v_add_u32 v{VB0}, {U0+2*(1824-1792)}, v{VB0}
v_lshlrev_b32 v{VF}, 4, v1
v_add_u32 v{VF}, {YB}, v{VF}
s_lshl_b32 s54, s63, 1
s_mul_i32 s55, s54, s{S_WAVE}
s_add_u32 s56, s55, s54""")
    for i in range(32): a(f"v_mov_b32 v{ACC+i}, 0")
    def addr(su):
        return f"""s_lshr_b32 s57, s{su}, 3
s_and_b32 s58, s{su}, 7
s_lshl_b32 s58, s58, 6
s_mul_i32 s59, s57, {REG}
s_mul_i32 s60, s57, {UCH}
s_add_u32 s59, s59, s58
s_add_u32 s60, s60, s58
v_add_u32 v{VAu}, s59, v{VA0}
v_add_u32 v{VBu}, s60, v{VB0}"""
    def reads(b):
        L=[]
        for k in range(8):
            L.append(f"ds_read_b128 v[{F[b]+4*k}:{F[b]+4*k+3}], v{VAu} offset:{512*k}")
            L.append(f"ds_read_b64 v[{F[b]+32+4*k}:{F[b]+32+4*k+1}], v{VBu} offset:{512*(7-k)}")
            L.append(f"ds_read_b64 v[{F[b]+32+4*k+2}:{F[b]+32+4*k+3}], v{VBu} offset:{512*(7-k)+8}")
        return L
    def mfmas(b):
        prs=[(i,c-i) for c in range(8) for i in range(c+1)]
        prs.sort(key=lambda p:(p[0], p[1]))
        return [f"v_mfma_f32_16x16x32_bf16 v[{ACC+4*(i+c)}:{ACC+4*(i+c)+3}], v[{F[b]+4*i}:{F[b]+4*i+3}], v[{F[b]+32+4*c}:{F[b]+32+4*c+3}], v[{ACC+4*(i+c)}:{ACC+4*(i+c)+3}]" for i,c in prs]
    a("s_waitcnt lgkmcnt(0)")
    stamp(a,5)
    a("s_barrier")
    stamp(a,6)
    a(addr(55))
    for l in reads(0): a(l)
    lloop=a.newlabel("L_cv"); lfl=a.newlabel("L_fl"); lend=a.newlabel("L_cve"); lnofl=a.newlabel("L_nofl")
    a(f"{lloop}:")
    for b in range(2):
        a("s_add_u32 s55, s55, 1")
        a(addr(55))
        a("s_waitcnt lgkmcnt(0)")
        rd=reads(1-b); mf=mfmas(b)
        while mf:
            a(mf.pop(0))
            if rd: a(rd.pop(0))
            if mf and len(rd)<=12:
                a(mf.pop(0))
    a(f"""s_cmp_eq_u32 s55, s56
s_cbranch_scc1 {lend}
s_and_b32 s58, s55, 7
s_cmp_lg_u32 s58, 0
s_cbranch_scc1 {lloop}
s_lshr_b32 s57, s55, 3
s_sub_u32 s57, s57, 1
s_mul_i32 s57, s57, {REG}
v_add_u32 v{T}, s57, v{VF}""")
    a.nop(6)
    for c in range(8): a(f"ds_write_b128 v{T}, v[{ACC+4*c}:{ACC+4*c+3}] offset:{1024*c}")
    for i in range(32): a(f"v_mov_b32 v{ACC+i}, 0")
    a(f"""s_branch {lloop}
{lend}:
s_setprio 3
s_sub_u32 s57, s56, 1
s_lshr_b32 s57, s57, 3
s_mul_i32 s58, s57, {REG}
v_add_u32 v{T}, s58, v{VF}
s_and_b32 s59, s{S_WAVE}, 1
s_cmp_eq_u32 s{S_WAVE}, 2
s_cselect_b32 s60, 1, 0
s_cmp_eq_u32 s63, 3
s_cselect_b32 s59, s60, s59
s_cmp_eq_u32 s59, 0
s_cbranch_scc1 {lnofl}""")
    a.nop(9)
    for c in range(8): a(f"ds_write_b128 v{T}, v[{ACC+4*c}:{ACC+4*c+3}] offset:{1024*c}")
    a(f"""{lnofl}:
s_waitcnt lgkmcnt(0)""")
    stamp(a,7)
    lx=a.newlabel("L_cvx")
    a(f"""s_barrier
s_cmp_lg_u32 s59, 0
s_cbranch_scc1 {lx}""")
    P=F[0]
    for c in range(8): a(f"ds_read_b128 v[{P+4*c}:{P+4*c+3}], v{T} offset:{1024*c}")
    a(f"""v_lshrrev_b32 v{T+1}, 4, v1
v_lshlrev_b32 v{T+1}, 7, v{T+1}
v_and_b32 v{T+2}, 15, v1
v_lshlrev_b32 v{T+2}, 2, v{T+2}
v_add_u32 v{T+1}, v{T+2}, v{T+1}
s_add_u32 s61, s57, s64
s_mul_i32 s57, s61, {GS}
s_add_u32 s57, s57, {Y_OFF}""")
    for c in range(8):
        a(f"s_waitcnt lgkmcnt({7-c})")
        a(f"v_pk_add_f32 v[{P+4*c}:{P+4*c+1}], v[{P+4*c}:{P+4*c+1}], v[{ACC+4*c}:{ACC+4*c+1}]")
        a(f"v_pk_add_f32 v[{P+4*c+2}:{P+4*c+3}], v[{P+4*c+2}:{P+4*c+3}], v[{ACC+4*c+2}:{ACC+4*c+3}]")
        a(f"v_cvt_pk_bf16_f32 v{ACC+4*c}, v{P+4*c}, v{P+4*c+1}")
        a(f"v_cvt_pk_bf16_f32 v{ACC+4*c+1}, v{P+4*c+2}, v{P+4*c+3}")
        if c>0:
            a(f"buffer_store_dword v{ACC+4*(c-1)}, v{T+1}, s[{SRD_WS}:{SRD_WS+3}], s57 offen offset:{512*(c-1)} sc0 sc1")
            a(f"buffer_store_dword v{ACC+4*(c-1)+1}, v{T+1}, s[{SRD_WS}:{SRD_WS+3}], s57 offen offset:{512*(c-1)+64} sc0 sc1")
    a(f"buffer_store_dword v{ACC+28}, v{T+1}, s[{SRD_WS}:{SRD_WS+3}], s57 offen offset:{512*7} sc0 sc1")
    a(f"buffer_store_dword v{ACC+29}, v{T+1}, s[{SRD_WS}:{SRD_WS+3}], s57 offen offset:{512*7+64} sc0 sc1")
    lk=a.newlabel("L_cepk")
    a(f"""v_mov_b32 v{T}, 0
s_waitcnt vmcnt(0)
v_readfirstlane_b32 s67, v7
s_cmp_lg_u32 s67, 0
s_cbranch_scc1 {lk}""")
    get_epoch(a,T,7,67)
    a(f"""{lk}:
s_lshl_b32 s61, s61, 7
s_add_u32 s61, s61, {FL_OFF}
v_mov_b32 v7, s67
s_mov_b64 exec, 1
buffer_store_dword v7, v{T}, s[{SRD_WS}:{SRD_WS+3}], s61 offen sc0 sc1
s_mov_b64 exec, -1""")
    a(f"{lx}:")

def wave_sum(a, regs):
    for mod in ("row_shr:1","row_shr:2","row_shr:4","row_shr:8"):
        for r in regs:
            a(f"v_add_f32_dpp v{r}, v{r}, v{r} {mod} row_mask:0xf bank_mask:0xf bound_ctrl:1")
    for r in regs:
        a(f"v_add_f32_dpp v{r}, v{r}, v{r} row_bcast:15 row_mask:0xa bank_mask:0xf")
    for r in regs:
        a(f"v_add_f32_dpp v{r}, v{r}, v{r} row_bcast:31 row_mask:0xc bank_mask:0xf")

def gen_gemm1(a, opt):
    NXS=7; WR=4
    XL=WR*12288
    XG=2; XW=3; XR=4; WS=5; WRD=8; T=11
    VZ=15; ONES=16; ACC=20; CS=68; FR=84; XS=132; EP=244; STR=246
    B1R=250
    vm=VM(a)
    a("s_and_b32 s53, s2, 255\ns_and_b32 s54, s53, 7\ns_lshr_b32 s55, s53, 3")
    if opt.get("map1","loc")=="loc":
        a("s_lshl_b32 s56, s54, 1\ns_lshr_b32 s57, s55, 4\ns_add_u32 s56, s56, s57\ns_and_b32 s57, s55, 15")
    else:
        a("""s_and_b32 s56, s54, 3
s_lshl_b32 s56, s56, 2
s_lshr_b32 s57, s55, 3
s_add_u32 s56, s56, s57
s_lshr_b32 s57, s54, 2
s_lshl_b32 s57, s57, 3
s_and_b32 s58, s55, 7
s_add_u32 s57, s57, s58""")
    a(f"""s_lshl_b32 s60, s56, 7
s_lshl_b32 s61, s{S_WAVE}, 5
s_add_u32 s60, s60, s61
s_mul_i32 s61, s60, 1280
v_lshrrev_b32 v{T}, 3, v1
v_mul_u32_u24 v{XG}, 1280, v{T}
v_and_b32 v{T+1}, 7, v1
v_lshlrev_b32 v{T+2}, 4, v{T+1}
v_add_u32 v{XG}, v{XG}, v{T+2}
v_add_u32 v{XG}, s61, v{XG}""")
    ROT=opt.get("rot","2")
    if opt.get("map1","loc")=="loc":
        a("s_and_b32 s70, s56, 1\ns_mul_i32 s70, s70, 5\ns_add_u32 s70, s70, s57")
    else:
        a("s_and_b32 s70, s56, 3\ns_mul_i32 s70, s70, 3\ns_and_b32 s71, s57, 7\ns_add_u32 s70, s70, s71")
    if ROT=="2": a("s_add_u32 s70, s70, s54")
    if ROT=="0": a("s_mov_b32 s70, 0")
    a("""s_mul_i32 s71, s70, 6554
s_lshr_b32 s71, s71, 16
s_mul_i32 s71, s71, 10
s_sub_u32 s70, s70, s71
s_lshl_b32 s70, s70, 7""")
    for S in range(10):
        a(f"""s_add_u32 s71, s70, {128*S}
s_sub_u32 s72, s71, 1280
s_cmp_ge_u32 s71, 1280
s_cselect_b32 s{80+S}, s72, s71""")
    items=[]
    for S in range(10):
        items+=[("x",S,0),("w",S,0),("x",S,1),("w",S,1),("x",S,2),("w",S,2),("x",S,3)]
    st={"wr":-1,"bar":-1,"wok":False}
    def can(it):
        k,n,_=it
        if k=="x": return n-NXS<=st["wr"]
        if not st["wok"]: return False
        return n<WR or st["bar"]>=n-WR+1
    def pump(n=1):
        c=0
        while c<n:
            idx=next((i for i,it in enumerate(items) if can(it)),None)
            if idx is None: return
            k,m,h=items.pop(idx)
            if k=="x":
                r=XS+16*(m%NXS)+4*h
                a(f"s_add_u32 s65, s{80+m}, {h*8*1280}")
                a(f"buffer_load_dwordx4 v[{r}:{r+3}], v{XG}, s[{SRD_X}:{SRD_X+3}], s65 offen")
            else:
                a(f"s_mul_i32 s65, s{80+m}, 1536")
                a(f"s_add_u32 m0, s64, {(m%WR)*12288+1024*h}")
                a(f"buffer_load_dwordx4 v{WS+h}, s[{SRD_W}:{SRD_W+3}], s65 offen lds")
            vm.issue((k,m)); c+=1
    def spaced(lines, every):
        for i,l in enumerate(lines):
            a(l)
            if every and i%every==every-1: pump(1)
    pump(4)
    a(f"s_mul_i32 s62, s57, 192\ns_mul_i32 s63, s{S_WAVE}, {16*3072}\ns_add_u32 s62, s62, s63\ns_mul_i32 s64, s{S_WAVE}, 3072")
    for i in range(3):
        a(f"""v_add_u32 v{T}, {64*i}, v1
v_mul_u32_u24 v{T+1}, 5462, v{T}
v_lshrrev_b32 v{T+1}, 16, v{T+1}
v_mul_u32_u24 v{T+2}, 12, v{T+1}
v_sub_u32 v{T+2}, v{T}, v{T+2}
v_lshlrev_b32 v{T+2}, 4, v{T+2}
v_mul_u32_u24 v{T+1}, 3072, v{T+1}
v_add_u32 v{T+1}, v{T+1}, v{T+2}
v_add_u32 v{WS+i}, s62, v{T+1}""")
    st["wok"]=True
    pump(3)
    setup=f"""s_lshl_b32 s66, s{S_WAVE}, 13
s_add_u32 s66, s66, {XL}
v_lshrrev_b32 v{T}, 3, v1
v_lshrrev_b32 v{T+1}, 1, v{T}
v_and_b32 v{T+2}, 7, v1
v_xor_b32 v{T+1}, v{T+1}, v{T+2}
v_lshlrev_b32 v{T+1}, 4, v{T+1}
v_lshlrev_b32 v{T}, 7, v{T}
v_add_u32 v{XW}, v{T}, v{T+1}
v_add_u32 v{XW}, s66, v{XW}
v_and_b32 v{T}, 31, v1
v_bfe_u32 v{T+1}, v1, 1, 3
v_lshrrev_b32 v{T+2}, 5, v1
v_xor_b32 v{T+1}, v{T+1}, v{T+2}
v_lshlrev_b32 v{T+1}, 4, v{T+1}
v_lshlrev_b32 v{T}, 7, v{T}
v_add_u32 v{XR}, v{T}, v{T+1}
v_add_u32 v{XR}, s66, v{XR}
s_cmp_eq_u32 s{S_WAVE}, 3
s_cselect_b32 s67, 0, s{S_WAVE}
s_add_u32 s68, s67, 1
s_cmp_eq_u32 s68, 3
s_cselect_b32 s68, 0, s68
s_add_u32 s69, s68, 1
s_cmp_eq_u32 s69, 3
s_cselect_b32 s69, 0, s69
v_lshrrev_b32 v{T}, 5, v1
v_lshlrev_b32 v{T}, 3, v{T}
v_bfe_u32 v{T+1}, v1, 2, 2
v_add_u32 v{T}, v{T}, v{T+1}
v_mul_u32_u24 v{T}, 192, v{T}
v_bfe_u32 v{T+1}, v1, 4, 1
v_lshlrev_b32 v{T+1}, 5, v{T+1}
v_add_u32 v{T}, v{T}, v{T+1}
v_and_b32 v{T+1}, 3, v1
v_lshlrev_b32 v{T+1}, 3, v{T+1}
v_add_u32 v{T}, v{T}, v{T+1}
v_mov_b32 v{VZ}, 0""".split("\n")
    for ft in range(3):
        setup+=[f"s_lshl_b32 s71, s{67+ft}, 6", f"v_add_u32 v{WRD+ft}, s71, v{T}"]
    setup+=[f"v_mov_b32 v{ONES+i}, 0x3f803f80" for i in range(4)]+[f"v_mov_b32 v{ACC+i}, 0" for i in range(64)]
    spaced(setup, int(opt.get("e1",16)))
    def wrx(S,h):
        assert not any(it[0]=="x" and it[1]==S for it in items), ("x not issued",S)
        if h==0: vm.wait_for(("x",S))
        r=XS+16*(S%NXS)+4*h
        a(f"ds_write_b128 v{XW if h%2==0 else F2}, v[{r}:{r+3}] offset:{(S&1)*4096+1024*h}")
        if h==3: st["wr"]=S
    F2=251
    a(f"v_xor_b32 v{F2}, 64, v{XW}")
    def reads(u):
        S=u//4; ks=u%4; fb=FR+16*(u%3)
        wo=(S%WR)*12288+ks*16*192
        out=[f"ds_read_b128 v[{fb+12}:{fb+15}], v{XRK[ks]} offset:{(S&1)*4096}"]
        for i in range(3):
            out.append(f"ds_read_b64_tr_b16 v[{fb+4*i}:{fb+4*i+1}], v{WRD+i} offset:{wo}")
            out.append(f"ds_read_b64_tr_b16 v[{fb+4*i+2}:{fb+4*i+3}], v{WRD+i} offset:{wo+768}")
        return out
    XRK=[XR,252,253,254]
    for ks in range(1,4): a(f"v_xor_b32 v{XRK[ks]}, {32*ks}, v{XR}")
    def mfmas(u):
        fb=FR+16*(u%3); out=[]
        for ft in range(3):
            c=ACC+16*ft
            out.append(f"v_mfma_f32_32x32x16_bf16 v[{c}:{c+15}], v[{fb+4*ft}:{fb+4*ft+3}], v[{fb+12}:{fb+15}], v[{c}:{c+15}]")
        out.append(f"v_mfma_f32_32x32x16_bf16 v[{CS}:{CS+15}], v[{fb}:{fb+3}], v[{ONES}:{ONES+3}], v[{CS}:{CS+15}]")
        return out
    for h in range(4): wrx(0,h)
    vm.wait_for(("w",0))
    a("s_waitcnt lgkmcnt(0)\ns_barrier")
    st["bar"]=0
    stamp(a,1)
    for l in reads(0)+reads(1): a(l)
    pump(2)
    Q=int(opt.get("q",2))
    lq=14
    for u in range(40):
        S=u//4; ks=u%4
        if u==20: stamp(a,2)
        PU=int(opt.get("pu",28))
        if PROF and PU<=u<PU+4: a(f"s_memtime s[{90+2*(u-PU)}:{91+2*(u-PU)}]")
        if PROF and u==PU+4:
            a("s_memtime s[70:71]\ns_waitcnt lgkmcnt(0)")
            for i in range(1,4): a(f"s_sub_u32 s{90+2*i}, s{90+2*i}, s90\nv_writelane_b32 v255, s{90+2*i}, {8+i}")
            a("s_sub_u32 s70, s70, s90\nv_writelane_b32 v255, s70, 12")
        nb = (u+2)<40
        isbar = nb and (u+2)%4==0
        mf=mfmas(u); rd=reads(u+2) if nb else []
        a(f"s_waitcnt lgkmcnt({min(15,st.get('after',7))})")
        Sw=(u+6)//4; hw=(u+6)%4
        wr=[(Sw,hw)] if Sw<10 else []
        if u<2: wr=[(1,2*u),(1,2*u+1)]
        after=0
        q=Q
        for i in range(4):
            a(mf[i])
            if isbar:
                if i==0 and q>0: pump(1); q-=1
                if i==1:
                    assert not any(it[0]=="w" and it[1]==S+1 for it in items), ("w not issued",S+1)
                    vm.wait_for(("w",S+1))
                    a("s_waitcnt lgkmcnt(0)\ns_barrier")
                    st["bar"]=S+1; after=0
                nr = 0 if i<1 else (3 if i<3 else 1)
            else:
                nr = 2
            for _ in range(nr):
                if rd: a(rd.pop(0)); after+=1
            if not isbar and q>0 and i in (1,2): pump(1); q-=1
            if isbar and i==2 and q>0: pump(1); q-=1
            if (i==3 or (i==2 and len(wr)>1)) and wr:
                wrx(*wr.pop(0)); after+=1
        assert not rd and not wr
        st["after"]=after; lq=1
        if u==24:
            a(f"buffer_load_dword v{EP}, v{VZ}, s[{SRD_DBG}:{SRD_DBG+3}], 0 offen sc0 sc1"); vm.issue("ep")
            a(f"""v_lshlrev_b32 v{T}, 2, v1
s_mul_i32 s70, s57, 192
v_add_u32 v{T}, s70, v{T}
global_load_dword v{B1R}, v{T}, s[{S_B1}:{S_B1+1}]""".replace("v_lshlrev_b32 v%d, 2, v1"%T, "v_min_u32 v%d, 47, v1\nv_lshlrev_b32 v%d, 2, v%d"%(T,T,T)))
            vm.issue("b1")
        if u==34:
            a(f"""v_and_b32 v{T+1}, 31, v1
v_lshlrev_b32 v{T+1}, 4, v{T+1}
s_lshl_b32 s71, s60, 4
s_add_u32 s71, s71, {ST_OFF}
buffer_load_dwordx4 v[{STR}:{STR+3}], v{T+1}, s[{SRD_WS}:{SRD_WS+3}], s71 offen sc0 sc1""")
            vm.issue("st")
    assert not items
    stamp(a,3)
    CSL=2*12288; B1L=CSL+512
    lk=a.newlabel("L_gek"); lp=a.newlabel("L_gp"); ld=a.newlabel("L_gpd")
    a(f"""s_waitcnt vmcnt(0)
v_lshrrev_b32 v{T}, 5, v1
v_lshlrev_b32 v{T}, 4, v{T}                ; 16h
s_lshl_b32 s70, s67, 7
s_add_u32 s70, s70, {CSL}
v_add_u32 v{T+2}, s70, v{T}
v_lshlrev_b32 v{FR}, 16, v{B1R}
v_and_b32 v{FR+1}, 0xffff0000, v{B1R}
v_lshlrev_b32 v{T+3}, 3, v1
v_add_u32 v{T+3}, {B1L}, v{T+3}
v_readfirstlane_b32 s76, v{EP}
s_mov_b32 exec_lo, 1
s_mov_b32 exec_hi, 1""")
    for q_ in range(4): a(f"ds_write_b128 v{T+2}, v[{CS+4*q_}:{CS+4*q_+3}] offset:{32*q_}")
    a(f"""s_mov_b32 exec_lo, -1
s_mov_b32 exec_hi, 0xffff
ds_write_b64 v{T+3}, v[{FR}:{FR+1}]
s_mov_b64 exec, -1
s_cmp_lg_u32 s76, 0
s_cbranch_scc1 {lk}""")
    get_epoch(a,VZ,EP,76)
    a(f"""{lk}:
s_mov_b32 s98, {1 if NOWAIT else 200000}
{lp}:
v_xor_b32 v{T+2}, s76, v{STR+1}
v_xor_b32 v{T+3}, s76, v{STR+3}
v_or_b32 v{T+2}, v{T+2}, v{T+3}
v_cmp_ne_u32 vcc, 0, v{T+2}
s_nop 1
s_cmp_eq_u64 vcc, 0
s_cbranch_scc1 {ld}
s_sub_u32 s98, s98, 1
s_cmp_eq_u32 s98, 0
s_cbranch_scc1 {ld}
s_sleep 2
buffer_load_dwordx4 v[{STR}:{STR+3}], v{T+1}, s[{SRD_WS}:{SRD_WS+3}], s71 offen sc0 sc1
s_waitcnt vmcnt(0)
s_branch {lp}
{ld}:
s_waitcnt lgkmcnt(0)
s_barrier""")
    stamp(a,4)
    CV=XS
    BV=XS+48
    H=FR
    OUT=XS+96
    for ft in range(3):
        a(f"s_lshl_b32 s70, s{67+ft}, 7\nv_add_u32 v{T+2}, s70, v{T}")
        for q_ in range(4):
            a(f"ds_read_b128 v[{CV+16*ft+4*q_}:{CV+16*ft+4*q_+3}], v{T+2} offset:{CSL+32*q_}")
            a(f"ds_read_b128 v[{BV+16*ft+4*q_}:{BV+16*ft+4*q_+3}], v{T+2} offset:{B1L+32*q_}")
    a(f"""s_lshl_b32 s70, s56, 1
s_lshr_b32 s71, s{S_WAVE}, 1
s_add_u32 s70, s70, s71
s_mul_i32 s70, s70, 48
s_mul_i32 s71, s57, 3
s_add_u32 s70, s70, s71
s_and_b32 s71, s{S_WAVE}, 1
s_lshl_b32 s71, s71, 11
s_add_u32 s71, s71, {ACT_OFF}
v_and_b32 v{T+2}, 15, v1
v_lshlrev_b32 v{T+2}, 4, v{T+2}
v_lshlrev_b32 v{T+3}, 4, v{T}
v_add_u32 v{T+2}, v{T+2}, v{T+3}
v_bfe_u32 v{T+3}, v1, 4, 1
v_lshlrev_b32 v{T+3}, 10, v{T+3}
v_add_u32 v{T+2}, v{T+2}, v{T+3}
s_mov_b32 s74, 0x{LOG2E:08x}
s_mov_b32 s75, 0x{LOG2E:08x}
s_mov_b32 s78, 0x{f2u(28.0):08x}""")
    for ft in range(3):
        a(f"""s_add_u32 s72, s70, s{67+ft}
s_lshl_b32 s72, s72, 12
s_add_u32 s72, s72, s71
s_waitcnt lgkmcnt({min(15,8*(2-ft))})""")
        o=OUT+8*(ft&1)
        stages=[
          lambda k,h,e,d,c: [f"v_pk_fma_f32 v[{h}:{h+1}], v[{CV+16*ft+2*k}:{CV+16*ft+2*k+1}], v[{STR+2}:{STR+3}], v[{BV+16*ft+2*k}:{BV+16*ft+2*k+1}] op_sel:[0,0,0] op_sel_hi:[1,0,1]"],
          lambda k,h,e,d,c: [f"v_pk_fma_f32 v[{h}:{h+1}], v[{c}:{c+1}], v[{STR}:{STR+1}], v[{h}:{h+1}] op_sel:[0,0,0] op_sel_hi:[1,0,1]"],
          lambda k,h,e,d,c: [f"v_pk_mul_f32 v[{e}:{e+1}], v[{h}:{h+1}], s[74:75]"],
          lambda k,h,e,d,c: [f"v_min_f32 v{e}, s78, v{e}", f"v_min_f32 v{e+1}, s78, v{e+1}"],
          lambda k,h,e,d,c: [f"v_exp_f32 v{e}, v{e}", f"v_exp_f32 v{e+1}, v{e+1}"],
          lambda k,h,e,d,c: [f"v_pk_add_f32 v[{d}:{d+1}], v[{e}:{e+1}], 2.0 op_sel_hi:[1,0]"],
          lambda k,h,e,d,c: [f"v_pk_fma_f32 v[{d}:{d+1}], v[{e}:{e+1}], v[{d}:{d+1}], 2.0 op_sel_hi:[1,1,0]"],
          lambda k,h,e,d,c: [f"v_rcp_f32 v{d}, v{d}", f"v_rcp_f32 v{d+1}, v{d+1}"],
          lambda k,h,e,d,c: [f"v_pk_mul_f32 v[{d}:{d+1}], v[{d}:{d+1}], v[{h}:{h+1}]"],
          lambda k,h,e,d,c: [f"v_pk_fma_f32 v[{h}:{h+1}], v[{d}:{d+1}], -2.0, v[{h}:{h+1}] op_sel_hi:[1,0,1]"],
          lambda k,h,e,d,c: [f"v_cvt_pk_bf16_f32 v{o+k}, v{h}, v{h+1}"],
        ]
        for stg in stages:
            for k in range(8):
                h=H+6*k
                for l in stg(k,h,h+2,h+4,ACC+16*ft+2*k): a(l)
        a(f"buffer_store_dwordx4 v[{o}:{o+3}], v{T+2}, s[{SRD_WS}:{SRD_WS+3}], s72 offen")
        a(f"buffer_store_dwordx4 v[{o+4}:{o+7}], v{T+2}, s[{SRD_WS}:{SRD_WS+3}], s72 offen offset:512")

def gen_kernelA(opt):
    a=Asm()
    a(f"""s_cmp_ge_u32 s2, 512
s_cbranch_scc1 L_A_end
s_load_dwordx16 s[4:19], s[0:1], 0
s_load_dwordx16 s[20:35], s[0:1], 64
v_and_b32 v1, 63, v0
v_lshrrev_b32 v2, 6, v0
v_readfirstlane_b32 s{S_WAVE}, v2
s_waitcnt lgkmcnt(0)""")
    srd(a,SRD_WS,S_WS,WS_END); srd(a,SRD_X,S_X,2048*1280); srd(a,SRD_DBG,S_DBG,256)
    if PROF: a("v_mov_b32 v255, 0")
    stamp(a,0); stampc(a,14)
    SW=opt.get("swap","0")=="1"
    a(("s_cmp_lt_u32 s2, 256" if SW else "s_cmp_ge_u32 s2, 256")+"\ns_cbranch_scc1 L_A_gemm")
    if opt.get("only")=="gemm1": a("s_endpgm")
    PR=int(opt.get("prio",0))
    if PR: a(f"s_setprio {PR}")
    srd(a,SRD_W,S_W2,1536*1280)
    a(f"""s_and_b32 s53, s2, 255
s_and_b32 s54, s53, 7
s_mul_i32 s54, s54, 80
s_lshr_b32 s55, s53, 3
s_mul_i32 s56, s55, 3
s_lshl_b32 s57, s55, 1
s_add_u32 s57, s57, 16
s_cmp_lt_u32 s55, 16
s_cselect_b32 s63, 3, 2
s_cselect_b32 s56, s56, s57
s_add_u32 s64, s54, s56
s_cmp_eq_u32 s{S_WAVE}, 3
s_cbranch_scc1 L_A_aux
s_cmp_ge_u32 s{S_WAVE}, s63
s_cbranch_scc1 L_A_pend
s_add_u32 s54, s64, s{S_WAVE}
s_mul_i32 s55, s{S_WAVE}, {REG}""")
    SK=opt.get("skip","").split(",")
    global SKIP; SKIP=SK
    if "kgen" not in SK: gen_kgen(a)
    stampc(a,3)
    if "w2f" not in SK: gen_w2f(a)
    a("s_branch L_A_pend\nL_A_aux:")
    if "aux" not in SK: gen_aux(a)
    a("L_A_pend:")
    stamp(a,8); stamp_flush(a)
    a("s_endpgm\nL_A_gemm:")
    if int(opt.get("gprio",1)): a(f"s_setprio {int(opt.get('gprio',1))}")
    if opt.get("only")=="conv": a("s_endpgm")
    srd(a,SRD_W,S_W1,640*3072)
    gen_gemm1(a,opt)
    stamp(a,8); stamp_flush(a)
    a("L_A_end:\ns_endpgm")
    return a.text()

def gen_kernelB(opt):
    a=Asm('b'); vm=VM(a)
    NS=4; PRE=3
    T=2; VL=6; VL2=7; XA=8; ID=10
    VM4=16
    WA=[None,20,21,22]; RA=23; YA=24; FA_=25; VZ=26; EP=27
    ACC=28
    SB=108
    a(f"""s_cmp_ge_u32 s2, 512
s_cbranch_scc1 L_B_end
s_load_dwordx2 s[4:5], s[0:1], 0
s_load_dwordx4 s[28:31], s[0:1], 104
s_load_dwordx2 s[8:9], s[0:1], 120
v_and_b32 v1, 63, v0
v_lshrrev_b32 v2, 6, v0
v_readfirstlane_b32 s{S_WAVE}, v2
s_and_b32 s53, s2, 255
s_and_b32 s54, s53, 7
s_lshr_b32 s55, s53, 3
s_waitcnt lgkmcnt(0)""")
    srd(a,SRD_WS,8,WS_END); srd(a,SRD_DBG,30,256)
    if PROF: a("v_mov_b32 v255, 0")
    stamp(a,0); stampc(a,14)
    a(f"""s_cmp_ge_u32 s2, 256
s_cbranch_scc1 L_B_gemm
s_mul_i32 s54, s54, 80
s_mul_i32 s56, s55, 3
s_lshl_b32 s57, s55, 1
s_add_u32 s57, s57, 16
s_cmp_lt_u32 s55, 16
s_cselect_b32 s63, 3, 2
s_cselect_b32 s56, s56, s57
s_add_u32 s64, s54, s56""")
    if int(opt.get("cprio",1)): a(f"s_setprio {int(opt.get('cprio',1))}")
    gen_stage(a)
    a(f"s_setprio {int(opt.get('cprio2',0))}")
    gen_conv(a)
    stamp(a,8); stamp_flush(a,1)
    a("s_endpgm\nL_B_gemm:")
    if int(opt.get("g2prio",0)): a(f"s_setprio {int(opt.get('g2prio',0))}")
    srd(a,SRD_X,4,2048*1280); srd(a,SRD_W,28,2048*1280)
    a(f"""s_lshl_b32 s56, s54, 2
s_lshr_b32 s57, s55, 3
s_add_u32 s56, s56, s57         ; tb
s_and_b32 s57, s55, 7           ; db
v_lshlrev_b32 v{VL}, 4, v1
v_add_u32 v{VL2}, 4096, v{VL}
s_mul_i32 s58, s{S_WAVE}, 12
s_mul_i32 s59, s56, 48
s_add_u32 s59, s59, s58
s_lshl_b32 s59, s59, 12
s_add_u32 s59, s59, {ACT_OFF}
s_mul_i32 s60, s57, 48
s_add_u32 s60, s60, s58
s_mul_i32 s60, s60, 5120
s_add_u32 s60, s60, {W2F_OFF}""")
    for k in range(4):
        a(f"""s_add_u32 s61, s{S_WAVE}, {k}
s_and_b32 s61, s61, 3
s_lshl_b32 s{66+k}, s61, 10
v_add_u32 v{VM4+k}, s{66+k}, v{VL}""")
    RB=opt.get("rotb","0")!="0"
    if RB:
        a("""s_and_b32 s70, s56, 3
s_mul_i32 s70, s70, 3
s_add_u32 s70, s70, s57
s_sub_u32 s71, s70, 12
s_cmp_ge_u32 s70, 12
s_cselect_b32 s70, s71, s70""")
        for j in range(12):
            a(f"""s_add_u32 s71, s70, {j}
s_sub_u32 s72, s71, 12
s_cmp_ge_u32 s71, 12
s_cselect_b32 s{86+j}, s72, s71""")
    def ldl(j):
        b=SB+36*(j%NS); L=[]
        seq=[("w",0),("a",0),("a",1),("w",1),("a",2),("a",3),("w",2),("w",3),("w",4)]
        for i,(kind,n) in enumerate(seq):
            pre = f"s_add_u32 s61, s60, {5120*j}\ns_add_u32 s62, s59, {4096*j}\n" if i==0 else ""
            if RB and i==0: pre = f"s_mul_i32 s61, s{86+j}, 5120\ns_add_u32 s61, s61, s60\ns_lshl_b32 s62, s{86+j}, 12\ns_add_u32 s62, s62, s59\n"
            if kind=="w":
                if n<4: L.append(pre+f"buffer_load_dwordx4 v[{b+4*n}:{b+4*n+3}], v{VL}, s[{SRD_WS}:{SRD_WS+3}], s61 offen offset:{1024*n}")
                else:   L.append(pre+f"buffer_load_dwordx4 v[{b+16}:{b+19}], v{VL2}, s[{SRD_WS}:{SRD_WS+3}], s61 offen")
            else:
                L.append(pre+f"buffer_load_dwordx4 v[{b+20+4*n}:{b+23+4*n}], v{VM4+n}, s[{SRD_WS}:{SRD_WS+3}], s62 offen")
        return [(l,("s",j)) for l in L]
    def ld(j):
        for l,t in ldl(j):
            a(l); vm.issue(t)
    ld(0)
    for i in range(40): a(f"v_mov_b32 v{ACC+i}, 0")
    ld(1)
    for i in range(40,80): a(f"v_mov_b32 v{ACC+i}, 0")
    a(f"""v_and_b32 v{T}, 15, v1
v_lshrrev_b32 v{T+1}, 4, v1
v_lshrrev_b32 v{T+2}, 2, v{T}
v_mul_u32_u24 v{T+2}, 20, v{T+2}
v_and_b32 v{T+3}, 3, v{T}
v_add_u32 v{T+2}, v{T+2}, v{T+3}
v_mul_u32_u24 v{T+2}, {GS}, v{T+2}
v_lshlrev_b32 v{T+3}, 4, v{T+1}
v_add_u32 v{YA}, v{T+2}, v{T+3}
s_mul_i32 s63, s57, {80*GS}
s_lshl_b32 s64, s56, 7
s_add_u32 s63, s63, s64
s_lshr_b32 s64, s{S_WAVE}, 1
s_lshl_b32 s64, s64, 6
s_add_u32 s63, s63, s64
s_add_u32 s63, s63, {Y_OFF}
v_mul_u32_u24 v{XA}, 1280, v{T}
v_mul_u32_u24 v{T+3}, 40, v{T+1}
v_add_u32 v{XA}, v{XA}, v{T+3}
s_lshl_b32 s64, s56, 2
s_add_u32 s64, s64, s{S_WAVE}
s_mul_i32 s64, s64, {16*1280}
s_mul_i32 s65, s57, 160
s_add_u32 s64, s64, s65
s_and_b32 s65, s{S_WAVE}, 1
s_lshl_b32 s65, s65, 4
v_add_u32 v{ID+4}, s65, v{T}
v_lshlrev_b32 v{T+3}, 3, v{T+1}
v_sub_u32 v{T+3}, v{ID+4}, v{T+3}
v_mov_b32 v{ID+4}, 0x3f80
v_mov_b32 v{ID+5}, 0x3f800000""")
    ld(2)
    for k in range(4):
        a(f"""v_cmp_eq_u32 vcc, {2*k}, v{T+3}
v_cndmask_b32 v{ID+k}, 0, v{ID+4}, vcc
v_cmp_eq_u32 vcc, {2*k+1}, v{T+3}
v_cndmask_b32 v{ID+k}, v{ID+k}, v{ID+5}, vcc""")
    for k in range(1,4):
        a(f"""s_mul_i32 s70, s{66+k}, 15
s_add_u32 s70, s70, {(k-1)*5120}
v_add_u32 v{WA[k]}, s70, v{VL}""")
    a(f"""s_mul_i32 s70, s66, 15
v_add_u32 v{RA}, s70, v{VL}
v_mov_b32 v{VZ}, 0
v_min_u32 v{FA_}, 15, v1
v_lshlrev_b32 v{FA_}, 7, v{FA_}
v_lshlrev_b32 v{T}, 7, v1
s_mul_i32 s71, s57, {80*128}
s_add_u32 s71, s71, {FL_OFF}
s_add_u32 s72, s71, 8192""")
    XV=SB+0
    xl=[(f"buffer_load_dwordx4 v[{XV}:{XV+3}], v{XA}, s[{SRD_X}:{SRD_X+3}], s64 offen","x"),
        (f"buffer_load_dwordx4 v[{XV+4}:{XV+7}], v{XA}, s[{SRD_X}:{SRD_X+3}], s64 offen offset:16","x"),
        (f"buffer_load_dwordx2 v[{XV+8}:{XV+9}], v{XA}, s[{SRD_X}:{SRD_X+3}], s64 offen offset:32","x"),
        (f"buffer_load_dword v{EP}, v{VZ}, s[{SRD_DBG}:{SRD_DBG+3}], 0 offen sc0 sc1","ep")]
    FLG=SB+56
    fl=[(f"buffer_load_dword v{FLG}, v{T}, s[{SRD_WS}:{SRD_WS+3}], s71 offen sc0 sc1","fl"),
        (f"buffer_load_dword v{FLG+1}, v{FA_}, s[{SRD_WS}:{SRD_WS+3}], s72 offen sc0 sc1","fl")]
    for j in range(12):
        vm.wait_for(("s",j))
        if j==0: stamp(a,1)
        if PROF and j%2==0: a(f"s_memtime s[{74+j}:{75+j}]")
        b=SB+36*(j%NS)
        order=[(dt,k) for dt in range(5) for k in range(4)]
        if j==11: order=[(dt,k) for k in (1,2,3,0) for dt in range(5)]
        lq = ldl(j+PRE) if j+PRE<12 else (xl if j==9 else (fl if j==11 else []))
        for n,(dt,k) in enumerate(order):
            c=ACC+(dt*4+k)*4
            a(f"v_mfma_f32_16x16x32_bf16 v[{c}:{c+3}], v[{b+4*dt}:{b+4*dt+3}], v[{b+20+4*k}:{b+23+4*k}], v[{c}:{c+3}]")
            if n%2==1 and lq:
                l,t=lq.pop(0); a(l); vm.issue(t)
        assert not lq
    stamp(a,2)
    if PROF:
        for j in range(2,12,2):
            a(f"s_sub_u32 s{74+j}, s{74+j}, s74\nv_writelane_b32 v255, s{74+j}, {8+j//2}")
    XF=SB+12
    YF=SB+36
    FLG=SB+56
    RD=SB+72
    lk=a.newlabel("L_bepk"); lp=a.newlabel("L_bp"); ldn=a.newlabel("L_bpd"); llate=a.newlabel("L_blate"); ljoin=a.newlabel("L_bjoin")
    def yloads():
        for dt in range(5):
            a(f"s_add_u32 s73, s63, {4*GS*dt}")
            a(f"buffer_load_dwordx4 v[{YF+4*dt}:{YF+4*dt+3}], v{YA}, s[{SRD_WS}:{SRD_WS+3}], s73 offen sc0 sc1")
    def flagchk():
        a(f"""v_xor_b32 v{FLG}, s67, v{FLG}
v_xor_b32 v{FLG+1}, s67, v{FLG+1}
v_or_b32 v{FLG}, v{FLG}, v{FLG+1}
v_cmp_ne_u32 vcc, 0, v{FLG}
s_nop 1
s_cmp_eq_u64 vcc, 0""")
    a(f"""s_waitcnt vmcnt(0)
v_readfirstlane_b32 s67, v{EP}
s_mov_b32 s79, 0
s_cmp_eq_u32 s67, 0
s_cbranch_scc1 {llate}""")
    flagchk()
    a(f"""s_cbranch_scc0 {llate}
s_mov_b32 s79, 1""")
    yloads()
    a(f"{llate}:")
    for k in range(1,4):
        for dt in range(5):
            c=ACC+(dt*4+k)*4
            a(f"ds_write_b128 v{WA[k]}, v[{c}:{c+3}] offset:{dt*1024}")
    for k in range(10):
        a(f"v_lshlrev_b32 v{XF+2*k}, 16, v{XV+k}")
        a(f"v_and_b32 v{XF+2*k+1}, 0xffff0000, v{XV+k}")
    a(f"""s_mov_b32 s98, {1 if NOWAIT else 200000}
s_waitcnt lgkmcnt(0)
s_barrier""")
    for p in range(3):
        for dt in range(5):
            r=RD+20*p+4*dt
            a(f"ds_read_b128 v[{r}:{r+3}], v{RA} offset:{p*5120+dt*1024}")
    a(f"""s_cmp_eq_u32 s79, 1
s_cbranch_scc1 {ljoin}
s_cmp_lg_u32 s67, 0
s_cbranch_scc1 {lp}""")
    get_epoch(a,VZ,EP,67)
    a(f"""s_mov_b32 s98, {1 if NOWAIT else 200000}
{lp}:
buffer_load_dword v{FLG}, v{T}, s[{SRD_WS}:{SRD_WS+3}], s71 offen sc0 sc1
buffer_load_dword v{FLG+1}, v{FA_}, s[{SRD_WS}:{SRD_WS+3}], s72 offen sc0 sc1
s_waitcnt vmcnt(0)""")
    flagchk()
    a(f"""s_cbranch_scc1 {ldn}
s_sub_u32 s98, s98, 1
s_cmp_eq_u32 s98, 0
s_cbranch_scc1 {ldn}
s_sleep 2
s_branch {lp}
{ldn}:""")
    yloads()
    a(f"{ljoin}:")
    stamp(a,4)
    for p in range(3):
        a(f"s_waitcnt lgkmcnt({5*(2-p)})")
        for k in range(10):
            a(f"v_pk_add_f32 v[{XF+2*k}:{XF+2*k+1}], v[{XF+2*k}:{XF+2*k+1}], v[{RD+20*p+2*k}:{RD+20*p+2*k+1}]")
    for dt in range(5):
        c=ACC+(dt*4)*4
        a(f"s_waitcnt vmcnt({4-dt})")
        a(f"v_mfma_f32_16x16x32_bf16 v[{c}:{c+3}], v[{YF+4*dt}:{YF+4*dt+3}], v[{ID}:{ID+3}], v[{c}:{c+3}]")
    for dt in range(5):
        c=ACC+(dt*4)*4
        for h in range(2):
            a(f"v_pk_add_f32 v[{XF+4*dt+2*h}:{XF+4*dt+2*h+1}], v[{XF+4*dt+2*h}:{XF+4*dt+2*h+1}], v[{c+2*h}:{c+2*h+1}]")
    for k in range(10):
        a(f"v_cvt_pk_bf16_f32 v{XV+k}, v{XF+2*k}, v{XF+2*k+1}")
    a(f"""buffer_store_dwordx4 v[{XV}:{XV+3}], v{XA}, s[{SRD_W}:{SRD_W+3}], s64 offen
buffer_store_dwordx4 v[{XV+4}:{XV+7}], v{XA}, s[{SRD_W}:{SRD_W+3}], s64 offen offset:16
buffer_store_dwordx2 v[{XV+8}:{XV+9}], v{XA}, s[{SRD_W}:{SRD_W+3}], s64 offen offset:32""")
    stamp(a,3); stamp_flush(a,1)
    if PROF:
        lq_=a.newlabel("L_dbgx")
        a(f"""v_readlane_b32 s70, v255, 3
v_readlane_b32 s71, v255, 0
s_not_b32 s71, s71
v_mov_b32 v2, s70
v_mov_b32 v3, s71
v_mov_b32 v4, 8
v_mov_b32 v5, 20
s_mov_b64 exec, 1
buffer_atomic_umax v2, v4, s[{SRD_DBG}:{SRD_DBG+3}], 0 offen sc1
buffer_atomic_umax v3, v5, s[{SRD_DBG}:{SRD_DBG+3}], 0 offen sc1
s_mov_b64 exec, -1
s_or_b32 s70, s53, s{S_WAVE}
s_cmp_lg_u32 s70, 0
s_cbranch_scc1 {lq_}
v_lshlrev_b32 v2, 6, v1
v_mov_b32 v6, 0
v_mov_b32 v7, 0""")
        for i in range(32):
            a(f"""s_mov_b32 s70, {TS_OFF+4096*i}
buffer_load_dword v3, v2, s[{SRD_WS}:{SRD_WS+3}], s70 offen
buffer_load_dword v4, v2, s[{SRD_WS}:{SRD_WS+3}], s70 offen offset:32
s_waitcnt vmcnt(0)
v_not_b32 v3, v3
v_max_u32 v6, v6, v3
v_max_u32 v7, v7, v4""")
        a(f"""v_mov_b32 v4, 12
v_mov_b32 v5, 16
buffer_atomic_umax v7, v4, s[{SRD_DBG}:{SRD_DBG+3}], 0 offen sc1
buffer_atomic_umax v6, v5, s[{SRD_DBG}:{SRD_DBG+3}], 0 offen sc1
{lq_}:""")
    a("L_B_end:\ns_endpgm")
    return a.text(), LDS_A

HEADER = open("parallel_sum__ssm_conv_s4__dense_activation_mish__prompt.s.ref").read().split("; Override launch")[0]

def kd(name, vgpr, accum, sgpr=102):
    return f""".amdhsa_kernel {name}
  .amdhsa_next_free_vgpr {vgpr}
  .amdhsa_next_free_sgpr {sgpr}
  .amdhsa_accum_offset {accum}
  .amdhsa_group_segment_fixed_size 0
  .amdhsa_kernarg_size 128
  .amdhsa_user_sgpr_count 2
  .amdhsa_user_sgpr_kernarg_segment_ptr 1
  .amdhsa_system_sgpr_workgroup_id_x 1
.end_amdhsa_kernel
"""

def build(opt):
    A=gen_kernelA(opt); B,ldsB=gen_kernelB(opt)
    s=HEADER
    s+=f"; @launch kernel=stage_a_kernel grid=(512,1,1) block=(256,1,1) lds={LDS_A}\n"
    s+=f"; @launch kernel=stage_b_kernel grid=(512,1,1) block=(256,1,1) lds={ldsB}\n"
    if opt.get("rep2"): s+=f"; @launch kernel=stage_b_kernel grid=(512,1,1) block=(256,1,1) lds={ldsB}\n"
    s+='.amdgcn_target "amdgcn-amd-amdhsa--gfx950"\n.text\n'
    for name,body in (("stage_a_kernel",A),("stage_b_kernel",B)):
        s+=f".globl {name}\n.p2align 8\n.type {name},@function\n{name}:\n{body}"
    s+='.section .rodata,"a"\n.p2align 6\n'+kd("stage_a_kernel",256,256)+".p2align 6\n"+kd("stage_b_kernel",256,256)
    return s

if __name__=="__main__":
    opt={}
    out=sys.argv[1] if len(sys.argv)>1 else "parallel_sum__ssm_conv_s4__dense_activation_mish__prompt.s"
    for kv in sys.argv[2:]:
        k,v=kv.split("="); opt[k]=v
    PROF = opt.get("prof","0")=="1"
    NOWAIT = "only" in opt or "skip" in opt
    open(out,"w").write(build(opt))
    print("wrote",out)
```

```python
import sys, struct
from asmlib import Asm, VM

def f2u(x): return struct.unpack("<I", struct.pack("<f", x))[0]

GS      = 4160
G_OFF   = 0
ST_OFF  = 0x280000
FL_OFF  = 0x290000
Y_OFF   = 0x2B0000
W2F_OFF = 0x540000
ACT_OFF = 0x720000
KI_OFF  = 0xD20000
KIS     = 9216
WS_END  = 0x1500000
TS_OFF  = 0x1400000
TROW = 272
REG  = 17408
KC1  = 4576
YB   = 9120
U0   = 3*REG
UCH  = 8448
UC1  = 4224
LDS_A = 81920
LOG2E = 0x3fb8aa3b; LOG2E_LO = 0x32a5705f; LN2 = 0x3f317218

S_X=4; S_ARE=6; S_AIM=8; S_BRE=10; S_BIM=12; S_CRE=14; S_CIM=16; S_LDT=18
S_DSK=20; S_W1=24; S_B1=26; S_W2=28; S_OUT=30; S_DBG=32; S_WS=34
SRD_WS=36; SRD_X=40; SRD_W=44; SRD_DBG=48
S_WAVE=52
PROF=False
NOWAIT=False
FUSED=False
CWAIT=True
FLY=KI_OFF; FLW=KI_OFF+0x20000; FLA=KI_OFF+0x30000
SKIP=[]

def srd(a, dst, ptr, nbytes):
    a(f"""s_mov_b32 s{dst}, s{ptr}
s_and_b32 s{dst+1}, s{ptr+1}, 0xffff
s_mov_b32 s{dst+2}, {nbytes}
s_mov_b32 s{dst+3}, 0x00020000""")

def cmul(dst, z, m, t, conj=False):
    if not conj:
        return [f"v_pk_mul_f32 v[{t}:{t+1}], v[{z}:{z+1}], v[{m}:{m+1}] op_sel:[0,0] op_sel_hi:[0,1]",
                f"v_pk_fma_f32 v[{dst}:{dst+1}], v[{z}:{z+1}], v[{m}:{m+1}], v[{t}:{t+1}] op_sel:[1,1,0] op_sel_hi:[1,0,1] neg_lo:[0,1,0]"]
    return [f"v_pk_mul_f32 v[{t}:{t+1}], v[{z}:{z+1}], v[{m}:{m+1}] op_sel:[0,0] op_sel_hi:[0,1] neg_hi:[0,1]",
            f"v_pk_fma_f32 v[{dst}:{dst+1}], v[{z}:{z+1}], v[{m}:{m+1}], v[{t}:{t+1}] op_sel:[1,1,0] op_sel_hi:[1,0,1]"]

def stamp(a, idx, reg=255):
    if not PROF: return
    a(f"""s_memrealtime s[100:101]
s_waitcnt lgkmcnt(0)
v_writelane_b32 v{reg}, s100, {idx}""")
def stampc(a, idx, reg=255):
    if not PROF: return
    a(f"""s_memtime s[100:101]
s_waitcnt lgkmcnt(0)
v_writelane_b32 v{reg}, s100, {idx}""")
def stamp_flush(a, kern=0, reg=255, tmp=254):
    if not PROF: return
    stampc(a,15,reg)
    a(f"""s_lshl_b32 s100, s2, 2
s_add_u32 s100, s100, s{S_WAVE}
s_lshl_b32 s100, s100, 6
s_add_u32 s100, s100, {TS_OFF+kern*0x40000}
v_lshlrev_b32 v{tmp}, 2, v1
s_mov_b64 exec, 0xffff
buffer_store_dword v{reg}, v{tmp}, s[{SRD_WS}:{SRD_WS+3}], s100 offen
s_mov_b64 exec, -1""")

def get_epoch(a, vz, vt, sdst):
    lp=a.newlabel("L_ep"); ld=a.newlabel("L_epd")
    a(f"""s_mov_b32 s98, {1 if NOWAIT else 200000}
{lp}:
buffer_load_dword v{vt}, v{vz}, s[{SRD_DBG}:{SRD_DBG+3}], 0 offen sc0 sc1
s_waitcnt vmcnt(0)
v_readfirstlane_b32 s{sdst}, v{vt}
s_cmp_lg_u32 s{sdst}, 0
s_cbranch_scc1 {ld}
s_sleep 2
s_sub_u32 s98, s98, 1
s_cmp_lg_u32 s98, 0
s_cbranch_scc1 {lp}
{ld}:""")

def gen_kgen(a):
    RAW=2; P=14
    A2=20; B2=21; DT=22; VT=23
    Z=24; C=26; T=28; T2=30; E1=32; E2=34; E4=36; E8=38; E248=40; X=42; Y=43; S_=44; CO=45
    PKS=[46,47,48,49]; ONE=50
    FA=51; FB=52
    ACC=56
    FR=72
    arrs=[S_ARE,S_AIM,S_BRE,S_BIM,S_CRE,S_CIM]
    a(f"""s_mul_i32 s56, s54, 384
v_lshlrev_b32 v{X}, 2, v1
v_add_u32 v{X}, s56, v{X}
v_lshlrev_b32 v{Y}, 1, v1
v_add_u32 v{Y}, s56, v{Y}
s_lshr_b32 s57, s54, 1
s_lshl_b32 s57, s57, 2
s_load_dword s58, s[{S_LDT}:{S_LDT+1}], s57
s_load_dword s59, s[{S_DSK}:{S_DSK+1}], s57""")
    for i,s in enumerate(arrs):
        a(f"global_load_dword v{RAW+i}, v{X}, s[{s}:{s+1}]")
    for i in range(6): a(f"v_mov_b32 v{RAW+6+i}, 0")
    for i,s in enumerate(arrs):
        a(f"global_load_short_d16_hi v{RAW+6+i}, v{Y}, s[{s}:{s+1}] offset:256")
    a(f"""s_mov_b32 m0, s55
v_and_b32 v{FB}, 31, v1
v_mul_u32_u24 v{FB}, {TROW}, v{FB}
v_lshrrev_b32 v{FA}, 5, v1
v_lshlrev_b32 v{FA}, 4, v{FA}
v_add_u32 v{FB}, v{FB}, v{FA}
v_add_u32 v{FB}, s55, v{FB}
v_add_u32 v{FA}, {32*TROW}, v{FB}""")
    for i in range(16): a(f"v_mov_b32 v{ACC+i}, 0")
    a(f"""s_waitcnt lgkmcnt(0)
s_and_b32 s57, s54, 1
s_lshl_b32 s57, s57, 4
s_lshr_b32 s58, s58, s57
s_lshl_b32 s58, s58, 16
s_lshr_b32 s59, s59, s57
s_lshl_b32 s59, s59, 16
s_mov_b32 s60, 0x{LOG2E:08x}
s_mov_b32 s61, 0x{LOG2E_LO:08x}
s_mov_b32 s62, 0x{LN2:08x}
v_mov_b32 v{X}, s58
v_mul_f32 v{Y}, s60, v{X}
v_fma_f32 v{S_}, v{X}, s60, -v{Y}
v_fma_f32 v{S_}, v{X}, s61, v{S_}
v_exp_f32 v{Y}, v{Y}
v_mul_f32 v{S_}, s62, v{S_}
v_fma_f32 v{Y}, v{Y}, v{S_}, v{Y}
v_cvt_pk_bf16_f32 v{Y}, v{Y}, v{Y}
v_lshlrev_b32 v{DT}, 16, v{Y}
v_mov_b32 v{ONE}, 0x3f80
s_waitcnt vmcnt(6)""")
    stamp(a,1); stampc(a,2)
    DX=[136,137,138]; DY=[139,140,141]; DS=[142,143,144]; DC=[145,146,147]
    def setup(g):
        L=[]
        for i in range(6):
            if g==0: L.append(f"v_lshlrev_b32 v{P+i}, 16, v{RAW+i}")
            elif g==1: L.append(f"v_and_b32 v{P+i}, 0xffff0000, v{RAW+i}")
        src=[(P+i) if g<2 else (RAW+6+i) for i in range(6)]
        ar,ai,br,bi,cr,ci=src
        L+=[f"v_mul_f32 v{A2}, v{ar}, v{DT}", f"v_mul_f32 v{B2}, v{ai}, v{DT}",
            f"v_mul_f32 v{A2}, s60, v{A2}", f"v_mul_f32 v{B2}, 0.15915494, v{B2}"]
        lam=[1,8,248]; dst=[E1,E8,E248]
        for k in (1,2):
            L+=[f"v_mul_f32 v{DY[k]}, 0x{f2u(float(lam[k])):08x}, v{B2}", f"v_mul_f32 v{DX[k]}, 0x{f2u(float(lam[k])):08x}, v{A2}"]
        L+=[f"v_fract_f32 v{DY[0]}, v{B2}", f"v_fract_f32 v{DY[1]}, v{DY[1]}", f"v_fract_f32 v{DY[2]}, v{DY[2]}",
            f"v_exp_f32 v{DX[0]}, v{A2}", f"v_exp_f32 v{DX[1]}, v{DX[1]}", f"v_exp_f32 v{DX[2]}, v{DX[2]}"]
        for k in range(3): L+=[f"v_sin_f32 v{DS[k]}, v{DY[k]}", f"v_cos_f32 v{DC[k]}, v{DY[k]}"]
        L+=[f"v_mul_f32 v{Z}, v{cr}, v{br}", f"v_mul_f32 v{Z+1}, v{cr}, v{bi}",
            f"v_fma_f32 v{Z}, -v{ci}, v{bi}, v{Z}", f"v_fma_f32 v{Z+1}, v{ci}, v{br}, v{Z+1}",
            f"v_mul_f32 v{Z}, v{Z}, v{DT}", f"v_mul_f32 v{Z+1}, -v{Z+1}, v{DT}"]
        for k in range(3): L+=[f"v_mul_f32 v{dst[k]+1}, v{DX[k]}, v{DS[k]}", f"v_mul_f32 v{dst[k]}, v{DX[k]}, v{DC[k]}"]
        L+=cmul(E2,E1,E1,T)+cmul(E4,E2,E2,T)
        return L
    rowseq=[(E1,[1]),(E1,[2]),(E1,[3]),(E1,[4]),(E1,[5]),(E1,[6]),(E1,[7]),(E1,[]),
            (E248,[8]),(E2,[9]),(E2,[10,12]),(E2,[13]),(E2,[14]),
            (E248,[16]),(E4,[17,20]),(E4,[21]),(E248,[18]),(E4,[19,22]),(E4,[23]),
            (E248,[24]),(E8,[28]),(E248,[25]),(E8,[29]),(E248,[26]),(E8,[30]),(E248,[27]),(E8,[31])]
    for l in setup(0): a(l)
    pend=[]
    for g in range(3):
        if g==0: stampc(a,9)
        wq=[]
        pk=0
        def cvt(src, rows):
            nonlocal pk
            r=PKS[pk%4]; pk+=1
            a(f"v_cvt_pk_bf16_f32 v{r}, v{src}, v{src+1}")
            return [f"ds_write_addtid_b32 v{r} offset:{x*TROW}" for x in rows]
        a(f"ds_write_addtid_b32 v{ONE}")
        wq=cvt(Z,[32])+cvt(E8,[1])
        cur=E8
        for j in range(2,32):
            k=j-2
            c1=cmul(C,cur,E8,T); cur=C
            c2=cmul(Z,Z,rowseq[k][0],T2,conj=True) if k<len(rowseq) else []
            a(c1[0])
            if c2: a(c2[0])
            a(c1[1])
            if c2: a(c2[1])
            nq=cvt(C,[j])
            if c2 and rowseq[k][1]: nq+=cvt(Z,[32+r for r in rowseq[k][1]])
            while wq: a(wq.pop(0))
            if pend and j%3==0: a(pend.pop(0))
            wq=nq
        for w in wq: a(w)
        assert not pend
        if g==0: stampc(a,10)
        if g==1: a("s_waitcnt vmcnt(0)")
        a("s_waitcnt lgkmcnt(0)")
        for q in range(8):
            a(f"ds_read_b128 v[{FR+8*q}:{FR+8*q+3}], v{FA} offset:{32*q}")
            a(f"ds_read_b128 v[{FR+8*q+4}:{FR+8*q+7}], v{FB} offset:{32*q}")
        if g<2:
            for l in setup(g+1): a(l)
        a("s_waitcnt lgkmcnt(0)")
        stampc(a,11 if g==0 else (12 if g==1 else 13))
        pend=[f"v_mfma_f32_32x32x16_bf16 v[{ACC}:{ACC+15}], v[{FR+8*q}:{FR+8*q+3}], v[{FR+8*q+4}:{FR+8*q+7}], v[{ACC}:{ACC+15}]" for q in range(8)]
    for m in pend: a(m)
    a(f"""v_lshlrev_b32 v{Y}, 4, v1
s_lshl_b32 s56, s54, 11
s_add_u32 s56, s56, {KI_OFF}
s_mov_b64 exec, 1
v_add_f32 v{ACC}, s59, v{ACC}
s_mov_b64 exec, -1""")
    if FUSED:
        a("s_mov_b32 s65, s55")
        gen_kexpand(a, None, ACC, FR, X, Y, S_, CO, T)
        return
    for i in range(8): a(f"v_cvt_pk_bf16_f32 v{FR+i}, v{ACC+2*i}, v{ACC+2*i+1}")
    a(f"buffer_store_dwordx4 v[{FR}:{FR+3}], v{Y}, s[{SRD_WS}:{SRD_WS+3}], s56 offen sc0 sc1")
    a(f"buffer_store_dwordx4 v[{FR+4}:{FR+7}], v{Y}, s[{SRD_WS}:{SRD_WS+3}], s56 offen offset:1024 sc0 sc1")

def gen_kexpand(a, KP, ACC, Q, X, Y, S_, CO, Z):
    for i in range(4): a(f"v_mov_b32 v{Z+i}, 0")
    a(f"""v_lshlrev_b32 v{S_}, 4, v1
v_add_u32 v{S_}, s65, v{S_}
v_and_b32 v{X}, 31, v1
v_lshlrev_b32 v{X}, 4, v{X}
v_lshrrev_b32 v{Y}, 5, v1
v_lshlrev_b32 v{Y}, 3, v{Y}
v_add_u32 v{X}, v{X}, v{Y}
v_add_u32 v{X}, s65, v{X}
v_cmp_lt_u32 vcc, 31, v1
s_mov_b32 exec_hi, 0
ds_write_b128 v{S_}, v[{Z}:{Z+3}]
ds_write_b128 v{S_}, v[{Z}:{Z+3}] offset:{KC1}
s_mov_b64 exec, -1""")
    for i in range(8 if KP is not None else 0):
        a(f"v_lshlrev_b32 v{ACC+2*i}, 16, v{KP+i}")
        a(f"v_and_b32 v{ACC+2*i+1}, 0xffff0000, v{KP+i}")
    ac=lambda i: ACC+i
    a(f"v_cndmask_b32 v{S_}, v{ac(8)}, v{ac(9)}, vcc")
    a(f"v_cndmask_b32 v{CO}, v{ac(10)}, v{ac(11)}, vcc")
    blocks=[(0,[ac(0),ac(1),ac(2),ac(3)]),(256,[ac(4),ac(4),ac(5),ac(6)]),(512,[ac(8),ac(8),S_,ac(9)]),(768,[ac(10),ac(10),CO,ac(11)])]
    for n,(base,e) in enumerate(blocks):
        p=Q+4*n
        a(f"v_cvt_pk_bf16_f32 v{p}, v{e[0]}, v{e[1]}")
        a(f"v_cvt_pk_bf16_f32 v{p+1}, v{e[2]}, v{e[3]}")
        a(f"v_cvt_pk_bf16_f32 v{p+2}, v{e[1]}, v{e[2]}")
    for b in range(4):
        p=Q+16+2*b
        a(f"v_cvt_pk_bf16_f32 v{p}, v{ac(12+b)}, v{ac(12+b)}")
        a(f"v_mov_b32 v{p+1}, v{p}")
    for n,(base,e) in enumerate(blocks):
        p=Q+4*n
        a(f"ds_write_b64 v{X}, v[{p}:{p+1}] offset:{KC1+2*(base+224)}")
        a(f"ds_write_b16 v{X}, v{p} offset:{2*(base+225)}")
        a(f"ds_write_b32 v{X}, v{p+2} offset:{2*(base+226)}")
        a(f"ds_write_b16_d16_hi v{X}, v{p+1} offset:{2*(base+228)}")
    for b in range(4):
        p=Q+16+2*b; base=1024+256*b
        a(f"ds_write_b64 v{X}, v[{p}:{p+1}] offset:{KC1+2*(base+224)}")
        a(f"ds_write_b16 v{X}, v{p} offset:{2*(base+225)}")
        a(f"ds_write_b32 v{X}, v{p} offset:{2*(base+226)}")
        a(f"ds_write_b16 v{X}, v{p} offset:{2*(base+228)}")
    a("s_mov_b64 exec, 0x55555555")
    for b in range(4):
        p=Q+16+2*b
        a(f"ds_write_b16 v{X}, v{p} offset:{KC1+2*(1024+256*b+4+224)}")
        a(f"ds_write_b16 v{X}, v{p} offset:{2*(1024+256*b+4+225)}")
    a("s_mov_b64 exec, -1")

def gen_w2f(a):
    RAW=2; VA=100; VB=101; VC=102
    lx=a.newlabel("L_w2x")
    a(f"""s_mul_i32 s56, s54, 13108
s_lshr_b32 s56, s56, 16
s_mul_i32 s57, s56, 5
s_sub_u32 s57, s54, s57
s_cmp_ge_u32 s57, 3
s_cbranch_scc1 {lx}
s_mul_i32 s56, s56, 3
s_add_u32 s57, s56, s57
s_lshr_b32 s58, s57, 3
s_and_b32 s59, s57, 7
s_mul_i32 s60, s58, {32*1280}
s_mul_i32 s61, s59, 160
s_add_u32 s60, s60, s61
s_mul_i32 s59, s59, 48
s_add_u32 s59, s59, s58
s_mul_i32 s59, s59, 5120
s_add_u32 s68, s59, {W2F_OFF}""")
    for i in range(5):
        a(f"""v_add_u32 v{VA}, {64*i}, v1
v_mul_u32_u24 v{VB}, 6554, v{VA}
v_lshrrev_b32 v{VB}, 16, v{VB}
v_mul_u32_u24 v{VC}, 10, v{VB}
v_sub_u32 v{VC}, v{VA}, v{VC}
v_lshlrev_b32 v{VC}, 4, v{VC}
v_mul_u32_u24 v{VB}, 1280, v{VB}
v_add_u32 v{VB}, v{VB}, v{VC}
s_add_u32 m0, s55, {1024*i}
buffer_load_dwordx4 v{VB}, s[{SRD_W}:{SRD_W+3}], s60 offen lds""")
    a(f"""v_lshrrev_b32 v{VA}, 5, v1
v_lshlrev_b32 v{VA}, 4, v{VA}
v_bfe_u32 v{VB}, v1, 2, 3
v_add_u32 v{VA}, v{VA}, v{VB}
v_mul_u32_u24 v{VA}, 160, v{VA}
v_and_b32 v{VB}, 3, v1
v_mul_u32_u24 v{VB}, 40, v{VB}
v_add_u32 v{VA}, v{VA}, v{VB}
v_add_u32 v{VA}, s55, v{VA}
v_lshlrev_b32 v{VB}, 4, v1
v_add_u32 v{VC}, 4096, v{VB}
s_waitcnt vmcnt(0)""")
    for nt in range(5):
        r=RAW+4*nt
        a(f"ds_read_b64_tr_b16 v[{r}:{r+1}], v{VA} offset:{8*nt}")
        a(f"ds_read_b64_tr_b16 v[{r+2}:{r+3}], v{VA} offset:{8*nt+1280}")
    for nt in range(5):
        r=RAW+4*nt
        a(f"s_waitcnt lgkmcnt({2*(4-nt)})")
        if nt<4: a(f"buffer_store_dwordx4 v[{r}:{r+3}], v{VB}, s[{SRD_WS}:{SRD_WS+3}], s68 offen offset:{1024*nt} sc0 sc1")
        else: a(f"buffer_store_dwordx4 v[{r}:{r+3}], v{VC}, s[{SRD_WS}:{SRD_WS+3}], s68 offen sc0 sc1")
    a(f"{lx}:")

def gen_aux(a):
    RAW=2
    XC=130
    VA=200; VB=201; VC=202; VD=203; VZ=204; VX=205
    a(f"v_mov_b32 v{VZ}, 0")
    le=a.newlabel("L_noep")
    a(f"""s_cmp_lg_u32 s53, 0
s_cbranch_scc1 {le}
s_memrealtime s[56:57]
s_waitcnt lgkmcnt(0)
s_or_b32 s56, s56, 1
v_mov_b32 v{VA}, s56
s_mov_b64 exec, 1
buffer_store_dword v{VA}, v{VZ}, s[{SRD_DBG}:{SRD_DBG+3}], 0 offen sc0 sc1
s_mov_b64 exec, -1
{le}:""")
    a(f"""s_and_b32 s72, s53, 7
s_lshl_b32 s72, s72, 1
s_lshr_b32 s73, s53, 7
s_add_u32 s72, s72, s73
s_lshr_b32 s73, s53, 3
s_and_b32 s73, s73, 15
s_lshl_b32 s77, s72, 4
s_add_u32 s77, s77, s73
s_mul_i32 s56, s72, {128*1280}
s_mul_i32 s57, s73, 80
s_add_u32 s56, s56, s57""")
    for i in range(3):
        a(f"""v_add_u32 v{VA}, {64*i}, v1
v_mul_u32_u24 v{VB}, 10923, v{VA}
v_lshrrev_b32 v{VB}, 16, v{VB}
v_mul_u32_u24 v{VC}, 6, v{VB}
v_sub_u32 v{VC}, v{VA}, v{VC}
v_lshlrev_b32 v{VC}, 4, v{VC}
v_mul_u32_u24 v{VB}, 1280, v{VB}
v_add_u32 v{196+i}, v{VB}, v{VC}""")
    for qd in range(4):
        for i in range(3):
            a(f"s_mov_b32 m0, {U0+3072*qd+1024*i}")
            a(f"buffer_load_dwordx4 v{196+i}, s[{SRD_X}:{SRD_X+3}], s56 offen lds")
        if qd<3: a(f"s_add_u32 s56, s56, {32*1280}")
    LRW=2; XF=42; SM=122; TP=130
    a(f"v_mul_u32_u24 v{VA}, 20, v1\ns_mul_i32 s56, s77, {8*1280}")
    for r in range(8):
        a(f"buffer_load_dwordx4 v[{LRW+4*r}:{LRW+4*r+3}], v{VA}, s[{SRD_X}:{SRD_X+3}], s56 offen")
        a(f"buffer_load_dword v{LRW+32+r}, v{VA}, s[{SRD_X}:{SRD_X+3}], s56 offen offset:16")
        if r<7: a(f"s_add_u32 s56, s56, 1280")
    a(f"buffer_load_dword v{VD}, v{VZ}, s[{SRD_DBG}:{SRD_DBG+3}], 0 offen sc0 sc1")
    XR0=146
    a(f"""v_lshrrev_b32 v{VA}, 2, v1
v_mul_u32_u24 v{VA}, 96, v{VA}
v_and_b32 v{VB}, 3, v1
v_lshlrev_b32 v{VC}, 3, v{VB}
v_add_u32 v{VA}, v{VA}, v{VC}
v_add_u32 v{VA}, {U0}, v{VA}
v_and_b32 v196, 15, v1
v_lshlrev_b32 v196, 6, v196
v_lshrrev_b32 v197, 4, v1
v_lshlrev_b32 v197, 3, v197
v_add_u32 v196, v196, v197
v_add_u32 v196, {U0}, v196              ; b64 write addr
v_lshlrev_b32 v197, 4, v1
v_add_u32 v197, {U0}, v197
v_lshrrev_b32 v198, 2, v1
v_lshlrev_b32 v198, 12, v198
v_lshlrev_b32 v{VB}, 4, v{VB}
v_add_u32 v198, v198, v{VB}
s_mul_i32 s56, s73, {40*4096}
s_lshl_b32 s57, s72, 8
s_add_u32 s56, s56, s57
s_add_u32 s56, s56, {G_OFF}
s_add_u32 s57, s56, {16*4096}
s_add_u32 s58, s56, {32*4096}
s_waitcnt vmcnt(17)""")
    stamp(a,1)
    for half in range(2):
        for qd in (2*half,2*half+1):
            for hh in range(2):
                for ct in range(3):
                    r=XR0+12*(qd&1)+2*(3*hh+ct)
                    a(f"ds_read_b64_tr_b16 v[{r}:{r+1}], v{VA} offset:{3072*qd+hh*1536+ct*32}")
        a("s_waitcnt lgkmcnt(0)")
        for qd in (2*half,2*half+1):
            for hh in range(2):
                for ct in range(3):
                    r=XR0+12*(qd&1)+2*(3*hh+ct)
                    a(f"ds_write_b64 v196, v[{r}:{r+1}] offset:{3072*qd+ct*1024+hh*32}")
    a("s_waitcnt lgkmcnt(0)")
    for qd in range(4):
        for ct in range(3):
            r=XR0+12*qd+4*ct
            a(f"ds_read_b128 v[{r}:{r+3}], v197 offset:{3072*qd+ct*1024}")
    a("s_waitcnt vmcnt(0)")
    for qd in range(4):
        a(f"s_waitcnt lgkmcnt({3*(3-qd)})")
        for ct in range(3):
            r=XR0+12*qd+4*ct
            if ct==2: a("s_mov_b32 exec_hi, 0")
            a(f"buffer_store_dwordx4 v[{r}:{r+3}], v198, s[{SRD_WS}:{SRD_WS+3}], s{56+ct} offen offset:{64*qd} sc0 sc1")
            if ct==2: a("s_mov_b64 exec, -1")
    W2S=U0+12288
    if FUSED:
        for i in range(5):
            a(f"""v_add_u32 v{VA}, {64*i}, v1
v_mul_u32_u24 v{VB}, 6554, v{VA}
v_lshrrev_b32 v{VB}, 16, v{VB}
v_mul_u32_u24 v{VC}, 10, v{VB}
v_sub_u32 v{VC}, v{VA}, v{VC}
v_lshlrev_b32 v{VC}, 4, v{VC}
v_mul_u32_u24 v{VB}, 1280, v{VB}
v_add_u32 v{206+i}, v{VB}, v{VC}""")
        l1=a.newlabel("L_w1u")
        for n in range(2):
            if n==1: a(f"s_cmp_lt_u32 s53, 128\ns_cbranch_scc1 {l1}")
            a(f"""s_add_u32 s57, s53, {128*n}
s_lshr_b32 s58, s57, 3
s_and_b32 s59, s57, 7
s_mul_i32 s60, s58, {32*1280}
s_mul_i32 s61, s59, 160
s_add_u32 s60, s60, s61
s_mul_i32 s59, s59, 48
s_add_u32 s{68+n}, s59, s58""")
            for i in range(5):
                a(f"s_mov_b32 m0, {W2S+5120*n+1024*i}")
                a(f"buffer_load_dwordx4 v{206+i}, s[{SRD_W}:{SRD_W+3}], s60 offen lds")
        a(f"{l1}:")
    for r in range(8):
        for k in range(5):
            sr = LRW+4*r+k if k<4 else LRW+32+r
            a(f"v_lshlrev_b32 v{XF+10*r+2*k}, 16, v{sr}")
            a(f"v_and_b32 v{XF+10*r+2*k+1}, 0xffff0000, v{sr}")
    for r in range(8):
        b=XF+10*r; t=TP+2*r
        a(f"v_pk_add_f32 v[{t}:{t+1}], v[{b}:{b+1}], v[{b+2}:{b+3}]")
    for k in (4,6,8):
        for r in range(8):
            b=XF+10*r; t=TP+2*r
            a(f"v_pk_add_f32 v[{t}:{t+1}], v[{t}:{t+1}], v[{b+k}:{b+k+1}]")
    for r in range(8): a(f"v_add_f32 v{SM+r}, v{TP+2*r}, v{TP+2*r+1}")
    wave_sum(a,[SM+r for r in range(8)])
    for r in range(8): a(f"v_mul_f32 v{SM+r}, 0x{f2u(-1.0/640):08x}, v{SM+r}")
    for r in range(8): a(f"v_readlane_b32 s{78+2*r}, v{SM+r}, 63")
    for r in range(8):
        for k in range(5):
            b=XF+10*r+2*k
            a(f"v_pk_add_f32 v[{b}:{b+1}], v[{b}:{b+1}], s[{78+2*r}:{79+2*r}] op_sel_hi:[1,0]")
    for r in range(8):
        b=XF+10*r; t=TP+2*r
        a(f"v_pk_mul_f32 v[{t}:{t+1}], v[{b}:{b+1}], v[{b}:{b+1}]")
    for k in (2,4,6,8):
        for r in range(8):
            b=XF+10*r+k; t=TP+2*r
            a(f"v_pk_fma_f32 v[{t}:{t+1}], v[{b}:{b+1}], v[{b}:{b+1}], v[{t}:{t+1}]")
    for r in range(8): a(f"v_add_f32 v{SM+r}, v{TP+2*r}, v{TP+2*r+1}")
    wave_sum(a,[SM+r for r in range(8)])
    for r in range(8): a(f"v_readlane_b32 s{79+2*r}, v{SM+r}, 63")
    lk=a.newlabel("L_epk")
    a(f"""v_readfirstlane_b32 s67, v{VD}
s_cmp_lg_u32 s67, 0
s_cbranch_scc1 {lk}""")
    get_epoch(a,VZ,VD,67)
    a(f"""{lk}:
v_mov_b32 v{LRW+1}, s67
v_mov_b32 v{LRW+3}, s67
""")
    if FUSED:
        a(f"""s_lshl_b32 s56, s73, 4
s_add_u32 s56, s56, s72
s_lshl_b32 s56, s56, 7
s_add_u32 s56, s56, {FL_OFF}
s_waitcnt vmcnt(0)
s_mov_b64 exec, 1
buffer_store_dword v{LRW+1}, v{VZ}, s[{SRD_WS}:{SRD_WS+3}], s56 offen sc0 sc1
s_mov_b64 exec, -1""")
    for r in range(8):
        a(f"v_writelane_b32 v{LRW}, s{79+2*r}, {r}")
        a(f"v_writelane_b32 v{LRW+2}, s{78+2*r}, {r}")
    a(f"""s_mov_b32 s56, 0x{f2u(1.0/640):08x}
v_mov_b32 v{VB}, 0x{f2u(1e-5):08x}
v_fma_f32 v{LRW}, v{LRW}, s56, v{VB}
v_rsq_f32 v{LRW}, v{LRW}
v_lshlrev_b32 v{VB}, 4, v1
s_lshl_b32 s56, s77, 7
s_add_u32 s56, s56, {ST_OFF}
v_mul_f32 v{LRW+2}, v{LRW+2}, v{LRW}
s_mov_b64 exec, 0xff
buffer_store_dwordx4 v[{LRW}:{LRW+3}], v{VB}, s[{SRD_WS}:{SRD_WS+3}], s56 offen sc0 sc1
s_mov_b64 exec, -1""")
    stamp(a,2)
    if not FUSED: return
    WR_=42
    a(f"""v_lshrrev_b32 v{VA}, 5, v1
v_lshlrev_b32 v{VA}, 4, v{VA}
v_bfe_u32 v{VB}, v1, 2, 3
v_add_u32 v{VA}, v{VA}, v{VB}
v_mul_u32_u24 v{VA}, 160, v{VA}
v_and_b32 v{VB}, 3, v1
v_mul_u32_u24 v{VB}, 40, v{VB}
v_add_u32 v{VA}, v{VA}, v{VB}
v_add_u32 v{VA}, {W2S}, v{VA}
v_lshlrev_b32 v{VB}, 4, v1
v_add_u32 v{VC}, 4096, v{VB}""")
    l1=a.newlabel("L_w2u")
    for n in range(2):
        if n==1: a(f"s_cmp_lt_u32 s53, 128\ns_cbranch_scc1 {l1}")
        a(f"s_mul_i32 s56, s{68+n}, 5120\ns_add_u32 s56, s56, {W2F_OFF}")
        for nt in range(5):
            r=WR_+20*n+4*nt
            a(f"ds_read_b64_tr_b16 v[{r}:{r+1}], v{VA} offset:{5120*n+8*nt}")
            a(f"ds_read_b64_tr_b16 v[{r+2}:{r+3}], v{VA} offset:{5120*n+8*nt+1280}")
        for nt in range(5):
            r=WR_+20*n+4*nt
            a(f"s_waitcnt lgkmcnt({2*(4-nt)})")
            if nt<4: a(f"buffer_store_dwordx4 v[{r}:{r+3}], v{VB}, s[{SRD_WS}:{SRD_WS+3}], s56 offen offset:{1024*nt} sc0 sc1")
            else: a(f"buffer_store_dwordx4 v[{r}:{r+3}], v{VC}, s[{SRD_WS}:{SRD_WS+3}], s56 offen sc0 sc1")
    a(f"{l1}:")
    a(f"""s_mul_i32 s56, s64, 1639
s_lshr_b32 s56, s56, 16
s_add_u32 s57, s64, s63
s_sub_u32 s57, s57, 1
s_mul_i32 s57, s57, 1639
s_lshr_b32 s57, s57, 16
s_lshl_b32 s56, s56, 11
s_lshl_b32 s57, s57, 11
v_mov_b32 v{VB}, s56
v_mov_b32 v{VC}, s57
v_and_b32 v{VD}, 16, v1
v_cmp_eq_u32 vcc, 0, v{VD}
v_cndmask_b32 v{VB}, v{VC}, v{VB}, vcc
v_and_b32 v{VD}, 15, v1
v_lshlrev_b32 v{VD}, 7, v{VD}
v_add_u32 v{VB}, v{VB}, v{VD}
s_mov_b32 s56, {FL_OFF}
s_lshl_b32 s68, s68, 7
s_add_u32 s68, s68, {FLW}
s_lshl_b32 s69, s69, 7
s_add_u32 s69, s69, {FLW}
s_waitcnt vmcnt(0)
s_mov_b64 exec, 1
buffer_store_dword v{LRW+1}, v{VZ}, s[{SRD_WS}:{SRD_WS+3}], s68 offen sc0 sc1""")
    l2=a.newlabel("L_w3u")
    a(f"""s_cmp_lt_u32 s53, 128
s_cbranch_scc1 {l2}
buffer_store_dword v{LRW+1}, v{VZ}, s[{SRD_WS}:{SRD_WS+3}], s69 offen sc0 sc1
{l2}:
s_mov_b64 exec, -1
s_mov_b32 s98, {1 if NOWAIT else 200000}""")
    stamp(a,3)
    lp=a.newlabel("L_poll"); ld=a.newlabel("L_polld")
    a(f"""{lp}:
buffer_load_dword v{RAW+4}, v{VB}, s[{SRD_WS}:{SRD_WS+3}], s56 offen sc0 sc1
s_waitcnt vmcnt(0)
v_cmp_ne_u32 vcc, s67, v{RAW+4}
s_nop 1
s_cmp_eq_u64 vcc, 0
s_cbranch_scc1 {ld}
s_sleep 4
s_sub_u32 s98, s98, 1
s_cmp_lg_u32 s98, 0
s_cbranch_scc1 {lp}
{ld}:""")
    stamp(a,4)

def gen_stage_head(a):
    RAW=2
    XC=34
    VA=46; VB=47; VX=48; VZ=49; TT=50
    le=a.newlabel("L_noep")
    a(f"""v_mov_b32 v{VZ}, 0
s_or_b32 s56, s53, s{S_WAVE}
s_cmp_lg_u32 s56, 0
s_cbranch_scc1 {le}
s_memrealtime s[56:57]
s_waitcnt lgkmcnt(0)
s_or_b32 s56, s56, 1
v_mov_b32 v{VA}, s56
s_mov_b64 exec, 1
buffer_store_dword v{VA}, v{VZ}, s[{SRD_DBG}:{SRD_DBG+3}], 0 offen sc0 sc1
s_mov_b64 exec, -1
{le}:
v_sub_u32 v{VA}, 63, v1
v_lshlrev_b32 v{VX}, 2, v{VA}
v_lshlrev_b32 v{VA}, 5, v{VA}
s_lshl_b32 s56, s{S_WAVE}, 2
s_sub_u32 s56, 12, s56
s_lshl_b32 s57, s56, 11
s_add_u32 s57, s57, {ST_OFF}
s_lshl_b32 s58, s56, 8
s_lshl_b32 s59, s64, 12
s_add_u32 s58, s58, s59
s_add_u32 s58, s58, {G_OFF}
s_add_u32 s59, s58, 4096
s_add_u32 s60, s58, 8192
s_add_u32 s61, s57, 4096""")
    KP=80
    a(f"""v_lshlrev_b32 v{VB}, 4, v1
s_min_u32 s62, s{S_WAVE}, 2
s_add_u32 s62, s64, s62
s_lshl_b32 s62, s62, 11
s_add_u32 s62, s62, {KI_OFF}
s_mul_i32 s65, s{S_WAVE}, {REG}
buffer_load_dwordx4 v[{KP}:{KP+3}], v{VB}, s[{SRD_WS}:{SRD_WS+3}], s62 offen
buffer_load_dwordx4 v[{KP+4}:{KP+7}], v{VB}, s[{SRD_WS}:{SRD_WS+3}], s62 offen offset:1024""")
    for jj in range(4):
        o=2048*(3-jj); sb=57 if o<4096 else 61; o%=4096
        a(f"buffer_load_dwordx4 v[{RAW+8*jj}:{RAW+8*jj+3}], v{VA}, s[{SRD_WS}:{SRD_WS+3}], s{sb} offen offset:{o}")
        a(f"buffer_load_dwordx4 v[{RAW+8*jj+4}:{RAW+8*jj+7}], v{VA}, s[{SRD_WS}:{SRD_WS+3}], s{sb} offen offset:{o+16}")
        for k in range(3):
            a(f"buffer_load_dword v{XC+4*k+jj}, v{VX}, s[{SRD_WS}:{SRD_WS+3}], s{58+k} offen offset:{256*(3-jj)}")
    lk=a.newlabel("L_nok")
    a(f"""s_cmp_ge_u32 s{S_WAVE}, s63
s_cbranch_scc1 {lk}
s_waitcnt vmcnt(20)""")
    gen_kexpand(a, KP, 88, 104, 128, 129, 130, 131, 132)
    a(f"""{lk}:
v_add_u32 v{VB}, {U0}, v{VB}""")

def gen_stage(a):
    RAW=2; XC=34; VA=46; VB=47; VX=48; VZ=49; TT=50
    if FUSED:
        lr=a.newlabel("L_sret"); lg=a.newlabel("L_sgo")
        a(f"""v_mov_b32 v{VZ}, 0
v_sub_u32 v{VA}, 63, v1
v_lshlrev_b32 v{VX}, 2, v{VA}
v_lshlrev_b32 v{VA}, 5, v{VA}
s_lshl_b32 s56, s{S_WAVE}, 2
s_sub_u32 s56, 12, s56
s_lshl_b32 s57, s56, 11
s_add_u32 s57, s57, {ST_OFF}
s_lshl_b32 s58, s56, 8
s_lshl_b32 s59, s64, 12
s_add_u32 s58, s58, s59
s_add_u32 s58, s58, {G_OFF}
s_add_u32 s59, s58, 4096
s_add_u32 s60, s58, 8192
s_add_u32 s61, s57, 4096
v_lshlrev_b32 v{VB}, 4, v1
v_add_u32 v{VB}, {U0}, v{VB}
s_mov_b32 s98, {1 if NOWAIT else 200000}
s_waitcnt lgkmcnt(0)""")
        stamp(a,9)
        a("s_barrier")
        a(f"buffer_load_dword v{TT+24}, v{VZ}, s[{SRD_DBG}:{SRD_DBG+3}], 0 offen sc0 sc1")
        for jj in range(4):
            for k in range(3):
                a(f"buffer_load_dword v{XC+4*k+jj}, v{VX}, s[{SRD_WS}:{SRD_WS+3}], s{58+k} offen offset:{256*(3-jj)} sc0 sc1")
        a(f"{lr}:")
        for jj in range(4):
            o=2048*(3-jj); sb=57 if o<4096 else 61; o%=4096
            a(f"buffer_load_dwordx4 v[{RAW+8*jj}:{RAW+8*jj+3}], v{VA}, s[{SRD_WS}:{SRD_WS+3}], s{sb} offen offset:{o} sc0 sc1")
            a(f"buffer_load_dwordx4 v[{RAW+8*jj+4}:{RAW+8*jj+7}], v{VA}, s[{SRD_WS}:{SRD_WS+3}], s{sb} offen offset:{o+16} sc0 sc1")
        a(f"s_waitcnt vmcnt(0)\nv_readfirstlane_b32 s67, v{TT+24}\nv_mov_b32 v{TT}, 0")
        for i in range(8):
            r=RAW+4*i
            a(f"v_xor_b32 v{TT+1}, s67, v{r+1}\nv_xor_b32 v{TT+2}, s67, v{r+3}\nv_or3_b32 v{TT}, v{TT}, v{TT+1}, v{TT+2}")
        a(f"""v_cmp_ne_u32 vcc, 0, v{TT}
s_nop 1
s_cmp_eq_u64 vcc, 0
s_cbranch_scc1 {lg}
s_sub_u32 s98, s98, 1
s_cmp_eq_u32 s98, 0
s_cbranch_scc1 {lg}
s_sleep 4
s_branch {lr}
{lg}:""")
    else:
        gen_stage_head(a)
    for i in range(4): a(f"v_mov_b32 v{TT+20+i}, 0")
    lz=a.newlabel("L_noz")
    a(f"""s_cmp_lg_u32 s{S_WAVE}, 3
s_cbranch_scc1 {lz}
s_mov_b64 exec, 0xf""")
    for k in range(3):
        a(f"ds_write_b128 v{VB}, v[{TT+20}:{TT+23}] offset:{k*UCH+UC1+4096}")
        a(f"ds_write_b128 v{VB}, v[{TT+20}:{TT+23}] offset:{k*UCH+4096}")
    a(f"""s_mov_b64 exec, -1
{lz}:
s_lshl_b32 s56, s{S_WAVE}, 10
s_add_u32 s56, s56, {U0}
s_mov_b32 m0, s56
s_waitcnt vmcnt(0)""")
    stamp(a,1)
    for jj in range(4):
        r=RAW+8*jj; t=TT+9*(jj%2)
        for k in range(3):
            a(f"v_lshlrev_b32 v{t+2*k}, 16, v{XC+4*k+jj}")
            a(f"v_and_b32 v{t+2*k+1}, 0xffff0000, v{XC+4*k+jj}")
        for k in range(3):
            a(f"v_fma_f32 v{t+2*k}, v{t+2*k}, v{r}, v{r+2}")
            a(f"v_fma_f32 v{t+2*k+1}, v{t+2*k+1}, v{r+4}, v{r+6}")
        for k in range(3):
            a(f"v_cvt_pk_bf16_f32 v{t+6+k}, v{t+2*k+1}, v{t+2*k}")
        if jj>0:
            tp=TT+9*((jj-1)%2)
            for k in range(3):
                a(f"ds_write_addtid_b32 v{tp+6+k} offset:{k*UCH+UC1+256*(jj-1)}")
                a(f"ds_write_addtid_b32 v{tp+6+k} offset:{k*UCH+256*(jj-1)+4}")
    tp=TT+9
    for k in range(3):
        a(f"ds_write_addtid_b32 v{tp+6+k} offset:{k*UCH+UC1+256*3}")
        a(f"ds_write_addtid_b32 v{tp+6+k} offset:{k*UCH+256*3+4}")
    a(f"buffer_load_dword v7, v{VZ}, s[{SRD_DBG}:{SRD_DBG+3}], 0 offen sc0 sc1")

def gen_conv(a):
    VA0=2; VB0=3; VF=4; VAu=5; VBu=6; T=8
    ACC=12
    F=[44,108]
    a(f"""v_and_b32 v{T}, 15, v1
v_lshrrev_b32 v{T+1}, 4, v1
v_and_b32 v{T+2}, 1, v1
v_mul_u32_u24 v{VA0}, {KC1}, v{T+2}
v_lshrrev_b32 v{T+3}, 1, v{T}
v_lshlrev_b32 v{T+3}, 6, v{T+3}
v_add_u32 v{VA0}, v{VA0}, v{T+3}
v_lshlrev_b32 v{T+3}, 4, v{T+1}
v_add_u32 v{VA0}, v{VA0}, v{T+3}
v_mul_u32_u24 v{VB0}, {UC1}, v{T+2}
v_add_u32 v{VB0}, v{VB0}, v{T+3}
v_add_u32 v{T+3}, v{T}, v{T+2}
v_lshlrev_b32 v{T+3}, 2, v{T+3}
v_sub_u32 v{VB0}, v{VB0}, v{T+3}
v_add_u32 v{VB0}, {U0+2*(1824-1792)}, v{VB0}
v_lshlrev_b32 v{VF}, 4, v1
v_add_u32 v{VF}, {YB}, v{VF}
s_lshl_b32 s54, s63, 1
s_mul_i32 s55, s54, s{S_WAVE}
s_add_u32 s56, s55, s54""")
    for i in range(32): a(f"v_mov_b32 v{ACC+i}, 0")
    def addr(su):
        return f"""s_lshr_b32 s57, s{su}, 3
s_and_b32 s58, s{su}, 7
s_lshl_b32 s58, s58, 6
s_mul_i32 s59, s57, {REG}
s_mul_i32 s60, s57, {UCH}
s_add_u32 s59, s59, s58
s_add_u32 s60, s60, s58
v_add_u32 v{VAu}, s59, v{VA0}
v_add_u32 v{VBu}, s60, v{VB0}"""
    def reads(b):
        L=[]
        for k in range(8):
            L.append(f"ds_read_b128 v[{F[b]+4*k}:{F[b]+4*k+3}], v{VAu} offset:{512*k}")
            L.append(f"ds_read_b64 v[{F[b]+32+4*k}:{F[b]+32+4*k+1}], v{VBu} offset:{512*(7-k)}")
            L.append(f"ds_read_b64 v[{F[b]+32+4*k+2}:{F[b]+32+4*k+3}], v{VBu} offset:{512*(7-k)+8}")
        return L
    def mfmas(b):
        prs=[(i,c-i) for c in range(8) for i in range(c+1)]
        prs.sort(key=lambda p:(p[0], p[1]))
        return [f"v_mfma_f32_16x16x32_bf16 v[{ACC+4*(i+c)}:{ACC+4*(i+c)+3}], v[{F[b]+4*i}:{F[b]+4*i+3}], v[{F[b]+32+4*c}:{F[b]+32+4*c+3}], v[{ACC+4*(i+c)}:{ACC+4*(i+c)+3}]" for i,c in prs]
    if FUSED and CWAIT:
        lx_=a.newlabel("L_cw"); lp_=a.newlabel("L_cwp")
        a(f"""s_cmp_lg_u32 s{S_WAVE}, 3
s_cbranch_scc1 {lx_}
s_and_b32 s57, s53, 7
s_lshl_b32 s57, s57, 5
s_lshr_b32 s58, s53, 3
s_add_u32 s57, s57, s58
s_lshl_b32 s57, s57, 7
s_add_u32 s57, s57, {FLA}
v_mov_b32 v{T}, 64
s_mov_b32 s98, {1 if NOWAIT else 200000}
{lp_}:
buffer_load_dword v{T+1}, v{T}, s[{SRD_WS}:{SRD_WS+3}], s57 offen sc0 sc1
s_waitcnt vmcnt(0)
v_cmp_ne_u32 vcc, s67, v{T+1}
s_nop 1
s_cmp_eq_u64 vcc, 0
s_cbranch_scc1 {lx_}
s_sub_u32 s98, s98, 1
s_cmp_eq_u32 s98, 0
s_cbranch_scc1 {lx_}
s_sleep 4
s_branch {lp_}
{lx_}:""")
    a("s_waitcnt lgkmcnt(0)")
    stamp(a,5)
    a("s_barrier")
    stamp(a,6)
    a(addr(55))
    for l in reads(0): a(l)
    lloop=a.newlabel("L_cv"); lfl=a.newlabel("L_fl"); lend=a.newlabel("L_cve"); lnofl=a.newlabel("L_nofl")
    a(f"{lloop}:")
    for b in range(2):
        a("s_add_u32 s55, s55, 1")
        a(addr(55))
        a("s_waitcnt lgkmcnt(0)")
        rd=reads(1-b); mf=mfmas(b)
        while mf:
            a(mf.pop(0))
            if rd: a(rd.pop(0))
            if mf and len(rd)<=12:
                a(mf.pop(0))
    a(f"""s_cmp_eq_u32 s55, s56
s_cbranch_scc1 {lend}
s_and_b32 s58, s55, 7
s_cmp_lg_u32 s58, 0
s_cbranch_scc1 {lloop}
s_lshr_b32 s57, s55, 3
s_sub_u32 s57, s57, 1
s_mul_i32 s57, s57, {REG}
v_add_u32 v{T}, s57, v{VF}""")
    a.nop(6)
    for c in range(8): a(f"ds_write_b128 v{T}, v[{ACC+4*c}:{ACC+4*c+3}] offset:{1024*c}")
    for i in range(32): a(f"v_mov_b32 v{ACC+i}, 0")
    a(f"""s_branch {lloop}
{lend}:
s_setprio 3
s_sub_u32 s57, s56, 1
s_lshr_b32 s57, s57, 3
s_mul_i32 s58, s57, {REG}
v_add_u32 v{T}, s58, v{VF}
s_and_b32 s59, s{S_WAVE}, 1
s_cmp_eq_u32 s{S_WAVE}, 2
s_cselect_b32 s60, 1, 0
s_cmp_eq_u32 s63, 3
s_cselect_b32 s59, s60, s59
s_cmp_eq_u32 s59, 0
s_cbranch_scc1 {lnofl}""")
    a.nop(9)
    for c in range(8): a(f"ds_write_b128 v{T}, v[{ACC+4*c}:{ACC+4*c+3}] offset:{1024*c}")
    a(f"""{lnofl}:
s_waitcnt lgkmcnt(0)""")
    stamp(a,7)
    lx=a.newlabel("L_cvx")
    a(f"""s_barrier
s_cmp_lg_u32 s59, 0
s_cbranch_scc1 {lx}""")
    P=F[0]
    for c in range(8): a(f"ds_read_b128 v[{P+4*c}:{P+4*c+3}], v{T} offset:{1024*c}")
    a(f"""v_lshrrev_b32 v{T+1}, 4, v1
v_lshlrev_b32 v{T+1}, 7, v{T+1}
v_and_b32 v{T+2}, 15, v1
v_lshlrev_b32 v{T+2}, 2, v{T+2}
v_add_u32 v{T+1}, v{T+2}, v{T+1}
s_add_u32 s61, s57, s64
s_mul_i32 s57, s61, {GS}
s_add_u32 s57, s57, {Y_OFF}""")
    for c in range(8):
        a(f"s_waitcnt lgkmcnt({7-c})")
        a(f"v_pk_add_f32 v[{P+4*c}:{P+4*c+1}], v[{P+4*c}:{P+4*c+1}], v[{ACC+4*c}:{ACC+4*c+1}]")
        a(f"v_pk_add_f32 v[{P+4*c+2}:{P+4*c+3}], v[{P+4*c+2}:{P+4*c+3}], v[{ACC+4*c+2}:{ACC+4*c+3}]")
        a(f"v_cvt_pk_bf16_f32 v{ACC+4*c}, v{P+4*c}, v{P+4*c+1}")
        a(f"v_cvt_pk_bf16_f32 v{ACC+4*c+1}, v{P+4*c+2}, v{P+4*c+3}")
        if c>0:
            a(f"buffer_store_dword v{ACC+4*(c-1)}, v{T+1}, s[{SRD_WS}:{SRD_WS+3}], s57 offen offset:{512*(c-1)} sc0 sc1")
            a(f"buffer_store_dword v{ACC+4*(c-1)+1}, v{T+1}, s[{SRD_WS}:{SRD_WS+3}], s57 offen offset:{512*(c-1)+64} sc0 sc1")
    a(f"buffer_store_dword v{ACC+28}, v{T+1}, s[{SRD_WS}:{SRD_WS+3}], s57 offen offset:{512*7} sc0 sc1")
    a(f"buffer_store_dword v{ACC+29}, v{T+1}, s[{SRD_WS}:{SRD_WS+3}], s57 offen offset:{512*7+64} sc0 sc1")
    lk=a.newlabel("L_cepk")
    a(f"""v_mov_b32 v{T}, 0
s_waitcnt vmcnt(0)
v_readfirstlane_b32 s67, v7
s_cmp_lg_u32 s67, 0
s_cbranch_scc1 {lk}""")
    get_epoch(a,T,7,67)
    a(f"""{lk}:
s_lshl_b32 s61, s61, 7
s_add_u32 s61, s61, {FLY if FUSED else FL_OFF}
v_mov_b32 v7, s67
s_mov_b64 exec, 1
buffer_store_dword v7, v{T}, s[{SRD_WS}:{SRD_WS+3}], s61 offen sc0 sc1
s_mov_b64 exec, -1""")
    a(f"{lx}:")

def wave_sum(a, regs):
    for mod in ("row_shr:1","row_shr:2","row_shr:4","row_shr:8"):
        for r in regs:
            a(f"v_add_f32_dpp v{r}, v{r}, v{r} {mod} row_mask:0xf bank_mask:0xf bound_ctrl:1")
    for r in regs:
        a(f"v_add_f32_dpp v{r}, v{r}, v{r} row_bcast:15 row_mask:0xa bank_mask:0xf")
    for r in regs:
        a(f"v_add_f32_dpp v{r}, v{r}, v{r} row_bcast:31 row_mask:0xc bank_mask:0xf")

def gen_gemm1(a, opt):
    NXS=7; WR=4
    XL=WR*12288
    XG=2; XW=3; XR=4; WS=5; WRD=8; T=11
    VZ=15; ONES=16; ACC=20; CS=68; FR=84; XS=132; EP=244; STR=246
    B1R=250
    vm=VM(a)
    a("s_and_b32 s53, s2, 255\ns_and_b32 s54, s53, 7\ns_lshr_b32 s55, s53, 3")
    if opt.get("map1","loc")=="loc":
        a("s_lshl_b32 s56, s54, 1\ns_lshr_b32 s57, s55, 4\ns_add_u32 s56, s56, s57\ns_and_b32 s57, s55, 15")
    else:
        a("""s_and_b32 s56, s54, 3
s_lshl_b32 s56, s56, 2
s_lshr_b32 s57, s55, 3
s_add_u32 s56, s56, s57
s_lshr_b32 s57, s54, 2
s_lshl_b32 s57, s57, 3
s_and_b32 s58, s55, 7
s_add_u32 s57, s57, s58""")
    a(f"""s_lshl_b32 s60, s56, 7
s_lshl_b32 s61, s{S_WAVE}, 5
s_add_u32 s60, s60, s61
s_mul_i32 s61, s60, 1280
v_lshrrev_b32 v{T}, 3, v1
v_mul_u32_u24 v{XG}, 1280, v{T}
v_and_b32 v{T+1}, 7, v1
v_lshlrev_b32 v{T+2}, 4, v{T+1}
v_add_u32 v{XG}, v{XG}, v{T+2}
v_add_u32 v{XG}, s61, v{XG}""")
    ROT=opt.get("rot","2")
    if opt.get("map1","loc")=="loc":
        a("s_and_b32 s70, s56, 1\ns_mul_i32 s70, s70, 5\ns_add_u32 s70, s70, s57")
    else:
        a("s_and_b32 s70, s56, 3\ns_mul_i32 s70, s70, 3\ns_and_b32 s71, s57, 7\ns_add_u32 s70, s70, s71")
    if ROT=="2": a("s_add_u32 s70, s70, s54")
    if ROT=="0": a("s_mov_b32 s70, 0")
    a("""s_mul_i32 s71, s70, 6554
s_lshr_b32 s71, s71, 16
s_mul_i32 s71, s71, 10
s_sub_u32 s70, s70, s71
s_lshl_b32 s70, s70, 7""")
    for S in range(10):
        a(f"""s_add_u32 s71, s70, {128*S}
s_sub_u32 s72, s71, 1280
s_cmp_ge_u32 s71, 1280
s_cselect_b32 s{80+S}, s72, s71""")
    items=[]
    for S in range(10):
        items+=[("x",S,0),("w",S,0),("x",S,1),("w",S,1),("x",S,2),("w",S,2),("x",S,3)]
    st={"wr":-1,"bar":-1,"wok":False}
    def can(it):
        k,n,_=it
        if k=="x": return n-NXS<=st["wr"]
        if not st["wok"]: return False
        return n<WR or st["bar"]>=n-WR+1
    def pump(n=1):
        c=0
        while c<n:
            idx=next((i for i,it in enumerate(items) if can(it)),None)
            if idx is None: return
            k,m,h=items.pop(idx)
            if k=="x":
                r=XS+16*(m%NXS)+4*h
                a(f"s_add_u32 s65, s{80+m}, {h*8*1280}")
                a(f"buffer_load_dwordx4 v[{r}:{r+3}], v{XG}, s[{SRD_X}:{SRD_X+3}], s65 offen")
            else:
                a(f"s_mul_i32 s65, s{80+m}, 1536")
                a(f"s_add_u32 m0, s64, {(m%WR)*12288+1024*h}")
                a(f"buffer_load_dwordx4 v{WS+h}, s[{SRD_W}:{SRD_W+3}], s65 offen lds")
            vm.issue((k,m)); c+=1
    def spaced(lines, every):
        for i,l in enumerate(lines):
            a(l)
            if every and i%every==every-1: pump(1)
    pump(4)
    a(f"s_mul_i32 s62, s57, 192\ns_mul_i32 s63, s{S_WAVE}, {16*3072}\ns_add_u32 s62, s62, s63\ns_mul_i32 s64, s{S_WAVE}, 3072")
    for i in range(3):
        a(f"""v_add_u32 v{T}, {64*i}, v1
v_mul_u32_u24 v{T+1}, 5462, v{T}
v_lshrrev_b32 v{T+1}, 16, v{T+1}
v_mul_u32_u24 v{T+2}, 12, v{T+1}
v_sub_u32 v{T+2}, v{T}, v{T+2}
v_lshlrev_b32 v{T+2}, 4, v{T+2}
v_mul_u32_u24 v{T+1}, 3072, v{T+1}
v_add_u32 v{T+1}, v{T+1}, v{T+2}
v_add_u32 v{WS+i}, s62, v{T+1}""")
    st["wok"]=True
    pump(3)
    setup=f"""s_lshl_b32 s66, s{S_WAVE}, 13
s_add_u32 s66, s66, {XL}
v_lshrrev_b32 v{T}, 3, v1
v_lshrrev_b32 v{T+1}, 1, v{T}
v_and_b32 v{T+2}, 7, v1
v_xor_b32 v{T+1}, v{T+1}, v{T+2}
v_lshlrev_b32 v{T+1}, 4, v{T+1}
v_lshlrev_b32 v{T}, 7, v{T}
v_add_u32 v{XW}, v{T}, v{T+1}
v_add_u32 v{XW}, s66, v{XW}
v_and_b32 v{T}, 31, v1
v_bfe_u32 v{T+1}, v1, 1, 3
v_lshrrev_b32 v{T+2}, 5, v1
v_xor_b32 v{T+1}, v{T+1}, v{T+2}
v_lshlrev_b32 v{T+1}, 4, v{T+1}
v_lshlrev_b32 v{T}, 7, v{T}
v_add_u32 v{XR}, v{T}, v{T+1}
v_add_u32 v{XR}, s66, v{XR}
s_cmp_eq_u32 s{S_WAVE}, 3
s_cselect_b32 s67, 0, s{S_WAVE}
s_add_u32 s68, s67, 1
s_cmp_eq_u32 s68, 3
s_cselect_b32 s68, 0, s68
s_add_u32 s69, s68, 1
s_cmp_eq_u32 s69, 3
s_cselect_b32 s69, 0, s69
v_lshrrev_b32 v{T}, 5, v1
v_lshlrev_b32 v{T}, 3, v{T}
v_bfe_u32 v{T+1}, v1, 2, 2
v_add_u32 v{T}, v{T}, v{T+1}
v_mul_u32_u24 v{T}, 192, v{T}
v_bfe_u32 v{T+1}, v1, 4, 1
v_lshlrev_b32 v{T+1}, 5, v{T+1}
v_add_u32 v{T}, v{T}, v{T+1}
v_and_b32 v{T+1}, 3, v1
v_lshlrev_b32 v{T+1}, 3, v{T+1}
v_add_u32 v{T}, v{T}, v{T+1}
v_mov_b32 v{VZ}, 0""".split("\n")
    for ft in range(3):
        setup+=[f"s_lshl_b32 s71, s{67+ft}, 6", f"v_add_u32 v{WRD+ft}, s71, v{T}"]
    setup+=[f"v_mov_b32 v{ONES+i}, 0x3f803f80" for i in range(4)]+[f"v_mov_b32 v{ACC+i}, 0" for i in range(64)]
    spaced(setup, int(opt.get("e1",16)))
    def wrx(S,h):
        assert not any(it[0]=="x" and it[1]==S for it in items), ("x not issued",S)
        if h==0: vm.wait_for(("x",S))
        r=XS+16*(S%NXS)+4*h
        a(f"ds_write_b128 v{XW if h%2==0 else F2}, v[{r}:{r+3}] offset:{(S&1)*4096+1024*h}")
        if h==3: st["wr"]=S
    F2=251
    a(f"v_xor_b32 v{F2}, 64, v{XW}")
    def reads(u):
        S=u//4; ks=u%4; fb=FR+16*(u%3)
        wo=(S%WR)*12288+ks*16*192
        out=[f"ds_read_b128 v[{fb+12}:{fb+15}], v{XRK[ks]} offset:{(S&1)*4096}"]
        for i in range(3):
            out.append(f"ds_read_b64_tr_b16 v[{fb+4*i}:{fb+4*i+1}], v{WRD+i} offset:{wo}")
            out.append(f"ds_read_b64_tr_b16 v[{fb+4*i+2}:{fb+4*i+3}], v{WRD+i} offset:{wo+768}")
        return out
    XRK=[XR,252,253,254]
    for ks in range(1,4): a(f"v_xor_b32 v{XRK[ks]}, {32*ks}, v{XR}")
    def mfmas(u):
        fb=FR+16*(u%3); out=[]
        for ft in range(3):
            c=ACC+16*ft
            out.append(f"v_mfma_f32_32x32x16_bf16 v[{c}:{c+15}], v[{fb+4*ft}:{fb+4*ft+3}], v[{fb+12}:{fb+15}], v[{c}:{c+15}]")
        out.append(f"v_mfma_f32_32x32x16_bf16 v[{CS}:{CS+15}], v[{fb}:{fb+3}], v[{ONES}:{ONES+3}], v[{CS}:{CS+15}]")
        return out
    for h in range(4): wrx(0,h)
    vm.wait_for(("w",0))
    a("s_waitcnt lgkmcnt(0)\ns_barrier")
    st["bar"]=0
    stamp(a,1)
    for l in reads(0)+reads(1): a(l)
    pump(2)
    Q=int(opt.get("q",2))
    lq=14
    for u in range(40):
        S=u//4; ks=u%4
        if u==20: stamp(a,2)
        PU=int(opt.get("pu",28))
        if PROF and PU<=u<PU+4: a(f"s_memtime s[{90+2*(u-PU)}:{91+2*(u-PU)}]")
        if PROF and u==PU+4:
            a("s_memtime s[70:71]\ns_waitcnt lgkmcnt(0)")
            for i in range(1,4): a(f"s_sub_u32 s{90+2*i}, s{90+2*i}, s90\nv_writelane_b32 v255, s{90+2*i}, {8+i}")
            a("s_sub_u32 s70, s70, s90\nv_writelane_b32 v255, s70, 12")
        nb = (u+2)<40
        isbar = nb and (u+2)%4==0
        mf=mfmas(u); rd=reads(u+2) if nb else []
        a(f"s_waitcnt lgkmcnt({min(15,st.get('after',7))})")
        Sw=(u+6)//4; hw=(u+6)%4
        wr=[(Sw,hw)] if Sw<10 else []
        if u<2: wr=[(1,2*u),(1,2*u+1)]
        after=0
        q=Q
        for i in range(4):
            a(mf[i])
            if isbar:
                if i==0 and q>0: pump(1); q-=1
                if i==1:
                    assert not any(it[0]=="w" and it[1]==S+1 for it in items), ("w not issued",S+1)
                    vm.wait_for(("w",S+1))
                    a("s_waitcnt lgkmcnt(0)\ns_barrier")
                    st["bar"]=S+1; after=0
                nr = 0 if i<1 else (3 if i<3 else 1)
            else:
                nr = 2
            for _ in range(nr):
                if rd: a(rd.pop(0)); after+=1
            if not isbar and q>0 and i in (1,2): pump(1); q-=1
            if isbar and i==2 and q>0: pump(1); q-=1
            if (i==3 or (i==2 and len(wr)>1)) and wr:
                wrx(*wr.pop(0)); after+=1
        assert not rd and not wr
        st["after"]=after; lq=1
        if u==24:
            a(f"buffer_load_dword v{EP}, v{VZ}, s[{SRD_DBG}:{SRD_DBG+3}], 0 offen sc0 sc1"); vm.issue("ep")
            a(f"""v_lshlrev_b32 v{T}, 2, v1
s_mul_i32 s70, s57, 192
v_add_u32 v{T}, s70, v{T}
global_load_dword v{B1R}, v{T}, s[{S_B1}:{S_B1+1}]""".replace("v_lshlrev_b32 v%d, 2, v1"%T, "v_min_u32 v%d, 47, v1\nv_lshlrev_b32 v%d, 2, v%d"%(T,T,T)))
            vm.issue("b1")
        if u==int(opt.get("hint",99)) and FUSED:
            lh=a.newlabel("L_hint")
            vm.wait_for("ep")
            a(f"""v_readfirstlane_b32 s76, v{EP}
s_lshl_b32 s72, s56, 4
s_add_u32 s72, s72, s57
s_lshl_b32 s72, s72, 7
s_add_u32 s72, s72, {FLA+64}
s_cmp_lg_u32 s{S_WAVE}, 0
s_cbranch_scc1 {lh}
s_mov_b64 exec, 1
buffer_store_dword v{EP}, v{VZ}, s[{SRD_WS}:{SRD_WS+3}], s72 offen sc0 sc1
s_mov_b64 exec, -1
{lh}:""")
        if u==34:
            a(f"""v_and_b32 v{T+1}, 31, v1
v_lshlrev_b32 v{T+1}, 4, v{T+1}
s_lshl_b32 s71, s60, 4
s_add_u32 s71, s71, {ST_OFF}
buffer_load_dwordx4 v[{STR}:{STR+3}], v{T+1}, s[{SRD_WS}:{SRD_WS+3}], s71 offen sc0 sc1""")
            vm.issue("st")
    assert not items
    stamp(a,3)
    CSL=XL+16384; B1L=CSL+512
    lk=a.newlabel("L_gek"); lp=a.newlabel("L_gp"); ld=a.newlabel("L_gpd")
    a(f"""s_waitcnt vmcnt(0)
v_lshrrev_b32 v{T}, 5, v1
v_lshlrev_b32 v{T}, 4, v{T}                ; 16h
s_lshl_b32 s70, s67, 7
s_add_u32 s70, s70, {CSL}
v_add_u32 v{T+2}, s70, v{T}
v_lshlrev_b32 v{FR}, 16, v{B1R}
v_and_b32 v{FR+1}, 0xffff0000, v{B1R}
v_lshlrev_b32 v{T+3}, 3, v1
v_add_u32 v{T+3}, {B1L}, v{T+3}
v_readfirstlane_b32 s76, v{EP}
s_mov_b32 exec_lo, 1
s_mov_b32 exec_hi, 1""")
    for q_ in range(4): a(f"ds_write_b128 v{T+2}, v[{CS+4*q_}:{CS+4*q_+3}] offset:{32*q_}")
    a(f"""s_mov_b32 exec_lo, -1
s_mov_b32 exec_hi, 0xffff
ds_write_b64 v{T+3}, v[{FR}:{FR+1}]
s_mov_b64 exec, -1
s_cmp_lg_u32 s76, 0
s_cbranch_scc1 {lk}""")
    get_epoch(a,VZ,EP,76)
    a(f"""{lk}:
s_mov_b32 s98, {1 if NOWAIT else 200000}
{lp}:
v_xor_b32 v{T+2}, s76, v{STR+1}
v_xor_b32 v{T+3}, s76, v{STR+3}
v_or_b32 v{T+2}, v{T+2}, v{T+3}
v_cmp_ne_u32 vcc, 0, v{T+2}
s_nop 1
s_cmp_eq_u64 vcc, 0
s_cbranch_scc1 {ld}
s_sub_u32 s98, s98, 1
s_cmp_eq_u32 s98, 0
s_cbranch_scc1 {ld}
s_sleep 2
buffer_load_dwordx4 v[{STR}:{STR+3}], v{T+1}, s[{SRD_WS}:{SRD_WS+3}], s71 offen sc0 sc1
s_waitcnt vmcnt(0)
s_branch {lp}
{ld}:
s_waitcnt lgkmcnt(0)
s_barrier""")
    stamp(a,4)
    if FUSED:
        a(f"""v_min_u32 v{T+1}, 11, v1
v_lshlrev_b32 v{T+1}, 7, v{T+1}
s_and_b32 s73, s55, 7
s_mul_i32 s73, s73, 48
s_mul_i32 s72, s{S_WAVE}, 12
s_add_u32 s73, s73, s72
s_lshl_b32 s73, s73, 7
s_add_u32 s73, s73, {FLW}
buffer_load_dword v252, v{T+1}, s[{SRD_WS}:{SRD_WS+3}], s73 offen sc0 sc1""")
    CV=XS
    BV=XS+48
    H=FR
    OUT=XS+96
    for ft in range(3):
        a(f"s_lshl_b32 s70, s{67+ft}, 7\ns_add_u32 s70, s70, {CSL}\nv_add_u32 v{T+2}, s70, v{T}")
        for q_ in range(4):
            a(f"ds_read_b128 v[{CV+16*ft+4*q_}:{CV+16*ft+4*q_+3}], v{T+2} offset:{32*q_}")
            a(f"ds_read_b128 v[{BV+16*ft+4*q_}:{BV+16*ft+4*q_+3}], v{T+2} offset:{512+32*q_}")
    a(f"""s_lshl_b32 s70, s56, 1
s_lshr_b32 s71, s{S_WAVE}, 1
s_add_u32 s70, s70, s71
s_mul_i32 s70, s70, 48
s_mul_i32 s71, s57, 3
s_add_u32 s70, s70, s71
s_and_b32 s71, s{S_WAVE}, 1
s_lshl_b32 s71, s71, 11
s_add_u32 s71, s71, {ACT_OFF}
v_and_b32 v{T+2}, 15, v1
v_lshlrev_b32 v{T+2}, 4, v{T+2}
v_lshlrev_b32 v{T+3}, 4, v{T}
v_add_u32 v{T+2}, v{T+2}, v{T+3}
v_bfe_u32 v{T+3}, v1, 4, 1
v_lshlrev_b32 v{T+3}, 10, v{T+3}
v_add_u32 v{T+2}, v{T+2}, v{T+3}
s_mov_b32 s74, 0x{LOG2E:08x}
s_mov_b32 s75, 0x{LOG2E:08x}
s_mov_b32 s78, 0x{f2u(28.0):08x}""")
    for ft in range(3):
        a(f"""s_add_u32 s72, s70, s{67+ft}
s_lshl_b32 s72, s72, 12
s_add_u32 s72, s72, s71
s_waitcnt lgkmcnt({min(15,8*(2-ft))})""")
        o=OUT+8*(ft&1)
        if FUSED and ft==int(opt.get("hinte",2)):
            lh=a.newlabel("L_hint")
            a(f"""s_lshl_b32 s73, s56, 4
s_add_u32 s73, s73, s57
s_lshl_b32 s73, s73, 7
s_add_u32 s73, s73, {FLA+64}
v_mov_b32 v{EP}, s76
s_cmp_lg_u32 s{S_WAVE}, 0
s_cbranch_scc1 {lh}
s_mov_b64 exec, 1
buffer_store_dword v{EP}, v{VZ}, s[{SRD_WS}:{SRD_WS+3}], s73 offen sc0 sc1
s_mov_b64 exec, -1
{lh}:""")
        stages=[
          lambda k,h,e,d,c: [f"v_pk_fma_f32 v[{h}:{h+1}], v[{CV+16*ft+2*k}:{CV+16*ft+2*k+1}], v[{STR+2}:{STR+3}], v[{BV+16*ft+2*k}:{BV+16*ft+2*k+1}] op_sel:[0,0,0] op_sel_hi:[1,0,1]"],
          lambda k,h,e,d,c: [f"v_pk_fma_f32 v[{h}:{h+1}], v[{c}:{c+1}], v[{STR}:{STR+1}], v[{h}:{h+1}] op_sel:[0,0,0] op_sel_hi:[1,0,1]"],
          lambda k,h,e,d,c: [f"v_pk_mul_f32 v[{e}:{e+1}], v[{h}:{h+1}], s[74:75]"],
          lambda k,h,e,d,c: [f"v_min_f32 v{e}, s78, v{e}", f"v_min_f32 v{e+1}, s78, v{e+1}"],
          lambda k,h,e,d,c: [f"v_exp_f32 v{e}, v{e}", f"v_exp_f32 v{e+1}, v{e+1}"],
          lambda k,h,e,d,c: [f"v_pk_add_f32 v[{d}:{d+1}], v[{e}:{e+1}], 2.0 op_sel_hi:[1,0]"],
          lambda k,h,e,d,c: [f"v_pk_fma_f32 v[{d}:{d+1}], v[{e}:{e+1}], v[{d}:{d+1}], 2.0 op_sel_hi:[1,1,0]"],
          lambda k,h,e,d,c: [f"v_rcp_f32 v{d}, v{d}", f"v_rcp_f32 v{d+1}, v{d+1}"],
          lambda k,h,e,d,c: [f"v_pk_mul_f32 v[{d}:{d+1}], v[{d}:{d+1}], v[{h}:{h+1}]"],
          lambda k,h,e,d,c: [f"v_pk_fma_f32 v[{h}:{h+1}], v[{d}:{d+1}], -2.0, v[{h}:{h+1}] op_sel_hi:[1,0,1]"],
          lambda k,h,e,d,c: [f"v_cvt_pk_bf16_f32 v{o+k}, v{h}, v{h+1}"],
        ]
        for stg in stages:
            for k in range(8):
                h=H+6*k
                for l in stg(k,h,h+2,h+4,ACC+16*ft+2*k): a(l)
        a(f"buffer_store_dwordx4 v[{o}:{o+3}], v{T+2}, s[{SRD_WS}:{SRD_WS+3}], s72 offen "+opt.get("asc","sc0+sc1").replace("+"," "))
        a(f"buffer_store_dwordx4 v[{o+4}:{o+7}], v{T+2}, s[{SRD_WS}:{SRD_WS+3}], s72 offen offset:512 "+opt.get("asc","sc0+sc1").replace("+"," "))

def gen_kernelA(opt):
    a=Asm()
    a(f"""s_cmp_ge_u32 s2, 512
s_cbranch_scc1 L_A_end
s_load_dwordx16 s[4:19], s[0:1], 0
s_load_dwordx16 s[20:35], s[0:1], 64
v_and_b32 v1, 63, v0
v_lshrrev_b32 v2, 6, v0
v_readfirstlane_b32 s{S_WAVE}, v2
s_waitcnt lgkmcnt(0)""")
    srd(a,SRD_WS,S_WS,WS_END); srd(a,SRD_X,S_X,2048*1280); srd(a,SRD_DBG,S_DBG,256)
    if PROF: a("v_mov_b32 v255, 0")
    stamp(a,0); stampc(a,14)
    SW=opt.get("swap","0")=="1"
    a(("s_cmp_lt_u32 s2, 256" if SW else "s_cmp_ge_u32 s2, 256")+"\ns_cbranch_scc1 L_A_gemm")
    if opt.get("only")=="gemm1": a("s_endpgm")
    PR=int(opt.get("prio",0))
    if PR: a(f"s_setprio {PR}")
    srd(a,SRD_W,S_W2,1536*1280)
    a(f"""s_and_b32 s53, s2, 255
s_and_b32 s54, s53, 7
s_mul_i32 s54, s54, 80
s_lshr_b32 s55, s53, 3
s_mul_i32 s56, s55, 3
s_lshl_b32 s57, s55, 1
s_add_u32 s57, s57, 16
s_cmp_lt_u32 s55, 16
s_cselect_b32 s63, 3, 2
s_cselect_b32 s56, s56, s57
s_add_u32 s64, s54, s56
s_cmp_eq_u32 s{S_WAVE}, 3
s_cbranch_scc1 L_A_aux
s_cmp_ge_u32 s{S_WAVE}, s63
s_cbranch_scc1 L_A_pend
s_add_u32 s54, s64, s{S_WAVE}
s_mul_i32 s55, s{S_WAVE}, {REG}""")
    SK=opt.get("skip","").split(",")
    global SKIP; SKIP=SK
    if "kgen" not in SK: gen_kgen(a)
    stampc(a,3)
    if "w2f" not in SK: gen_w2f(a)
    a("s_branch L_A_pend\nL_A_aux:")
    if "aux" not in SK: gen_aux(a)
    a("L_A_pend:")
    stamp(a,8); stamp_flush(a)
    a("s_endpgm\nL_A_gemm:")
    if int(opt.get("gprio",1)): a(f"s_setprio {int(opt.get('gprio',1))}")
    if opt.get("only")=="conv": a("s_endpgm")
    srd(a,SRD_W,S_W1,640*3072)
    gen_gemm1(a,opt)
    stamp(a,8); stamp_flush(a)
    a("L_A_end:\ns_endpgm")
    return a.text()

def gen_gemm2(a,vm,opt):
    NS=4; PRE=3
    T=2; VL=6; VL2=7; XA=8; ID=10
    VM4=16
    WA=[None,20,21,22]; RA=23; YA=24; FA_=25; VZ=26; EP=27
    ACC=28; SB=108
    SO=5 if FUSED else 0
    a(f"""s_lshl_b32 s56, s54, 2
s_lshr_b32 s57, s55, 3
s_add_u32 s56, s56, s57         ; tb
s_and_b32 s57, s55, 7           ; db
v_lshlrev_b32 v{VL}, 4, v1
v_add_u32 v{VL2}, 4096, v{VL}
s_mul_i32 s58, s{S_WAVE}, 12
s_mul_i32 s59, s56, 48
s_add_u32 s59, s59, s58
s_lshl_b32 s59, s59, 12
s_add_u32 s59, s59, {ACT_OFF}
s_mul_i32 s60, s57, 48
s_add_u32 s60, s60, s58
s_mul_i32 s60, s60, 5120
s_add_u32 s60, s60, {W2F_OFF}""")
    for k in range(4):
        a(f"""s_add_u32 s61, s{S_WAVE}, {k}
s_and_b32 s61, s61, 3
s_lshl_b32 s{66+k}, s61, 10
v_add_u32 v{VM4+k}, s{66+k}, v{VL}""")
    RB=opt.get("rotb","0")!="0"
    if RB:
        a("""s_and_b32 s70, s56, 3
s_mul_i32 s70, s70, 3
s_add_u32 s70, s70, s57
s_sub_u32 s71, s70, 12
s_cmp_ge_u32 s70, 12
s_cselect_b32 s70, s71, s70""")
        for j in range(12):
            a(f"""s_add_u32 s71, s70, {j}
s_sub_u32 s72, s71, 12
s_cmp_ge_u32 s71, 12
s_cselect_b32 s{86+j}, s72, s71""")
    def ldl(j):
        b=SB+36*(j%NS); L=[]
        seq=[("w",0),("a",0),("a",1),("w",1),("a",2),("a",3),("w",2),("w",3),("w",4)]
        for i,(kind,n) in enumerate(seq):
            pre = f"s_add_u32 s61, s60, {5120*j}\ns_add_u32 s62, s59, {4096*j}\n" if i==0 else ""
            if RB and i==0: pre = f"s_mul_i32 s61, s{86+j}, 5120\ns_add_u32 s61, s61, s60\ns_lshl_b32 s62, s{86+j}, 12\ns_add_u32 s62, s62, s59\n"
            if kind=="w":
                if n<4: L.append(pre+f"buffer_load_dwordx4 v[{b+4*n}:{b+4*n+3}], v{VL}, s[{SRD_WS}:{SRD_WS+3}], s61 offen offset:{1024*n}")
                else:   L.append(pre+f"buffer_load_dwordx4 v[{b+16}:{b+19}], v{VL2}, s[{SRD_WS}:{SRD_WS+3}], s61 offen")
            else:
                L.append(pre+f"buffer_load_dwordx4 v[{b+20+4*n}:{b+23+4*n}], v{VM4+n}, s[{SRD_WS}:{SRD_WS+3}], s62 offen")
        return [(l+" "+opt.get("bsc","sc0+sc1" if FUSED else "").replace("+"," "),("s",j)) for l in L]
    def ld(j):
        for l,t in ldl(j):
            a(l); vm.issue(t)
    if not FUSED: ld(0)
    for i in range(40): a(f"v_mov_b32 v{ACC+i}, 0")
    if not FUSED: ld(1)
    for i in range(40,80): a(f"v_mov_b32 v{ACC+i}, 0")
    a(f"""v_and_b32 v{T}, 15, v1
v_lshrrev_b32 v{T+1}, 4, v1
v_lshrrev_b32 v{T+2}, 2, v{T}
v_mul_u32_u24 v{T+2}, 20, v{T+2}
v_and_b32 v{T+3}, 3, v{T}
v_add_u32 v{T+2}, v{T+2}, v{T+3}
v_mul_u32_u24 v{T+2}, {GS}, v{T+2}
v_lshlrev_b32 v{T+3}, 4, v{T+1}
v_add_u32 v{YA}, v{T+2}, v{T+3}
s_mul_i32 s63, s57, {80*GS}
s_lshl_b32 s64, s56, 7
s_add_u32 s63, s63, s64
s_lshr_b32 s64, s{S_WAVE}, 1
s_lshl_b32 s64, s64, 6
s_add_u32 s63, s63, s64
s_add_u32 s63, s63, {Y_OFF}
v_mul_u32_u24 v{XA}, 1280, v{T}
v_mul_u32_u24 v{T+3}, 40, v{T+1}
v_add_u32 v{XA}, v{XA}, v{T+3}
s_lshl_b32 s64, s56, 2
s_add_u32 s64, s64, s{S_WAVE}
s_mul_i32 s64, s64, {16*1280}
s_mul_i32 s65, s57, 160
s_add_u32 s64, s64, s65
s_and_b32 s65, s{S_WAVE}, 1
s_lshl_b32 s65, s65, 4
v_add_u32 v{ID+4}, s65, v{T}
v_lshlrev_b32 v{T+3}, 3, v{T+1}
v_sub_u32 v{T+3}, v{ID+4}, v{T+3}
v_mov_b32 v{ID+4}, 0x3f80
v_mov_b32 v{ID+5}, 0x3f800000""")
    if not FUSED: ld(2)
    for k in range(4):
        a(f"""v_cmp_eq_u32 vcc, {2*k}, v{T+3}
v_cndmask_b32 v{ID+k}, 0, v{ID+4}, vcc
v_cmp_eq_u32 vcc, {2*k+1}, v{T+3}
v_cndmask_b32 v{ID+k}, v{ID+k}, v{ID+5}, vcc""")
    for k in range(1,4):
        a(f"""s_mul_i32 s70, s{66+k}, 15
s_add_u32 s70, s70, {(k-1)*5120}
v_add_u32 v{WA[k]}, s70, v{VL}""")
    a(f"""s_mul_i32 s70, s66, 15
v_add_u32 v{RA}, s70, v{VL}
v_mov_b32 v{VZ}, 0
v_min_u32 v{FA_}, 15, v1
v_lshlrev_b32 v{FA_}, 7, v{FA_}
v_lshlrev_b32 v{T}, 7, v1
s_mul_i32 s71, s57, {80*128}
s_add_u32 s71, s71, {FLY if FUSED else FL_OFF}
s_add_u32 s72, s71, 8192""")
    if FUSED:
        def poll(addr_v, soff, name):
            lp=a.newlabel("L_fp"+name); ld_=a.newlabel("L_fpd"+name)
            a(f"""s_mov_b32 s98, {1 if NOWAIT else 200000}
{lp}:
buffer_load_dword v{EP}, v{addr_v}, s[{SRD_WS}:{SRD_WS+3}], s{soff} offen sc0 sc1
s_waitcnt vmcnt(0)
v_cmp_ne_u32 vcc, s76, v{EP}
s_nop 1
s_cmp_eq_u64 vcc, 0
s_cbranch_scc1 {ld_}
s_sub_u32 s98, s98, 1
s_cmp_eq_u32 s98, 0
s_cbranch_scc1 {ld_}
s_sleep 2
s_branch {lp}
{ld_}:""")
        a(f"""v_min_u32 v{T+1}, 11, v1
v_lshlrev_b32 v{T+1}, 7, v{T+1}
s_mul_i32 s73, s57, 48
s_add_u32 s73, s73, s58
s_lshl_b32 s73, s73, 7
s_add_u32 s73, s73, {FLW}
v_and_b32 v{T+2}, 3, v1
v_lshlrev_b32 v{T+2}, 7, v{T+2}
v_bfe_u32 v{T+3}, v1, 2, 1
v_lshlrev_b32 v{T+3}, 2, v{T+3}
v_add_u32 v{T+2}, v{T+2}, v{T+3}
s_lshr_b32 s74, s56, 1
s_lshl_b32 s74, s74, 4
s_lshl_b32 s75, s{S_WAVE}, 2
s_add_u32 s74, s74, s75
s_lshl_b32 s74, s74, 7
s_and_b32 s75, s56, 1
s_lshl_b32 s75, s75, 3
s_add_u32 s74, s74, s75
s_add_u32 s74, s74, {FLA}""")
        lw_=a.newlabel("L_wok")
        a(f"""v_mov_b32 v253, s76
s_waitcnt vmcnt(0)
s_mov_b64 exec, 1
buffer_store_dword v253, v{VZ}, s[{SRD_WS}:{SRD_WS+3}], s79 offen sc0 sc1
s_andn2_b32 s79, s79, 127
buffer_store_dword v253, v{VZ}, s[{SRD_WS}:{SRD_WS+3}], s79 offen offset:64 sc0 sc1
s_mov_b64 exec, -1
v_cmp_ne_u32 vcc, s76, v252
s_nop 1
s_cmp_eq_u64 vcc, 0
s_cbranch_scc1 {lw_}""")
        poll(T+1,73,"w")
        a(f"{lw_}:")
        stamp(a,13)
        pres={}
        for j in range(3):
            L=ldl(j); pres[j]=L[0][0].split("buffer_load")[0]
            for l,t in L:
                if "s61 offen" in l: a(l)
        poll(T+2,74,"a")
        stamp(a,5)
        vm.q=[]
        for j in range(3):
            a(pres[j])
            for l,t in ldl(j):
                if "s62 offen" in l: a(l); vm.issue(t)
    XV=SB+0
    xl=[(f"buffer_load_dwordx4 v[{XV}:{XV+3}], v{XA}, s[{SRD_X}:{SRD_X+3}], s64 offen","x"),
        (f"buffer_load_dwordx4 v[{XV+4}:{XV+7}], v{XA}, s[{SRD_X}:{SRD_X+3}], s64 offen offset:16","x"),
        (f"buffer_load_dwordx2 v[{XV+8}:{XV+9}], v{XA}, s[{SRD_X}:{SRD_X+3}], s64 offen offset:32","x"),
        (f"buffer_load_dword v{EP}, v{VZ}, s[{SRD_DBG}:{SRD_DBG+3}], 0 offen sc0 sc1","ep")]
    FLG=SB+56
    fl=[(f"buffer_load_dword v{FLG}, v{T}, s[{SRD_WS}:{SRD_WS+3}], s71 offen sc0 sc1","fl"),
        (f"buffer_load_dword v{FLG+1}, v{FA_}, s[{SRD_WS}:{SRD_WS+3}], s72 offen sc0 sc1","fl")]
    for j in range(12):
        vm.wait_for(("s",j))
        if j==0: stamp(a,1+SO)
        if PROF and j%2==0 and not FUSED: a(f"s_memtime s[{74+j}:{75+j}]")
        b=SB+36*(j%NS)
        order=[(dt,k) for dt in range(5) for k in range(4)]
        if j==11: order=[(dt,k) for k in (1,2,3,0) for dt in range(5)]
        lq = ldl(j+PRE) if j+PRE<12 else (xl if j==9 else (fl if j==11 else []))
        LF_=int(opt.get("bl",2))
        if LF_==0:
            while lq:
                l,t=lq.pop(0); a(l); vm.issue(t)
        for n,(dt,k) in enumerate(order):
            c=ACC+(dt*4+k)*4
            a(f"v_mfma_f32_16x16x32_bf16 v[{c}:{c+3}], v[{b+4*dt}:{b+4*dt+3}], v[{b+20+4*k}:{b+23+4*k}], v[{c}:{c+3}]")
            if LF_ and n%LF_==LF_-1 and lq:
                l,t=lq.pop(0); a(l); vm.issue(t)
        assert not lq
    stamp(a,2+SO)
    if PROF and not FUSED:
        for j in range(2,12,2):
            a(f"s_sub_u32 s{74+j}, s{74+j}, s74\nv_writelane_b32 v255, s{74+j}, {8+j//2}")
    XF=SB+12
    YF=SB+36
    FLG=SB+56
    RD=SB+72
    lk=a.newlabel("L_bepk"); lp=a.newlabel("L_bp"); ldn=a.newlabel("L_bpd"); llate=a.newlabel("L_blate"); ljoin=a.newlabel("L_bjoin")
    def yloads():
        for dt in range(5):
            a(f"s_add_u32 s73, s63, {4*GS*dt}")
            a(f"buffer_load_dwordx4 v[{YF+4*dt}:{YF+4*dt+3}], v{YA}, s[{SRD_WS}:{SRD_WS+3}], s73 offen sc0 sc1")
    def flagchk():
        a(f"""v_xor_b32 v{FLG}, s67, v{FLG}
v_xor_b32 v{FLG+1}, s67, v{FLG+1}
v_or_b32 v{FLG}, v{FLG}, v{FLG+1}
v_cmp_ne_u32 vcc, 0, v{FLG}
s_nop 1
s_cmp_eq_u64 vcc, 0""")
    a(f"""s_waitcnt vmcnt(0)
v_readfirstlane_b32 s67, v{EP}
s_mov_b32 s79, 0
s_cmp_eq_u32 s67, 0
s_cbranch_scc1 {llate}""")
    flagchk()
    a(f"""s_cbranch_scc0 {llate}
s_mov_b32 s79, 1""")
    yloads()
    a(f"{llate}:")
    for k in range(1,4):
        for dt in range(5):
            c=ACC+(dt*4+k)*4
            a(f"ds_write_b128 v{WA[k]}, v[{c}:{c+3}] offset:{dt*1024}")
    for k in range(10):
        a(f"v_lshlrev_b32 v{XF+2*k}, 16, v{XV+k}")
        a(f"v_and_b32 v{XF+2*k+1}, 0xffff0000, v{XV+k}")
    a(f"""s_mov_b32 s98, {1 if NOWAIT else 200000}
s_waitcnt lgkmcnt(0)
s_barrier""")
    for p in range(3):
        for dt in range(5):
            r=RD+20*p+4*dt
            a(f"ds_read_b128 v[{r}:{r+3}], v{RA} offset:{p*5120+dt*1024}")
    a(f"""s_cmp_eq_u32 s79, 1
s_cbranch_scc1 {ljoin}
s_cmp_lg_u32 s67, 0
s_cbranch_scc1 {lp}""")
    get_epoch(a,VZ,EP,67)
    a(f"""s_mov_b32 s98, {1 if NOWAIT else 200000}
{lp}:
buffer_load_dword v{FLG}, v{T}, s[{SRD_WS}:{SRD_WS+3}], s71 offen sc0 sc1
buffer_load_dword v{FLG+1}, v{FA_}, s[{SRD_WS}:{SRD_WS+3}], s72 offen sc0 sc1
s_waitcnt vmcnt(0)""")
    flagchk()
    a(f"""s_cbranch_scc1 {ldn}
s_sub_u32 s98, s98, 1
s_cmp_eq_u32 s98, 0
s_cbranch_scc1 {ldn}
s_sleep 2
s_branch {lp}
{ldn}:""")
    yloads()
    a(f"{ljoin}:")
    stamp(a,4+SO+ (1 if FUSED else 0))
    for p in range(3):
        a(f"s_waitcnt lgkmcnt({5*(2-p)})")
        for k in range(10):
            a(f"v_pk_add_f32 v[{XF+2*k}:{XF+2*k+1}], v[{XF+2*k}:{XF+2*k+1}], v[{RD+20*p+2*k}:{RD+20*p+2*k+1}]")
    for dt in range(5):
        c=ACC+(dt*4)*4
        a(f"s_waitcnt vmcnt({4-dt})")
        a(f"v_mfma_f32_16x16x32_bf16 v[{c}:{c+3}], v[{YF+4*dt}:{YF+4*dt+3}], v[{ID}:{ID+3}], v[{c}:{c+3}]")
    for dt in range(5):
        c=ACC+(dt*4)*4
        for h in range(2):
            a(f"v_pk_add_f32 v[{XF+4*dt+2*h}:{XF+4*dt+2*h+1}], v[{XF+4*dt+2*h}:{XF+4*dt+2*h+1}], v[{c+2*h}:{c+2*h+1}]")
    for k in range(10):
        a(f"v_cvt_pk_bf16_f32 v{XV+k}, v{XF+2*k}, v{XF+2*k+1}")
    a(f"""buffer_store_dwordx4 v[{XV}:{XV+3}], v{XA}, s[{SRD_W}:{SRD_W+3}], s64 offen
buffer_store_dwordx4 v[{XV+4}:{XV+7}], v{XA}, s[{SRD_W}:{SRD_W+3}], s64 offen offset:16
buffer_store_dwordx2 v[{XV+8}:{XV+9}], v{XA}, s[{SRD_W}:{SRD_W+3}], s64 offen offset:32""")

def gen_kernelB(opt):
    a=Asm('b'); vm=VM(a)
    NS=4; PRE=3
    T=2; VL=6; VL2=7; XA=8; ID=10
    VM4=16
    WA=[None,20,21,22]; RA=23; YA=24; FA_=25; VZ=26; EP=27
    ACC=28
    SB=108
    a(f"""s_cmp_ge_u32 s2, 512
s_cbranch_scc1 L_B_end
s_load_dwordx2 s[4:5], s[0:1], 0
s_load_dwordx4 s[28:31], s[0:1], 104
s_load_dwordx2 s[8:9], s[0:1], 120
v_and_b32 v1, 63, v0
v_lshrrev_b32 v2, 6, v0
v_readfirstlane_b32 s{S_WAVE}, v2
s_and_b32 s53, s2, 255
s_and_b32 s54, s53, 7
s_lshr_b32 s55, s53, 3
s_waitcnt lgkmcnt(0)""")
    srd(a,SRD_WS,8,WS_END); srd(a,SRD_DBG,30,256)
    if PROF: a("v_mov_b32 v255, 0")
    stamp(a,0); stampc(a,14)
    a(f"""s_cmp_ge_u32 s2, 256
s_cbranch_scc1 L_B_gemm
s_mul_i32 s54, s54, 80
s_mul_i32 s56, s55, 3
s_lshl_b32 s57, s55, 1
s_add_u32 s57, s57, 16
s_cmp_lt_u32 s55, 16
s_cselect_b32 s63, 3, 2
s_cselect_b32 s56, s56, s57
s_add_u32 s64, s54, s56""")
    if int(opt.get("cprio",1)): a(f"s_setprio {int(opt.get('cprio',1))}")
    gen_stage(a)
    a(f"s_setprio {int(opt.get('cprio2',0))}")
    gen_conv(a)
    stamp(a,8); stamp_flush(a,1)
    a("s_endpgm\nL_B_gemm:")
    if int(opt.get("g2prio",0)): a(f"s_setprio {int(opt.get('g2prio',0))}")
    srd(a,SRD_X,4,2048*1280); srd(a,SRD_W,28,2048*1280)
    gen_gemm2(a,vm,opt)
    stamp(a,3); stamp_flush(a,1)
    if PROF and opt.get("dbgscan"):
        lq_=a.newlabel("L_dbgx")
        a(f"""v_readlane_b32 s70, v255, 3
v_readlane_b32 s71, v255, 0
s_not_b32 s71, s71
v_mov_b32 v2, s70
v_mov_b32 v3, s71
v_mov_b32 v4, 8
v_mov_b32 v5, 20
s_mov_b64 exec, 1
buffer_atomic_umax v2, v4, s[{SRD_DBG}:{SRD_DBG+3}], 0 offen sc1
buffer_atomic_umax v3, v5, s[{SRD_DBG}:{SRD_DBG+3}], 0 offen sc1
s_mov_b64 exec, -1
s_or_b32 s70, s53, s{S_WAVE}
s_cmp_lg_u32 s70, 0
s_cbranch_scc1 {lq_}
v_lshlrev_b32 v2, 6, v1
v_mov_b32 v6, 0
v_mov_b32 v7, 0""")
        for i in range(32):
            a(f"""s_mov_b32 s70, {TS_OFF+4096*i}
buffer_load_dword v3, v2, s[{SRD_WS}:{SRD_WS+3}], s70 offen
buffer_load_dword v4, v2, s[{SRD_WS}:{SRD_WS+3}], s70 offen offset:32
s_waitcnt vmcnt(0)
v_not_b32 v3, v3
v_max_u32 v6, v6, v3
v_max_u32 v7, v7, v4""")
        a(f"""v_mov_b32 v4, 12
v_mov_b32 v5, 16
buffer_atomic_umax v7, v4, s[{SRD_DBG}:{SRD_DBG+3}], 0 offen sc1
buffer_atomic_umax v6, v5, s[{SRD_DBG}:{SRD_DBG+3}], 0 offen sc1
{lq_}:""")
    a("L_B_end:\ns_endpgm")
    return a.text(), LDS_A

HEADER = open("parallel_sum__ssm_conv_s4__dense_activation_mish__prompt.s.ref").read().split("; Override launch")[0]

def kd(name, vgpr, accum, sgpr=102):
    return f""".amdhsa_kernel {name}
  .amdhsa_next_free_vgpr {vgpr}
  .amdhsa_next_free_sgpr {sgpr}
  .amdhsa_accum_offset {accum}
  .amdhsa_group_segment_fixed_size 0
  .amdhsa_kernarg_size 128
  .amdhsa_user_sgpr_count 2
  .amdhsa_user_sgpr_kernarg_segment_ptr 1
  .amdhsa_system_sgpr_workgroup_id_x 1
.end_amdhsa_kernel
"""

def gen_fused(opt):
    a=Asm()
    a(f"""s_cmp_ge_u32 s2, 512
s_cbranch_scc1 L_A_end
s_load_dwordx16 s[4:19], s[0:1], 0
s_load_dwordx16 s[20:35], s[0:1], 64
v_and_b32 v1, 63, v0
v_lshrrev_b32 v2, 6, v0
v_readfirstlane_b32 s{S_WAVE}, v2
s_waitcnt lgkmcnt(0)""")
    srd(a,SRD_WS,S_WS,WS_END); srd(a,SRD_X,S_X,2048*1280); srd(a,SRD_DBG,S_DBG,256)
    if PROF: a("v_mov_b32 v255, 0")
    stamp(a,0); stampc(a,14)
    a("s_cmp_ge_u32 s2, 256\ns_cbranch_scc1 L_A_gemm")
    srd(a,SRD_W,S_W2,1536*1280)
    a(f"""s_and_b32 s53, s2, 255
s_and_b32 s54, s53, 7
s_mul_i32 s54, s54, 80
s_lshr_b32 s55, s53, 3
s_mul_i32 s56, s55, 3
s_lshl_b32 s57, s55, 1
s_add_u32 s57, s57, 16
s_cmp_lt_u32 s55, 16
s_cselect_b32 s63, 3, 2
s_cselect_b32 s56, s56, s57
s_add_u32 s64, s54, s56
s_cmp_eq_u32 s{S_WAVE}, 3
s_cbranch_scc1 L_A_aux
s_cmp_ge_u32 s{S_WAVE}, s63
s_cbranch_scc1 L_A_stage
s_add_u32 s54, s64, s{S_WAVE}
s_mul_i32 s55, s{S_WAVE}, {REG}""")
    if int(opt.get("kprio",0)): a(f"s_setprio {int(opt.get('kprio',0))}")
    gen_kgen(a)
    stampc(a,3)
    a("s_branch L_A_stage\nL_A_aux:")
    a(f"s_setprio {int(opt.get('aprio',2))}")
    gen_aux(a)
    a(f"L_A_stage:\ns_setprio {int(opt.get('sprio',2))}")
    gen_stage(a)
    a(f"s_setprio {int(opt.get('cprio2',0))}")
    gen_conv(a)
    stamp(a,8); stamp_flush(a)
    a("s_endpgm\nL_A_gemm:")
    a(f"s_setprio {int(opt.get('gprio',1))}")
    srd(a,SRD_W,S_W1,640*3072)
    gen_gemm1(a,opt)
    stamp(a,8)
    a(f"""s_lshl_b32 s79, s56, 4
s_add_u32 s79, s79, s57
s_lshl_b32 s79, s79, 7
s_lshl_b32 s71, s{S_WAVE}, 2
s_add_u32 s79, s79, s71
s_add_u32 s79, s79, {FLA}""")
    srd(a,SRD_W,S_OUT,2048*1280)
    vm=VM(a)
    gen_gemm2(a,vm,opt)
    stamp(a,12); stamp_flush(a)
    a("L_A_end:\ns_endpgm")
    return a.text()

def build_fused(opt):
    A=gen_fused(opt)
    KN="parallel_sum__ssm_conv_s4__dense_activation_mish__prompt_kernel"
    s=HEADER+f"; @launch grid=(512,1,1) block=(256,1,1) lds={LDS_A}\n"
    s+='.amdgcn_target "amdgcn-amd-amdhsa--gfx950"\n.text\n'
    s+=f".globl {KN}\n.p2align 8\n.type {KN},@function\n{KN}:\n{A}"
    s+='.section .rodata,"a"\n.p2align 6\n'+kd(KN,256,256)
    return s

def build(opt):
    A=gen_kernelA(opt); B,ldsB=gen_kernelB(opt)
    s=HEADER
    s+=f"; @launch kernel=stage_a_kernel grid=(512,1,1) block=(256,1,1) lds={LDS_A}\n"
    s+=f"; @launch kernel=stage_b_kernel grid=(512,1,1) block=(256,1,1) lds={ldsB}\n"
    if opt.get("rep2"): s+=f"; @launch kernel=stage_b_kernel grid=(512,1,1) block=(256,1,1) lds={ldsB}\n"
    s+='.amdgcn_target "amdgcn-amd-amdhsa--gfx950"\n.text\n'
    for name,body in (("stage_a_kernel",A),("stage_b_kernel",B)):
        s+=f".globl {name}\n.p2align 8\n.type {name},@function\n{name}:\n{body}"
    s+='.section .rodata,"a"\n.p2align 6\n'+kd("stage_a_kernel",256,256)+".p2align 6\n"+kd("stage_b_kernel",256,256)
    return s

if __name__=="__main__":
    opt={}
    out=sys.argv[1] if len(sys.argv)>1 else "parallel_sum__ssm_conv_s4__dense_activation_mish__prompt.s"
    for kv in sys.argv[2:]:
        k,v=kv.split("="); opt[k]=v
    PROF = opt.get("prof","0")=="1"
    NOWAIT = "only" in opt or "skip" in opt
    FUSED = opt.get("fused","0")=="1"
    CWAIT = opt.get("cwait","1")=="1"
    open(out,"w").write(build_fused(opt) if FUSED else build(opt))
    print("wrote",out)
```

```python
import sys, struct
from asmlib import Asm, VM

def f2u(x): return struct.unpack("<I", struct.pack("<f", x))[0]

GS      = 4160
G_OFF   = 0
ST_OFF  = 0x280000
FL_OFF  = 0x290000
Y_OFF   = 0x2B0000
W2F_OFF = 0x540000
ACT_OFF = 0x720000
KI_OFF  = 0xD20000
KIS     = 9216
WS_END  = 0x1500000
TS_OFF  = 0x1400000
TROW = 272
REG  = 17408
KC1  = 4576
YB   = 9120
U0   = 3*REG
UCH  = 8448
UC1  = 4224
LDS_A = 81920
LOG2E = 0x3fb8aa3b; LOG2E_LO = 0x32a5705f; LN2 = 0x3f317218

S_X=4; S_ARE=6; S_AIM=8; S_BRE=10; S_BIM=12; S_CRE=14; S_CIM=16; S_LDT=18
S_DSK=20; S_W1=24; S_B1=26; S_W2=28; S_OUT=30; S_DBG=32; S_WS=34
SRD_WS=36; SRD_X=40; SRD_W=44; SRD_DBG=48
S_WAVE=52
PROF=False
NOWAIT=False
FUSED=False
CWAIT=True
FLY=KI_OFF; FLW=KI_OFF+0x20000; FLA=KI_OFF+0x30000
SKIP=[]

def srd(a, dst, ptr, nbytes):
    a(f"""s_mov_b32 s{dst}, s{ptr}
s_and_b32 s{dst+1}, s{ptr+1}, 0xffff
s_mov_b32 s{dst+2}, {nbytes}
s_mov_b32 s{dst+3}, 0x00020000""")

def cmul(dst, z, m, t, conj=False):
    if not conj:
        return [f"v_pk_mul_f32 v[{t}:{t+1}], v[{z}:{z+1}], v[{m}:{m+1}] op_sel:[0,0] op_sel_hi:[0,1]",
                f"v_pk_fma_f32 v[{dst}:{dst+1}], v[{z}:{z+1}], v[{m}:{m+1}], v[{t}:{t+1}] op_sel:[1,1,0] op_sel_hi:[1,0,1] neg_lo:[0,1,0]"]
    return [f"v_pk_mul_f32 v[{t}:{t+1}], v[{z}:{z+1}], v[{m}:{m+1}] op_sel:[0,0] op_sel_hi:[0,1] neg_hi:[0,1]",
            f"v_pk_fma_f32 v[{dst}:{dst+1}], v[{z}:{z+1}], v[{m}:{m+1}], v[{t}:{t+1}] op_sel:[1,1,0] op_sel_hi:[1,0,1]"]

def stamp(a, idx, reg=255):
    if not PROF: return
    a(f"""s_memrealtime s[100:101]
s_waitcnt lgkmcnt(0)
v_writelane_b32 v{reg}, s100, {idx}""")
def stampc(a, idx, reg=255):
    if not PROF: return
    a(f"""s_memtime s[100:101]
s_waitcnt lgkmcnt(0)
v_writelane_b32 v{reg}, s100, {idx}""")
def stamp_flush(a, kern=0, reg=255, tmp=254):
    if not PROF: return
    stampc(a,15,reg)
    a(f"""s_lshl_b32 s100, s2, 2
s_add_u32 s100, s100, s{S_WAVE}
s_lshl_b32 s100, s100, 6
s_add_u32 s100, s100, {TS_OFF+kern*0x40000}
v_lshlrev_b32 v{tmp}, 2, v1
s_mov_b64 exec, 0xffff
buffer_store_dword v{reg}, v{tmp}, s[{SRD_WS}:{SRD_WS+3}], s100 offen
s_mov_b64 exec, -1""")

def get_epoch(a, vz, vt, sdst):
    lp=a.newlabel("L_ep"); ld=a.newlabel("L_epd")
    a(f"""s_mov_b32 s98, {1 if NOWAIT else 200000}
{lp}:
buffer_load_dword v{vt}, v{vz}, s[{SRD_DBG}:{SRD_DBG+3}], 0 offen sc0 sc1
s_waitcnt vmcnt(0)
v_readfirstlane_b32 s{sdst}, v{vt}
s_cmp_lg_u32 s{sdst}, 0
s_cbranch_scc1 {ld}
s_sleep 2
s_sub_u32 s98, s98, 1
s_cmp_lg_u32 s98, 0
s_cbranch_scc1 {lp}
{ld}:""")

def gen_kgen(a):
    RAW=2; P=14
    A2=20; B2=21; DT=22; VT=23
    Z=24; C=26; T=28; T2=30; E1=32; E2=34; E4=36; E8=38; E248=40; X=42; Y=43; S_=44; CO=45
    PKS=[46,47,48,49]; ONE=50
    FA=51; FB=52
    ACC=56
    FR=72
    arrs=[S_ARE,S_AIM,S_BRE,S_BIM,S_CRE,S_CIM]
    a(f"""s_mul_i32 s56, s54, 384
v_lshlrev_b32 v{X}, 2, v1
v_add_u32 v{X}, s56, v{X}
v_lshlrev_b32 v{Y}, 1, v1
v_add_u32 v{Y}, s56, v{Y}
s_lshr_b32 s57, s54, 1
s_lshl_b32 s57, s57, 2
s_load_dword s58, s[{S_LDT}:{S_LDT+1}], s57
s_load_dword s59, s[{S_DSK}:{S_DSK+1}], s57""")
    for i,s in enumerate(arrs):
        a(f"global_load_dword v{RAW+i}, v{X}, s[{s}:{s+1}]")
    for i in range(6): a(f"v_mov_b32 v{RAW+6+i}, 0")
    for i,s in enumerate(arrs):
        a(f"global_load_short_d16_hi v{RAW+6+i}, v{Y}, s[{s}:{s+1}] offset:256")
    a(f"""s_mov_b32 m0, s55
v_and_b32 v{FB}, 31, v1
v_mul_u32_u24 v{FB}, {TROW}, v{FB}
v_lshrrev_b32 v{FA}, 5, v1
v_lshlrev_b32 v{FA}, 4, v{FA}
v_add_u32 v{FB}, v{FB}, v{FA}
v_add_u32 v{FB}, s55, v{FB}
v_add_u32 v{FA}, {32*TROW}, v{FB}""")
    for i in range(16): a(f"v_mov_b32 v{ACC+i}, 0")
    a(f"""s_waitcnt lgkmcnt(0)
s_and_b32 s57, s54, 1
s_lshl_b32 s57, s57, 4
s_lshr_b32 s58, s58, s57
s_lshl_b32 s58, s58, 16
s_lshr_b32 s59, s59, s57
s_lshl_b32 s59, s59, 16
s_mov_b32 s60, 0x{LOG2E:08x}
s_mov_b32 s61, 0x{LOG2E_LO:08x}
s_mov_b32 s62, 0x{LN2:08x}
v_mov_b32 v{X}, s58
v_mul_f32 v{Y}, s60, v{X}
v_fma_f32 v{S_}, v{X}, s60, -v{Y}
v_fma_f32 v{S_}, v{X}, s61, v{S_}
v_exp_f32 v{Y}, v{Y}
v_mul_f32 v{S_}, s62, v{S_}
v_fma_f32 v{Y}, v{Y}, v{S_}, v{Y}
v_cvt_pk_bf16_f32 v{Y}, v{Y}, v{Y}
v_lshlrev_b32 v{DT}, 16, v{Y}
v_mov_b32 v{ONE}, 0x3f80
s_waitcnt vmcnt(6)""")
    stamp(a,1); stampc(a,2)
    DX=[136,137,138]; DY=[139,140,141]; DS=[142,143,144]; DC=[145,146,147]
    def setup(g):
        L=[]
        for i in range(6):
            if g==0: L.append(f"v_lshlrev_b32 v{P+i}, 16, v{RAW+i}")
            elif g==1: L.append(f"v_and_b32 v{P+i}, 0xffff0000, v{RAW+i}")
        src=[(P+i) if g<2 else (RAW+6+i) for i in range(6)]
        ar,ai,br,bi,cr,ci=src
        L+=[f"v_mul_f32 v{A2}, v{ar}, v{DT}", f"v_mul_f32 v{B2}, v{ai}, v{DT}",
            f"v_mul_f32 v{A2}, s60, v{A2}", f"v_mul_f32 v{B2}, 0.15915494, v{B2}"]
        lam=[1,8,248]; dst=[E1,E8,E248]
        for k in (1,2):
            L+=[f"v_mul_f32 v{DY[k]}, 0x{f2u(float(lam[k])):08x}, v{B2}", f"v_mul_f32 v{DX[k]}, 0x{f2u(float(lam[k])):08x}, v{A2}"]
        L+=[f"v_fract_f32 v{DY[0]}, v{B2}", f"v_fract_f32 v{DY[1]}, v{DY[1]}", f"v_fract_f32 v{DY[2]}, v{DY[2]}",
            f"v_exp_f32 v{DX[0]}, v{A2}", f"v_exp_f32 v{DX[1]}, v{DX[1]}", f"v_exp_f32 v{DX[2]}, v{DX[2]}"]
        for k in range(3): L+=[f"v_sin_f32 v{DS[k]}, v{DY[k]}", f"v_cos_f32 v{DC[k]}, v{DY[k]}"]
        L+=[f"v_mul_f32 v{Z}, v{cr}, v{br}", f"v_mul_f32 v{Z+1}, v{cr}, v{bi}",
            f"v_fma_f32 v{Z}, -v{ci}, v{bi}, v{Z}", f"v_fma_f32 v{Z+1}, v{ci}, v{br}, v{Z+1}",
            f"v_mul_f32 v{Z}, v{Z}, v{DT}", f"v_mul_f32 v{Z+1}, -v{Z+1}, v{DT}"]
        for k in range(3): L+=[f"v_mul_f32 v{dst[k]+1}, v{DX[k]}, v{DS[k]}", f"v_mul_f32 v{dst[k]}, v{DX[k]}, v{DC[k]}"]
        L+=cmul(E2,E1,E1,T)+cmul(E4,E2,E2,T)
        return L
    rowseq=[(E1,[1]),(E1,[2]),(E1,[3]),(E1,[4]),(E1,[5]),(E1,[6]),(E1,[7]),(E1,[]),
            (E248,[8]),(E2,[9]),(E2,[10,12]),(E2,[13]),(E2,[14]),
            (E248,[16]),(E4,[17,20]),(E4,[21]),(E248,[18]),(E4,[19,22]),(E4,[23]),
            (E248,[24]),(E8,[28]),(E248,[25]),(E8,[29]),(E248,[26]),(E8,[30]),(E248,[27]),(E8,[31])]
    for l in setup(0): a(l)
    pend=[]
    for g in range(3):
        if g==0: stampc(a,9)
        wq=[]
        pk=0
        def cvt(src, rows):
            nonlocal pk
            r=PKS[pk%4]; pk+=1
            a(f"v_cvt_pk_bf16_f32 v{r}, v{src}, v{src+1}")
            return [f"ds_write_addtid_b32 v{r} offset:{x*TROW}" for x in rows]
        a(f"ds_write_addtid_b32 v{ONE}")
        wq=cvt(Z,[32])+cvt(E8,[1])
        cur=E8
        for j in range(2,32):
            k=j-2
            c1=cmul(C,cur,E8,T); cur=C
            c2=cmul(Z,Z,rowseq[k][0],T2,conj=True) if k<len(rowseq) else []
            a(c1[0])
            if c2: a(c2[0])
            a(c1[1])
            if c2: a(c2[1])
            nq=cvt(C,[j])
            if c2 and rowseq[k][1]: nq+=cvt(Z,[32+r for r in rowseq[k][1]])
            while wq: a(wq.pop(0))
            if pend and j%3==0: a(pend.pop(0))
            wq=nq
        for w in wq: a(w)
        assert not pend
        if g==0: stampc(a,10)
        if g==1: a("s_waitcnt vmcnt(0)")
        a("s_waitcnt lgkmcnt(0)")
        for q in range(8):
            a(f"ds_read_b128 v[{FR+8*q}:{FR+8*q+3}], v{FA} offset:{32*q}")
            a(f"ds_read_b128 v[{FR+8*q+4}:{FR+8*q+7}], v{FB} offset:{32*q}")
        if g<2:
            for l in setup(g+1): a(l)
        a("s_waitcnt lgkmcnt(0)")
        stampc(a,11 if g==0 else (12 if g==1 else 13))
        pend=[f"v_mfma_f32_32x32x16_bf16 v[{ACC}:{ACC+15}], v[{FR+8*q}:{FR+8*q+3}], v[{FR+8*q+4}:{FR+8*q+7}], v[{ACC}:{ACC+15}]" for q in range(8)]
    for m in pend: a(m)
    a(f"""v_lshlrev_b32 v{Y}, 4, v1
s_lshl_b32 s56, s54, 11
s_add_u32 s56, s56, {KI_OFF}
s_mov_b64 exec, 1
v_add_f32 v{ACC}, s59, v{ACC}
s_mov_b64 exec, -1""")
    if FUSED:
        a("s_mov_b32 s65, s55")
        gen_kexpand(a, None, ACC, FR, X, Y, S_, CO, T)
        return
    for i in range(8): a(f"v_cvt_pk_bf16_f32 v{FR+i}, v{ACC+2*i}, v{ACC+2*i+1}")
    a(f"buffer_store_dwordx4 v[{FR}:{FR+3}], v{Y}, s[{SRD_WS}:{SRD_WS+3}], s56 offen sc0 sc1")
    a(f"buffer_store_dwordx4 v[{FR+4}:{FR+7}], v{Y}, s[{SRD_WS}:{SRD_WS+3}], s56 offen offset:1024 sc0 sc1")

def gen_kexpand(a, KP, ACC, Q, X, Y, S_, CO, Z):
    for i in range(4): a(f"v_mov_b32 v{Z+i}, 0")
    a(f"""v_lshlrev_b32 v{S_}, 4, v1
v_add_u32 v{S_}, s65, v{S_}
v_and_b32 v{X}, 31, v1
v_lshlrev_b32 v{X}, 4, v{X}
v_lshrrev_b32 v{Y}, 5, v1
v_lshlrev_b32 v{Y}, 3, v{Y}
v_add_u32 v{X}, v{X}, v{Y}
v_add_u32 v{X}, s65, v{X}
v_cmp_lt_u32 vcc, 31, v1
s_mov_b32 exec_hi, 0
ds_write_b128 v{S_}, v[{Z}:{Z+3}]
ds_write_b128 v{S_}, v[{Z}:{Z+3}] offset:{KC1}
s_mov_b64 exec, -1""")
    for i in range(8 if KP is not None else 0):
        a(f"v_lshlrev_b32 v{ACC+2*i}, 16, v{KP+i}")
        a(f"v_and_b32 v{ACC+2*i+1}, 0xffff0000, v{KP+i}")
    ac=lambda i: ACC+i
    a(f"v_cndmask_b32 v{S_}, v{ac(8)}, v{ac(9)}, vcc")
    a(f"v_cndmask_b32 v{CO}, v{ac(10)}, v{ac(11)}, vcc")
    blocks=[(0,[ac(0),ac(1),ac(2),ac(3)]),(256,[ac(4),ac(4),ac(5),ac(6)]),(512,[ac(8),ac(8),S_,ac(9)]),(768,[ac(10),ac(10),CO,ac(11)])]
    for n,(base,e) in enumerate(blocks):
        p=Q+4*n
        a(f"v_cvt_pk_bf16_f32 v{p}, v{e[0]}, v{e[1]}")
        a(f"v_cvt_pk_bf16_f32 v{p+1}, v{e[2]}, v{e[3]}")
        a(f"v_cvt_pk_bf16_f32 v{p+2}, v{e[1]}, v{e[2]}")
    for b in range(4):
        p=Q+16+2*b
        a(f"v_cvt_pk_bf16_f32 v{p}, v{ac(12+b)}, v{ac(12+b)}")
        a(f"v_mov_b32 v{p+1}, v{p}")
    for n,(base,e) in enumerate(blocks):
        p=Q+4*n
        a(f"ds_write_b64 v{X}, v[{p}:{p+1}] offset:{KC1+2*(base+224)}")
        a(f"ds_write_b16 v{X}, v{p} offset:{2*(base+225)}")
        a(f"ds_write_b32 v{X}, v{p+2} offset:{2*(base+226)}")
        a(f"ds_write_b16_d16_hi v{X}, v{p+1} offset:{2*(base+228)}")
    for b in range(4):
        p=Q+16+2*b; base=1024+256*b
        a(f"ds_write_b64 v{X}, v[{p}:{p+1}] offset:{KC1+2*(base+224)}")
        a(f"ds_write_b16 v{X}, v{p} offset:{2*(base+225)}")
        a(f"ds_write_b32 v{X}, v{p} offset:{2*(base+226)}")
        a(f"ds_write_b16 v{X}, v{p} offset:{2*(base+228)}")
    a("s_mov_b64 exec, 0x55555555")
    for b in range(4):
        p=Q+16+2*b
        a(f"ds_write_b16 v{X}, v{p} offset:{KC1+2*(1024+256*b+4+224)}")
        a(f"ds_write_b16 v{X}, v{p} offset:{2*(1024+256*b+4+225)}")
    a("s_mov_b64 exec, -1")

def gen_w2f(a):
    RAW=2; VA=100; VB=101; VC=102
    lx=a.newlabel("L_w2x")
    a(f"""s_mul_i32 s56, s54, 13108
s_lshr_b32 s56, s56, 16
s_mul_i32 s57, s56, 5
s_sub_u32 s57, s54, s57
s_cmp_ge_u32 s57, 3
s_cbranch_scc1 {lx}
s_mul_i32 s56, s56, 3
s_add_u32 s57, s56, s57
s_lshr_b32 s58, s57, 3
s_and_b32 s59, s57, 7
s_mul_i32 s60, s58, {32*1280}
s_mul_i32 s61, s59, 160
s_add_u32 s60, s60, s61
s_mul_i32 s59, s59, 48
s_add_u32 s59, s59, s58
s_mul_i32 s59, s59, 5120
s_add_u32 s68, s59, {W2F_OFF}""")
    for i in range(5):
        a(f"""v_add_u32 v{VA}, {64*i}, v1
v_mul_u32_u24 v{VB}, 6554, v{VA}
v_lshrrev_b32 v{VB}, 16, v{VB}
v_mul_u32_u24 v{VC}, 10, v{VB}
v_sub_u32 v{VC}, v{VA}, v{VC}
v_lshlrev_b32 v{VC}, 4, v{VC}
v_mul_u32_u24 v{VB}, 1280, v{VB}
v_add_u32 v{VB}, v{VB}, v{VC}
s_add_u32 m0, s55, {1024*i}
buffer_load_dwordx4 v{VB}, s[{SRD_W}:{SRD_W+3}], s60 offen lds""")
    a(f"""v_lshrrev_b32 v{VA}, 5, v1
v_lshlrev_b32 v{VA}, 4, v{VA}
v_bfe_u32 v{VB}, v1, 2, 3
v_add_u32 v{VA}, v{VA}, v{VB}
v_mul_u32_u24 v{VA}, 160, v{VA}
v_and_b32 v{VB}, 3, v1
v_mul_u32_u24 v{VB}, 40, v{VB}
v_add_u32 v{VA}, v{VA}, v{VB}
v_add_u32 v{VA}, s55, v{VA}
v_lshlrev_b32 v{VB}, 4, v1
v_add_u32 v{VC}, 4096, v{VB}
s_waitcnt vmcnt(0)""")
    for nt in range(5):
        r=RAW+4*nt
        a(f"ds_read_b64_tr_b16 v[{r}:{r+1}], v{VA} offset:{8*nt}")
        a(f"ds_read_b64_tr_b16 v[{r+2}:{r+3}], v{VA} offset:{8*nt+1280}")
    for nt in range(5):
        r=RAW+4*nt
        a(f"s_waitcnt lgkmcnt({2*(4-nt)})")
        if nt<4: a(f"buffer_store_dwordx4 v[{r}:{r+3}], v{VB}, s[{SRD_WS}:{SRD_WS+3}], s68 offen offset:{1024*nt} sc0 sc1")
        else: a(f"buffer_store_dwordx4 v[{r}:{r+3}], v{VC}, s[{SRD_WS}:{SRD_WS+3}], s68 offen sc0 sc1")
    a(f"{lx}:")

def gen_aux(a):
    RAW=2
    XC=130
    VA=200; VB=201; VC=202; VD=203; VZ=204; VX=205
    a(f"v_mov_b32 v{VZ}, 0")
    le=a.newlabel("L_noep")
    a(f"""s_cmp_lg_u32 s53, 0
s_cbranch_scc1 {le}
s_memrealtime s[56:57]
s_waitcnt lgkmcnt(0)
s_or_b32 s56, s56, 1
v_mov_b32 v{VA}, s56
s_mov_b64 exec, 1
buffer_store_dword v{VA}, v{VZ}, s[{SRD_DBG}:{SRD_DBG+3}], 0 offen sc0 sc1
s_mov_b64 exec, -1
{le}:""")
    a(f"""s_and_b32 s72, s53, 7
s_lshl_b32 s72, s72, 1
s_lshr_b32 s73, s53, 7
s_add_u32 s72, s72, s73
s_lshr_b32 s73, s53, 3
s_and_b32 s73, s73, 15
s_lshl_b32 s77, s72, 4
s_add_u32 s77, s77, s73
s_mul_i32 s56, s72, {128*1280}
s_mul_i32 s57, s73, 80
s_add_u32 s56, s56, s57""")
    for i in range(3):
        a(f"""v_add_u32 v{VA}, {64*i}, v1
v_mul_u32_u24 v{VB}, 10923, v{VA}
v_lshrrev_b32 v{VB}, 16, v{VB}
v_mul_u32_u24 v{VC}, 6, v{VB}
v_sub_u32 v{VC}, v{VA}, v{VC}
v_lshlrev_b32 v{VC}, 4, v{VC}
v_mul_u32_u24 v{VB}, 1280, v{VB}
v_add_u32 v{196+i}, v{VB}, v{VC}""")
    for qd in range(4):
        for i in range(3):
            a(f"s_mov_b32 m0, {U0+3072*qd+1024*i}")
            a(f"buffer_load_dwordx4 v{196+i}, s[{SRD_X}:{SRD_X+3}], s56 offen lds")
        if qd<3: a(f"s_add_u32 s56, s56, {32*1280}")
    LRW=2; XF=42; SM=122; TP=130
    a(f"v_mul_u32_u24 v{VA}, 20, v1\ns_mul_i32 s56, s77, {8*1280}")
    for r in range(8):
        a(f"buffer_load_dwordx4 v[{LRW+4*r}:{LRW+4*r+3}], v{VA}, s[{SRD_X}:{SRD_X+3}], s56 offen")
        a(f"buffer_load_dword v{LRW+32+r}, v{VA}, s[{SRD_X}:{SRD_X+3}], s56 offen offset:16")
        if r<7: a(f"s_add_u32 s56, s56, 1280")
    a(f"buffer_load_dword v{VD}, v{VZ}, s[{SRD_DBG}:{SRD_DBG+3}], 0 offen sc0 sc1")
    XR0=146
    a(f"""v_lshrrev_b32 v{VA}, 2, v1
v_mul_u32_u24 v{VA}, 96, v{VA}
v_and_b32 v{VB}, 3, v1
v_lshlrev_b32 v{VC}, 3, v{VB}
v_add_u32 v{VA}, v{VA}, v{VC}
v_add_u32 v{VA}, {U0}, v{VA}
v_and_b32 v196, 15, v1
v_lshlrev_b32 v196, 6, v196
v_lshrrev_b32 v197, 4, v1
v_lshlrev_b32 v197, 3, v197
v_add_u32 v196, v196, v197
v_add_u32 v196, {U0}, v196              ; b64 write addr
v_lshlrev_b32 v197, 4, v1
v_add_u32 v197, {U0}, v197
v_lshrrev_b32 v198, 2, v1
v_lshlrev_b32 v198, 12, v198
v_lshlrev_b32 v{VB}, 4, v{VB}
v_add_u32 v198, v198, v{VB}
s_mul_i32 s56, s73, {40*4096}
s_lshl_b32 s57, s72, 8
s_add_u32 s56, s56, s57
s_add_u32 s56, s56, {G_OFF}
s_add_u32 s57, s56, {16*4096}
s_add_u32 s58, s56, {32*4096}
s_waitcnt vmcnt(17)""")
    stamp(a,1)
    for half in range(2):
        for qd in (2*half,2*half+1):
            for hh in range(2):
                for ct in range(3):
                    r=XR0+12*(qd&1)+2*(3*hh+ct)
                    a(f"ds_read_b64_tr_b16 v[{r}:{r+1}], v{VA} offset:{3072*qd+hh*1536+ct*32}")
        a("s_waitcnt lgkmcnt(0)")
        for qd in (2*half,2*half+1):
            for hh in range(2):
                for ct in range(3):
                    r=XR0+12*(qd&1)+2*(3*hh+ct)
                    a(f"ds_write_b64 v196, v[{r}:{r+1}] offset:{3072*qd+ct*1024+hh*32}")
    a("s_waitcnt lgkmcnt(0)")
    for qd in range(4):
        for ct in range(3):
            r=XR0+12*qd+4*ct
            a(f"ds_read_b128 v[{r}:{r+3}], v197 offset:{3072*qd+ct*1024}")
    a("s_waitcnt vmcnt(0)")
    for qd in range(4):
        a(f"s_waitcnt lgkmcnt({3*(3-qd)})")
        for ct in range(3):
            r=XR0+12*qd+4*ct
            if ct==2: a("s_mov_b32 exec_hi, 0")
            a(f"buffer_store_dwordx4 v[{r}:{r+3}], v198, s[{SRD_WS}:{SRD_WS+3}], s{56+ct} offen offset:{64*qd} sc0 sc1")
            if ct==2: a("s_mov_b64 exec, -1")
    W2S=U0+12288
    if FUSED:
        for i in range(5):
            a(f"""v_add_u32 v{VA}, {64*i}, v1
v_mul_u32_u24 v{VB}, 6554, v{VA}
v_lshrrev_b32 v{VB}, 16, v{VB}
v_mul_u32_u24 v{VC}, 10, v{VB}
v_sub_u32 v{VC}, v{VA}, v{VC}
v_lshlrev_b32 v{VC}, 4, v{VC}
v_mul_u32_u24 v{VB}, 1280, v{VB}
v_add_u32 v{206+i}, v{VB}, v{VC}""")
        l1=a.newlabel("L_w1u")
        for n in range(2):
            if n==1: a(f"s_cmp_lt_u32 s53, 128\ns_cbranch_scc1 {l1}")
            a(f"""s_add_u32 s57, s53, {128*n}
s_lshr_b32 s58, s57, 3
s_and_b32 s59, s57, 7
s_mul_i32 s60, s58, {32*1280}
s_mul_i32 s61, s59, 160
s_add_u32 s60, s60, s61
s_mul_i32 s59, s59, 48
s_add_u32 s{68+n}, s59, s58""")
            for i in range(5):
                a(f"s_mov_b32 m0, {W2S+5120*n+1024*i}")
                a(f"buffer_load_dwordx4 v{206+i}, s[{SRD_W}:{SRD_W+3}], s60 offen lds")
        a(f"{l1}:")
    for r in range(8):
        for k in range(5):
            sr = LRW+4*r+k if k<4 else LRW+32+r
            a(f"v_lshlrev_b32 v{XF+10*r+2*k}, 16, v{sr}")
            a(f"v_and_b32 v{XF+10*r+2*k+1}, 0xffff0000, v{sr}")
    for r in range(8):
        b=XF+10*r; t=TP+2*r
        a(f"v_pk_add_f32 v[{t}:{t+1}], v[{b}:{b+1}], v[{b+2}:{b+3}]")
    for k in (4,6,8):
        for r in range(8):
            b=XF+10*r; t=TP+2*r
            a(f"v_pk_add_f32 v[{t}:{t+1}], v[{t}:{t+1}], v[{b+k}:{b+k+1}]")
    for r in range(8): a(f"v_add_f32 v{SM+r}, v{TP+2*r}, v{TP+2*r+1}")
    wave_sum(a,[SM+r for r in range(8)])
    for r in range(8): a(f"v_mul_f32 v{SM+r}, 0x{f2u(-1.0/640):08x}, v{SM+r}")
    for r in range(8): a(f"v_readlane_b32 s{78+2*r}, v{SM+r}, 63")
    for r in range(8):
        for k in range(5):
            b=XF+10*r+2*k
            a(f"v_pk_add_f32 v[{b}:{b+1}], v[{b}:{b+1}], s[{78+2*r}:{79+2*r}] op_sel_hi:[1,0]")
    for r in range(8):
        b=XF+10*r; t=TP+2*r
        a(f"v_pk_mul_f32 v[{t}:{t+1}], v[{b}:{b+1}], v[{b}:{b+1}]")
    for k in (2,4,6,8):
        for r in range(8):
            b=XF+10*r+k; t=TP+2*r
            a(f"v_pk_fma_f32 v[{t}:{t+1}], v[{b}:{b+1}], v[{b}:{b+1}], v[{t}:{t+1}]")
    for r in range(8): a(f"v_add_f32 v{SM+r}, v{TP+2*r}, v{TP+2*r+1}")
    wave_sum(a,[SM+r for r in range(8)])
    for r in range(8): a(f"v_readlane_b32 s{79+2*r}, v{SM+r}, 63")
    lk=a.newlabel("L_epk")
    a(f"""v_readfirstlane_b32 s67, v{VD}
s_cmp_lg_u32 s67, 0
s_cbranch_scc1 {lk}""")
    get_epoch(a,VZ,VD,67)
    a(f"""{lk}:
v_mov_b32 v{LRW+1}, s67
v_mov_b32 v{LRW+3}, s67
""")
    if FUSED:
        a(f"""s_lshl_b32 s56, s73, 4
s_add_u32 s56, s56, s72
s_lshl_b32 s56, s56, 7
s_add_u32 s56, s56, {FL_OFF}
s_waitcnt vmcnt(0)
s_mov_b64 exec, 1
buffer_store_dword v{LRW+1}, v{VZ}, s[{SRD_WS}:{SRD_WS+3}], s56 offen sc0 sc1
s_mov_b64 exec, -1""")
    for r in range(8):
        a(f"v_writelane_b32 v{LRW}, s{79+2*r}, {r}")
        a(f"v_writelane_b32 v{LRW+2}, s{78+2*r}, {r}")
    a(f"""s_mov_b32 s56, 0x{f2u(1.0/640):08x}
v_mov_b32 v{VB}, 0x{f2u(1e-5):08x}
v_fma_f32 v{LRW}, v{LRW}, s56, v{VB}
v_rsq_f32 v{LRW}, v{LRW}
v_lshlrev_b32 v{VB}, 4, v1
s_lshl_b32 s56, s77, 7
s_add_u32 s56, s56, {ST_OFF}
v_mul_f32 v{LRW+2}, v{LRW+2}, v{LRW}
s_mov_b64 exec, 0xff
buffer_store_dwordx4 v[{LRW}:{LRW+3}], v{VB}, s[{SRD_WS}:{SRD_WS+3}], s56 offen sc0 sc1
s_mov_b64 exec, -1""")
    stamp(a,2)
    if not FUSED: return
    WR_=42
    a(f"""v_lshrrev_b32 v{VA}, 5, v1
v_lshlrev_b32 v{VA}, 4, v{VA}
v_bfe_u32 v{VB}, v1, 2, 3
v_add_u32 v{VA}, v{VA}, v{VB}
v_mul_u32_u24 v{VA}, 160, v{VA}
v_and_b32 v{VB}, 3, v1
v_mul_u32_u24 v{VB}, 40, v{VB}
v_add_u32 v{VA}, v{VA}, v{VB}
v_add_u32 v{VA}, {W2S}, v{VA}
v_lshlrev_b32 v{VB}, 4, v1
v_add_u32 v{VC}, 4096, v{VB}""")
    l1=a.newlabel("L_w2u")
    for n in range(2):
        if n==1: a(f"s_cmp_lt_u32 s53, 128\ns_cbranch_scc1 {l1}")
        a(f"s_mul_i32 s56, s{68+n}, 5120\ns_add_u32 s56, s56, {W2F_OFF}")
        for nt in range(5):
            r=WR_+20*n+4*nt
            a(f"ds_read_b64_tr_b16 v[{r}:{r+1}], v{VA} offset:{5120*n+8*nt}")
            a(f"ds_read_b64_tr_b16 v[{r+2}:{r+3}], v{VA} offset:{5120*n+8*nt+1280}")
        for nt in range(5):
            r=WR_+20*n+4*nt
            a(f"s_waitcnt lgkmcnt({2*(4-nt)})")
            if nt<4: a(f"buffer_store_dwordx4 v[{r}:{r+3}], v{VB}, s[{SRD_WS}:{SRD_WS+3}], s56 offen offset:{1024*nt} sc0 sc1")
            else: a(f"buffer_store_dwordx4 v[{r}:{r+3}], v{VC}, s[{SRD_WS}:{SRD_WS+3}], s56 offen sc0 sc1")
    a(f"{l1}:")
    a(f"""s_mul_i32 s56, s64, 1639
s_lshr_b32 s56, s56, 16
s_add_u32 s57, s64, s63
s_sub_u32 s57, s57, 1
s_mul_i32 s57, s57, 1639
s_lshr_b32 s57, s57, 16
s_lshl_b32 s56, s56, 11
s_lshl_b32 s57, s57, 11
v_mov_b32 v{VB}, s56
v_mov_b32 v{VC}, s57
v_and_b32 v{VD}, 16, v1
v_cmp_eq_u32 vcc, 0, v{VD}
v_cndmask_b32 v{VB}, v{VC}, v{VB}, vcc
v_and_b32 v{VD}, 15, v1
v_lshlrev_b32 v{VD}, 7, v{VD}
v_add_u32 v{VB}, v{VB}, v{VD}
s_mov_b32 s56, {FL_OFF}
s_lshl_b32 s68, s68, 7
s_add_u32 s68, s68, {FLW}
s_lshl_b32 s69, s69, 7
s_add_u32 s69, s69, {FLW}
s_waitcnt vmcnt(0)
s_mov_b64 exec, 1
buffer_store_dword v{LRW+1}, v{VZ}, s[{SRD_WS}:{SRD_WS+3}], s68 offen sc0 sc1""")
    l2=a.newlabel("L_w3u")
    a(f"""s_cmp_lt_u32 s53, 128
s_cbranch_scc1 {l2}
buffer_store_dword v{LRW+1}, v{VZ}, s[{SRD_WS}:{SRD_WS+3}], s69 offen sc0 sc1
{l2}:
s_mov_b64 exec, -1
s_mov_b32 s98, {1 if NOWAIT else 200000}""")
    stamp(a,3)
    lp=a.newlabel("L_poll"); ld=a.newlabel("L_polld")
    a(f"""{lp}:
buffer_load_dword v{RAW+4}, v{VB}, s[{SRD_WS}:{SRD_WS+3}], s56 offen sc0 sc1
s_waitcnt vmcnt(0)
v_cmp_ne_u32 vcc, s67, v{RAW+4}
s_nop 1
s_cmp_eq_u64 vcc, 0
s_cbranch_scc1 {ld}
s_sleep 4
s_sub_u32 s98, s98, 1
s_cmp_lg_u32 s98, 0
s_cbranch_scc1 {lp}
{ld}:""")
    stamp(a,4)

def gen_stage_head(a):
    RAW=2
    XC=34
    VA=46; VB=47; VX=48; VZ=49; TT=50
    le=a.newlabel("L_noep")
    a(f"""v_mov_b32 v{VZ}, 0
s_or_b32 s56, s53, s{S_WAVE}
s_cmp_lg_u32 s56, 0
s_cbranch_scc1 {le}
s_memrealtime s[56:57]
s_waitcnt lgkmcnt(0)
s_or_b32 s56, s56, 1
v_mov_b32 v{VA}, s56
s_mov_b64 exec, 1
buffer_store_dword v{VA}, v{VZ}, s[{SRD_DBG}:{SRD_DBG+3}], 0 offen sc0 sc1
s_mov_b64 exec, -1
{le}:
v_sub_u32 v{VA}, 63, v1
v_lshlrev_b32 v{VX}, 2, v{VA}
v_lshlrev_b32 v{VA}, 5, v{VA}
s_lshl_b32 s56, s{S_WAVE}, 2
s_sub_u32 s56, 12, s56
s_lshl_b32 s57, s56, 11
s_add_u32 s57, s57, {ST_OFF}
s_lshl_b32 s58, s56, 8
s_lshl_b32 s59, s64, 12
s_add_u32 s58, s58, s59
s_add_u32 s58, s58, {G_OFF}
s_add_u32 s59, s58, 4096
s_add_u32 s60, s58, 8192
s_add_u32 s61, s57, 4096""")
    KP=80
    a(f"""v_lshlrev_b32 v{VB}, 4, v1
s_min_u32 s62, s{S_WAVE}, 2
s_add_u32 s62, s64, s62
s_lshl_b32 s62, s62, 11
s_add_u32 s62, s62, {KI_OFF}
s_mul_i32 s65, s{S_WAVE}, {REG}
buffer_load_dwordx4 v[{KP}:{KP+3}], v{VB}, s[{SRD_WS}:{SRD_WS+3}], s62 offen
buffer_load_dwordx4 v[{KP+4}:{KP+7}], v{VB}, s[{SRD_WS}:{SRD_WS+3}], s62 offen offset:1024""")
    for jj in range(4):
        o=2048*(3-jj); sb=57 if o<4096 else 61; o%=4096
        a(f"buffer_load_dwordx4 v[{RAW+8*jj}:{RAW+8*jj+3}], v{VA}, s[{SRD_WS}:{SRD_WS+3}], s{sb} offen offset:{o}")
        a(f"buffer_load_dwordx4 v[{RAW+8*jj+4}:{RAW+8*jj+7}], v{VA}, s[{SRD_WS}:{SRD_WS+3}], s{sb} offen offset:{o+16}")
        for k in range(3):
            a(f"buffer_load_dword v{XC+4*k+jj}, v{VX}, s[{SRD_WS}:{SRD_WS+3}], s{58+k} offen offset:{256*(3-jj)}")
    lk=a.newlabel("L_nok")
    a(f"""s_cmp_ge_u32 s{S_WAVE}, s63
s_cbranch_scc1 {lk}
s_waitcnt vmcnt(20)""")
    gen_kexpand(a, KP, 88, 104, 128, 129, 130, 131, 132)
    a(f"""{lk}:
v_add_u32 v{VB}, {U0}, v{VB}""")

def gen_stage(a):
    RAW=2; XC=34; VA=46; VB=47; VX=48; VZ=49; TT=50
    if FUSED:
        lr=a.newlabel("L_sret"); lg=a.newlabel("L_sgo")
        a(f"""v_mov_b32 v{VZ}, 0
v_sub_u32 v{VA}, 63, v1
v_lshlrev_b32 v{VX}, 2, v{VA}
v_lshlrev_b32 v{VA}, 5, v{VA}
s_lshl_b32 s56, s{S_WAVE}, 2
s_sub_u32 s56, 12, s56
s_lshl_b32 s57, s56, 11
s_add_u32 s57, s57, {ST_OFF}
s_lshl_b32 s58, s56, 8
s_lshl_b32 s59, s64, 12
s_add_u32 s58, s58, s59
s_add_u32 s58, s58, {G_OFF}
s_add_u32 s59, s58, 4096
s_add_u32 s60, s58, 8192
s_add_u32 s61, s57, 4096
v_lshlrev_b32 v{VB}, 4, v1
v_add_u32 v{VB}, {U0}, v{VB}
s_mov_b32 s98, {1 if NOWAIT else 200000}
s_waitcnt lgkmcnt(0)""")
        stamp(a,9)
        a("s_barrier")
        a(f"buffer_load_dword v{TT+24}, v{VZ}, s[{SRD_DBG}:{SRD_DBG+3}], 0 offen sc0 sc1")
        for jj in range(4):
            for k in range(3):
                a(f"buffer_load_dword v{XC+4*k+jj}, v{VX}, s[{SRD_WS}:{SRD_WS+3}], s{58+k} offen offset:{256*(3-jj)} sc0 sc1")
        a(f"{lr}:")
        for jj in range(4):
            o=2048*(3-jj); sb=57 if o<4096 else 61; o%=4096
            a(f"buffer_load_dwordx4 v[{RAW+8*jj}:{RAW+8*jj+3}], v{VA}, s[{SRD_WS}:{SRD_WS+3}], s{sb} offen offset:{o} sc0 sc1")
            a(f"buffer_load_dwordx4 v[{RAW+8*jj+4}:{RAW+8*jj+7}], v{VA}, s[{SRD_WS}:{SRD_WS+3}], s{sb} offen offset:{o+16} sc0 sc1")
        a(f"s_waitcnt vmcnt(0)\nv_readfirstlane_b32 s67, v{TT+24}\nv_mov_b32 v{TT}, 0")
        for i in range(8):
            r=RAW+4*i
            a(f"v_xor_b32 v{TT+1}, s67, v{r+1}\nv_xor_b32 v{TT+2}, s67, v{r+3}\nv_or3_b32 v{TT}, v{TT}, v{TT+1}, v{TT+2}")
        a(f"""v_cmp_ne_u32 vcc, 0, v{TT}
s_nop 1
s_cmp_eq_u64 vcc, 0
s_cbranch_scc1 {lg}
s_sub_u32 s98, s98, 1
s_cmp_eq_u32 s98, 0
s_cbranch_scc1 {lg}
s_sleep 4
s_branch {lr}
{lg}:""")
    else:
        gen_stage_head(a)
    for i in range(4): a(f"v_mov_b32 v{TT+20+i}, 0")
    lz=a.newlabel("L_noz")
    a(f"""s_cmp_lg_u32 s{S_WAVE}, 3
s_cbranch_scc1 {lz}
s_mov_b64 exec, 0xf""")
    for k in range(3):
        a(f"ds_write_b128 v{VB}, v[{TT+20}:{TT+23}] offset:{k*UCH+UC1+4096}")
        a(f"ds_write_b128 v{VB}, v[{TT+20}:{TT+23}] offset:{k*UCH+4096}")
    a(f"""s_mov_b64 exec, -1
{lz}:
s_lshl_b32 s56, s{S_WAVE}, 10
s_add_u32 s56, s56, {U0}
s_mov_b32 m0, s56
s_waitcnt vmcnt(0)""")
    stamp(a,1)
    for jj in range(4):
        r=RAW+8*jj; t=TT+9*(jj%2)
        for k in range(3):
            a(f"v_lshlrev_b32 v{t+2*k}, 16, v{XC+4*k+jj}")
            a(f"v_and_b32 v{t+2*k+1}, 0xffff0000, v{XC+4*k+jj}")
        for k in range(3):
            a(f"v_fma_f32 v{t+2*k}, v{t+2*k}, v{r}, v{r+2}")
            a(f"v_fma_f32 v{t+2*k+1}, v{t+2*k+1}, v{r+4}, v{r+6}")
        for k in range(3):
            a(f"v_cvt_pk_bf16_f32 v{t+6+k}, v{t+2*k+1}, v{t+2*k}")
        if jj>0:
            tp=TT+9*((jj-1)%2)
            for k in range(3):
                a(f"ds_write_addtid_b32 v{tp+6+k} offset:{k*UCH+UC1+256*(jj-1)}")
                a(f"ds_write_addtid_b32 v{tp+6+k} offset:{k*UCH+256*(jj-1)+4}")
    tp=TT+9
    for k in range(3):
        a(f"ds_write_addtid_b32 v{tp+6+k} offset:{k*UCH+UC1+256*3}")
        a(f"ds_write_addtid_b32 v{tp+6+k} offset:{k*UCH+256*3+4}")
    a(f"buffer_load_dword v7, v{VZ}, s[{SRD_DBG}:{SRD_DBG+3}], 0 offen sc0 sc1")

def gen_conv(a):
    VA0=2; VB0=3; VF=4; VAu=5; VBu=6; T=8
    ACC=12
    F=[44,108]
    a(f"""v_and_b32 v{T}, 15, v1
v_lshrrev_b32 v{T+1}, 4, v1
v_and_b32 v{T+2}, 1, v1
v_mul_u32_u24 v{VA0}, {KC1}, v{T+2}
v_lshrrev_b32 v{T+3}, 1, v{T}
v_lshlrev_b32 v{T+3}, 6, v{T+3}
v_add_u32 v{VA0}, v{VA0}, v{T+3}
v_lshlrev_b32 v{T+3}, 4, v{T+1}
v_add_u32 v{VA0}, v{VA0}, v{T+3}
v_mul_u32_u24 v{VB0}, {UC1}, v{T+2}
v_add_u32 v{VB0}, v{VB0}, v{T+3}
v_add_u32 v{T+3}, v{T}, v{T+2}
v_lshlrev_b32 v{T+3}, 2, v{T+3}
v_sub_u32 v{VB0}, v{VB0}, v{T+3}
v_add_u32 v{VB0}, {U0+2*(1824-1792)}, v{VB0}
v_lshlrev_b32 v{VF}, 4, v1
v_add_u32 v{VF}, {YB}, v{VF}
s_lshl_b32 s54, s63, 1
s_mul_i32 s55, s54, s{S_WAVE}
s_add_u32 s56, s55, s54""")
    for i in range(32): a(f"v_mov_b32 v{ACC+i}, 0")
    def addr(su):
        return f"""s_lshr_b32 s57, s{su}, 3
s_and_b32 s58, s{su}, 7
s_lshl_b32 s58, s58, 6
s_mul_i32 s59, s57, {REG}
s_mul_i32 s60, s57, {UCH}
s_add_u32 s59, s59, s58
s_add_u32 s60, s60, s58
v_add_u32 v{VAu}, s59, v{VA0}
v_add_u32 v{VBu}, s60, v{VB0}"""
    def reads(b):
        L=[]
        for k in range(8):
            L.append(f"ds_read_b128 v[{F[b]+4*k}:{F[b]+4*k+3}], v{VAu} offset:{512*k}")
            L.append(f"ds_read_b64 v[{F[b]+32+4*k}:{F[b]+32+4*k+1}], v{VBu} offset:{512*(7-k)}")
            L.append(f"ds_read_b64 v[{F[b]+32+4*k+2}:{F[b]+32+4*k+3}], v{VBu} offset:{512*(7-k)+8}")
        return L
    def mfmas(b):
        prs=[(i,c-i) for c in range(8) for i in range(c+1)]
        prs.sort(key=lambda p:(p[0], p[1]))
        return [f"v_mfma_f32_16x16x32_bf16 v[{ACC+4*(i+c)}:{ACC+4*(i+c)+3}], v[{F[b]+4*i}:{F[b]+4*i+3}], v[{F[b]+32+4*c}:{F[b]+32+4*c+3}], v[{ACC+4*(i+c)}:{ACC+4*(i+c)+3}]" for i,c in prs]
    if FUSED and CWAIT:
        lx_=a.newlabel("L_cw"); lp_=a.newlabel("L_cwp")
        a(f"""s_cmp_lg_u32 s{S_WAVE}, 3
s_cbranch_scc1 {lx_}
s_and_b32 s57, s53, 7
s_lshl_b32 s57, s57, 5
s_lshr_b32 s58, s53, 3
s_add_u32 s57, s57, s58
s_lshl_b32 s57, s57, 7
s_add_u32 s57, s57, {FLA}
v_mov_b32 v{T}, 64
s_mov_b32 s98, {1 if NOWAIT else 200000}
{lp_}:
buffer_load_dword v{T+1}, v{T}, s[{SRD_WS}:{SRD_WS+3}], s57 offen sc0 sc1
s_waitcnt vmcnt(0)
v_cmp_ne_u32 vcc, s67, v{T+1}
s_nop 1
s_cmp_eq_u64 vcc, 0
s_cbranch_scc1 {lx_}
s_sub_u32 s98, s98, 1
s_cmp_eq_u32 s98, 0
s_cbranch_scc1 {lx_}
s_sleep 4
s_branch {lp_}
{lx_}:""")
    a("s_waitcnt lgkmcnt(0)")
    stamp(a,5)
    a("s_barrier")
    stamp(a,6)
    a(addr(55))
    for l in reads(0): a(l)
    lloop=a.newlabel("L_cv"); lfl=a.newlabel("L_fl"); lend=a.newlabel("L_cve"); lnofl=a.newlabel("L_nofl")
    a(f"{lloop}:")
    for b in range(2):
        a("s_add_u32 s55, s55, 1")
        a(addr(55))
        a("s_waitcnt lgkmcnt(0)")
        rd=reads(1-b); mf=mfmas(b)
        while mf:
            a(mf.pop(0))
            if rd: a(rd.pop(0))
            if mf and len(rd)<=12:
                a(mf.pop(0))
    a(f"""s_cmp_eq_u32 s55, s56
s_cbranch_scc1 {lend}
s_and_b32 s58, s55, 7
s_cmp_lg_u32 s58, 0
s_cbranch_scc1 {lloop}
s_lshr_b32 s57, s55, 3
s_sub_u32 s57, s57, 1
s_mul_i32 s57, s57, {REG}
v_add_u32 v{T}, s57, v{VF}""")
    a.nop(6)
    for c in range(8): a(f"ds_write_b128 v{T}, v[{ACC+4*c}:{ACC+4*c+3}] offset:{1024*c}")
    for i in range(32): a(f"v_mov_b32 v{ACC+i}, 0")
    a(f"""s_branch {lloop}
{lend}:
s_setprio 3
s_sub_u32 s57, s56, 1
s_lshr_b32 s57, s57, 3
s_mul_i32 s58, s57, {REG}
v_add_u32 v{T}, s58, v{VF}
s_and_b32 s59, s{S_WAVE}, 1
s_cmp_eq_u32 s{S_WAVE}, 2
s_cselect_b32 s60, 1, 0
s_cmp_eq_u32 s63, 3
s_cselect_b32 s59, s60, s59
s_cmp_eq_u32 s59, 0
s_cbranch_scc1 {lnofl}""")
    a.nop(9)
    for c in range(8): a(f"ds_write_b128 v{T}, v[{ACC+4*c}:{ACC+4*c+3}] offset:{1024*c}")
    a(f"""{lnofl}:
s_waitcnt lgkmcnt(0)""")
    stamp(a,7)
    lx=a.newlabel("L_cvx")
    a(f"""s_barrier
s_cmp_lg_u32 s59, 0
s_cbranch_scc1 {lx}""")
    P=F[0]
    for c in range(8): a(f"ds_read_b128 v[{P+4*c}:{P+4*c+3}], v{T} offset:{1024*c}")
    a(f"""v_lshrrev_b32 v{T+1}, 4, v1
v_lshlrev_b32 v{T+1}, 7, v{T+1}
v_and_b32 v{T+2}, 15, v1
v_lshlrev_b32 v{T+2}, 2, v{T+2}
v_add_u32 v{T+1}, v{T+2}, v{T+1}
s_add_u32 s61, s57, s64
s_mul_i32 s57, s61, {GS}
s_add_u32 s57, s57, {Y_OFF}""")
    for c in range(8):
        a(f"s_waitcnt lgkmcnt({7-c})")
        a(f"v_pk_add_f32 v[{P+4*c}:{P+4*c+1}], v[{P+4*c}:{P+4*c+1}], v[{ACC+4*c}:{ACC+4*c+1}]")
        a(f"v_pk_add_f32 v[{P+4*c+2}:{P+4*c+3}], v[{P+4*c+2}:{P+4*c+3}], v[{ACC+4*c+2}:{ACC+4*c+3}]")
        a(f"v_cvt_pk_bf16_f32 v{ACC+4*c}, v{P+4*c}, v{P+4*c+1}")
        a(f"v_cvt_pk_bf16_f32 v{ACC+4*c+1}, v{P+4*c+2}, v{P+4*c+3}")
        if c>0:
            a(f"buffer_store_dword v{ACC+4*(c-1)}, v{T+1}, s[{SRD_WS}:{SRD_WS+3}], s57 offen offset:{512*(c-1)} sc0 sc1")
            a(f"buffer_store_dword v{ACC+4*(c-1)+1}, v{T+1}, s[{SRD_WS}:{SRD_WS+3}], s57 offen offset:{512*(c-1)+64} sc0 sc1")
    a(f"buffer_store_dword v{ACC+28}, v{T+1}, s[{SRD_WS}:{SRD_WS+3}], s57 offen offset:{512*7} sc0 sc1")
    a(f"buffer_store_dword v{ACC+29}, v{T+1}, s[{SRD_WS}:{SRD_WS+3}], s57 offen offset:{512*7+64} sc0 sc1")
    lk=a.newlabel("L_cepk")
    a(f"""v_mov_b32 v{T}, 0
s_waitcnt vmcnt(0)
v_readfirstlane_b32 s67, v7
s_cmp_lg_u32 s67, 0
s_cbranch_scc1 {lk}""")
    get_epoch(a,T,7,67)
    a(f"""{lk}:
s_lshl_b32 s61, s61, 7
s_add_u32 s61, s61, {FLY if FUSED else FL_OFF}
v_mov_b32 v7, s67
s_mov_b64 exec, 1
buffer_store_dword v7, v{T}, s[{SRD_WS}:{SRD_WS+3}], s61 offen sc0 sc1
s_mov_b64 exec, -1""")
    a(f"{lx}:")

def wave_sum(a, regs):
    for mod in ("row_shr:1","row_shr:2","row_shr:4","row_shr:8"):
        for r in regs:
            a(f"v_add_f32_dpp v{r}, v{r}, v{r} {mod} row_mask:0xf bank_mask:0xf bound_ctrl:1")
    for r in regs:
        a(f"v_add_f32_dpp v{r}, v{r}, v{r} row_bcast:15 row_mask:0xa bank_mask:0xf")
    for r in regs:
        a(f"v_add_f32_dpp v{r}, v{r}, v{r} row_bcast:31 row_mask:0xc bank_mask:0xf")

def gen_gemm1(a, opt):
    NXS=7; WR=4
    XL=WR*12288
    XG=2; XW=3; XR=4; WS=5; WRD=8; T=11
    VZ=15; ONES=16; ACC=20; CS=68; FR=84; XS=132; EP=244; STR=246
    B1R=250
    vm=VM(a)
    a("s_and_b32 s53, s2, 255\ns_and_b32 s54, s53, 7\ns_lshr_b32 s55, s53, 3")
    if opt.get("map1","loc")=="loc":
        a("s_lshl_b32 s56, s54, 1\ns_lshr_b32 s57, s55, 4\ns_add_u32 s56, s56, s57\ns_and_b32 s57, s55, 15")
    else:
        a("""s_and_b32 s56, s54, 3
s_lshl_b32 s56, s56, 2
s_lshr_b32 s57, s55, 3
s_add_u32 s56, s56, s57
s_lshr_b32 s57, s54, 2
s_lshl_b32 s57, s57, 3
s_and_b32 s58, s55, 7
s_add_u32 s57, s57, s58""")
    a(f"""s_lshl_b32 s60, s56, 7
s_lshl_b32 s61, s{S_WAVE}, 5
s_add_u32 s60, s60, s61
s_mul_i32 s61, s60, 1280
v_lshrrev_b32 v{T}, 3, v1
v_mul_u32_u24 v{XG}, 1280, v{T}
v_and_b32 v{T+1}, 7, v1
v_lshlrev_b32 v{T+2}, 4, v{T+1}
v_add_u32 v{XG}, v{XG}, v{T+2}
v_add_u32 v{XG}, s61, v{XG}""")
    ROT=opt.get("rot","2")
    if opt.get("map1","loc")=="loc":
        a("s_and_b32 s70, s56, 1\ns_mul_i32 s70, s70, 5\ns_add_u32 s70, s70, s57")
    else:
        a("s_and_b32 s70, s56, 3\ns_mul_i32 s70, s70, 3\ns_and_b32 s71, s57, 7\ns_add_u32 s70, s70, s71")
    if ROT=="2": a("s_add_u32 s70, s70, s54")
    if ROT=="0": a("s_mov_b32 s70, 0")
    a("""s_mul_i32 s71, s70, 6554
s_lshr_b32 s71, s71, 16
s_mul_i32 s71, s71, 10
s_sub_u32 s70, s70, s71
s_lshl_b32 s70, s70, 7""")
    for S in range(10):
        a(f"""s_add_u32 s71, s70, {128*S}
s_sub_u32 s72, s71, 1280
s_cmp_ge_u32 s71, 1280
s_cselect_b32 s{80+S}, s72, s71""")
    items=[]
    for S in range(10):
        items+=[("x",S,0),("w",S,0),("x",S,1),("w",S,1),("x",S,2),("w",S,2),("x",S,3)]
    st={"wr":-1,"bar":-1,"wok":False}
    def can(it):
        k,n,_=it
        if k=="x": return n-NXS<=st["wr"]
        if not st["wok"]: return False
        return n<WR or st["bar"]>=n-WR+1
    def pump(n=1):
        c=0
        while c<n:
            idx=next((i for i,it in enumerate(items) if can(it)),None)
            if idx is None: return
            k,m,h=items.pop(idx)
            if k=="x":
                r=XS+16*(m%NXS)+4*h
                a(f"s_add_u32 s65, s{80+m}, {h*8*1280}")
                a(f"buffer_load_dwordx4 v[{r}:{r+3}], v{XG}, s[{SRD_X}:{SRD_X+3}], s65 offen")
            else:
                a(f"s_mul_i32 s65, s{80+m}, 1536")
                a(f"s_add_u32 m0, s64, {(m%WR)*12288+1024*h}")
                a(f"buffer_load_dwordx4 v{WS+h}, s[{SRD_W}:{SRD_W+3}], s65 offen lds")
            vm.issue((k,m)); c+=1
    def spaced(lines, every):
        for i,l in enumerate(lines):
            a(l)
            if every and i%every==every-1: pump(1)
    pump(4)
    a(f"s_mul_i32 s62, s57, 192\ns_mul_i32 s63, s{S_WAVE}, {16*3072}\ns_add_u32 s62, s62, s63\ns_mul_i32 s64, s{S_WAVE}, 3072")
    for i in range(3):
        a(f"""v_add_u32 v{T}, {64*i}, v1
v_mul_u32_u24 v{T+1}, 5462, v{T}
v_lshrrev_b32 v{T+1}, 16, v{T+1}
v_mul_u32_u24 v{T+2}, 12, v{T+1}
v_sub_u32 v{T+2}, v{T}, v{T+2}
v_lshlrev_b32 v{T+2}, 4, v{T+2}
v_mul_u32_u24 v{T+1}, 3072, v{T+1}
v_add_u32 v{T+1}, v{T+1}, v{T+2}
v_add_u32 v{WS+i}, s62, v{T+1}""")
    st["wok"]=True
    pump(3)
    setup=f"""s_lshl_b32 s66, s{S_WAVE}, 13
s_add_u32 s66, s66, {XL}
v_lshrrev_b32 v{T}, 3, v1
v_lshrrev_b32 v{T+1}, 1, v{T}
v_and_b32 v{T+2}, 7, v1
v_xor_b32 v{T+1}, v{T+1}, v{T+2}
v_lshlrev_b32 v{T+1}, 4, v{T+1}
v_lshlrev_b32 v{T}, 7, v{T}
v_add_u32 v{XW}, v{T}, v{T+1}
v_add_u32 v{XW}, s66, v{XW}
v_and_b32 v{T}, 31, v1
v_bfe_u32 v{T+1}, v1, 1, 3
v_lshrrev_b32 v{T+2}, 5, v1
v_xor_b32 v{T+1}, v{T+1}, v{T+2}
v_lshlrev_b32 v{T+1}, 4, v{T+1}
v_lshlrev_b32 v{T}, 7, v{T}
v_add_u32 v{XR}, v{T}, v{T+1}
v_add_u32 v{XR}, s66, v{XR}
s_cmp_eq_u32 s{S_WAVE}, 3
s_cselect_b32 s67, 0, s{S_WAVE}
s_add_u32 s68, s67, 1
s_cmp_eq_u32 s68, 3
s_cselect_b32 s68, 0, s68
s_add_u32 s69, s68, 1
s_cmp_eq_u32 s69, 3
s_cselect_b32 s69, 0, s69
v_lshrrev_b32 v{T}, 5, v1
v_lshlrev_b32 v{T}, 3, v{T}
v_bfe_u32 v{T+1}, v1, 2, 2
v_add_u32 v{T}, v{T}, v{T+1}
v_mul_u32_u24 v{T}, 192, v{T}
v_bfe_u32 v{T+1}, v1, 4, 1
v_lshlrev_b32 v{T+1}, 5, v{T+1}
v_add_u32 v{T}, v{T}, v{T+1}
v_and_b32 v{T+1}, 3, v1
v_lshlrev_b32 v{T+1}, 3, v{T+1}
v_add_u32 v{T}, v{T}, v{T+1}
v_mov_b32 v{VZ}, 0""".split("\n")
    for ft in range(3):
        setup+=[f"s_lshl_b32 s71, s{67+ft}, 6", f"v_add_u32 v{WRD+ft}, s71, v{T}"]
    setup+=[f"v_mov_b32 v{ONES+i}, 0x3f803f80" for i in range(4)]+[f"v_mov_b32 v{ACC+i}, 0" for i in range(64)]
    spaced(setup, int(opt.get("e1",16)))
    def wrx(S,h):
        assert not any(it[0]=="x" and it[1]==S for it in items), ("x not issued",S)
        if h==0: vm.wait_for(("x",S))
        r=XS+16*(S%NXS)+4*h
        a(f"ds_write_b128 v{XW if h%2==0 else F2}, v[{r}:{r+3}] offset:{(S&1)*4096+1024*h}")
        if h==3: st["wr"]=S
    F2=251
    a(f"v_xor_b32 v{F2}, 64, v{XW}")
    def reads(u):
        S=u//4; ks=u%4; fb=FR+16*(u%3)
        wo=(S%WR)*12288+ks*16*192
        out=[f"ds_read_b128 v[{fb+12}:{fb+15}], v{XRK[ks]} offset:{(S&1)*4096}"]
        for i in range(3):
            out.append(f"ds_read_b64_tr_b16 v[{fb+4*i}:{fb+4*i+1}], v{WRD+i} offset:{wo}")
            out.append(f"ds_read_b64_tr_b16 v[{fb+4*i+2}:{fb+4*i+3}], v{WRD+i} offset:{wo+768}")
        return out
    XRK=[XR,252,253,254]
    for ks in range(1,4): a(f"v_xor_b32 v{XRK[ks]}, {32*ks}, v{XR}")
    def mfmas(u):
        fb=FR+16*(u%3); out=[]
        for ft in range(3):
            c=ACC+16*ft
            out.append(f"v_mfma_f32_32x32x16_bf16 v[{c}:{c+15}], v[{fb+4*ft}:{fb+4*ft+3}], v[{fb+12}:{fb+15}], v[{c}:{c+15}]")
        out.append(f"v_mfma_f32_32x32x16_bf16 v[{CS}:{CS+15}], v[{fb}:{fb+3}], v[{ONES}:{ONES+3}], v[{CS}:{CS+15}]")
        return out
    for h in range(4): wrx(0,h)
    vm.wait_for(("w",0))
    a("s_waitcnt lgkmcnt(0)\ns_barrier")
    st["bar"]=0
    stamp(a,1)
    for l in reads(0)+reads(1): a(l)
    pump(2)
    Q=int(opt.get("q",2))
    lq=14
    for u in range(40):
        S=u//4; ks=u%4
        if u==20: stamp(a,2)
        PU=int(opt.get("pu",28))
        if PROF and PU<=u<PU+4: a(f"s_memtime s[{90+2*(u-PU)}:{91+2*(u-PU)}]")
        if PROF and u==PU+4:
            a("s_memtime s[70:71]\ns_waitcnt lgkmcnt(0)")
            for i in range(1,4): a(f"s_sub_u32 s{90+2*i}, s{90+2*i}, s90\nv_writelane_b32 v255, s{90+2*i}, {8+i}")
            a("s_sub_u32 s70, s70, s90\nv_writelane_b32 v255, s70, 12")
        nb = (u+2)<40
        isbar = nb and (u+2)%4==0
        mf=mfmas(u); rd=reads(u+2) if nb else []
        a(f"s_waitcnt lgkmcnt({min(15,st.get('after',7))})")
        Sw=(u+6)//4; hw=(u+6)%4
        wr=[(Sw,hw)] if Sw<10 else []
        if u<2: wr=[(1,2*u),(1,2*u+1)]
        after=0
        q=Q
        for i in range(4):
            a(mf[i])
            if isbar:
                if i==0 and q>0: pump(1); q-=1
                if i==1:
                    assert not any(it[0]=="w" and it[1]==S+1 for it in items), ("w not issued",S+1)
                    vm.wait_for(("w",S+1))
                    a("s_waitcnt lgkmcnt(0)\ns_barrier")
                    st["bar"]=S+1; after=0
                nr = 0 if i<1 else (3 if i<3 else 1)
            else:
                nr = 2
            for _ in range(nr):
                if rd: a(rd.pop(0)); after+=1
            if not isbar and q>0 and i in (1,2): pump(1); q-=1
            if isbar and i==2 and q>0: pump(1); q-=1
            if (i==3 or (i==2 and len(wr)>1)) and wr:
                wrx(*wr.pop(0)); after+=1
        assert not rd and not wr
        st["after"]=after; lq=1
        if u==24:
            a(f"buffer_load_dword v{EP}, v{VZ}, s[{SRD_DBG}:{SRD_DBG+3}], 0 offen sc0 sc1"); vm.issue("ep")
            a(f"""v_lshlrev_b32 v{T}, 2, v1
s_mul_i32 s70, s57, 192
v_add_u32 v{T}, s70, v{T}
global_load_dword v{B1R}, v{T}, s[{S_B1}:{S_B1+1}]""".replace("v_lshlrev_b32 v%d, 2, v1"%T, "v_min_u32 v%d, 47, v1\nv_lshlrev_b32 v%d, 2, v%d"%(T,T,T)))
            vm.issue("b1")
        if u==int(opt.get("hint",99)) and FUSED:
            lh=a.newlabel("L_hint")
            vm.wait_for("ep")
            a(f"""v_readfirstlane_b32 s76, v{EP}
s_lshl_b32 s72, s56, 4
s_add_u32 s72, s72, s57
s_lshl_b32 s72, s72, 7
s_add_u32 s72, s72, {FLA+64}
s_cmp_lg_u32 s{S_WAVE}, 0
s_cbranch_scc1 {lh}
s_mov_b64 exec, 1
buffer_store_dword v{EP}, v{VZ}, s[{SRD_WS}:{SRD_WS+3}], s72 offen sc0 sc1
s_mov_b64 exec, -1
{lh}:""")
        if u==34:
            a(f"""v_and_b32 v{T+1}, 31, v1
v_lshlrev_b32 v{T+1}, 4, v{T+1}
s_lshl_b32 s71, s60, 4
s_add_u32 s71, s71, {ST_OFF}
buffer_load_dwordx4 v[{STR}:{STR+3}], v{T+1}, s[{SRD_WS}:{SRD_WS+3}], s71 offen sc0 sc1""")
            vm.issue("st")
    assert not items
    stamp(a,3)
    CSL=XL+16384; B1L=CSL+512
    lk=a.newlabel("L_gek"); lp=a.newlabel("L_gp"); ld=a.newlabel("L_gpd")
    a(f"""s_waitcnt vmcnt(0)
v_lshrrev_b32 v{T}, 5, v1
v_lshlrev_b32 v{T}, 4, v{T}                ; 16h
s_lshl_b32 s70, s67, 7
s_add_u32 s70, s70, {CSL}
v_add_u32 v{T+2}, s70, v{T}
v_lshlrev_b32 v{FR}, 16, v{B1R}
v_and_b32 v{FR+1}, 0xffff0000, v{B1R}
v_lshlrev_b32 v{T+3}, 3, v1
v_add_u32 v{T+3}, {B1L}, v{T+3}
v_readfirstlane_b32 s76, v{EP}
s_mov_b32 exec_lo, 1
s_mov_b32 exec_hi, 1""")
    for q_ in range(4): a(f"ds_write_b128 v{T+2}, v[{CS+4*q_}:{CS+4*q_+3}] offset:{32*q_}")
    a(f"""s_mov_b32 exec_lo, -1
s_mov_b32 exec_hi, 0xffff
ds_write_b64 v{T+3}, v[{FR}:{FR+1}]
s_mov_b64 exec, -1
s_cmp_lg_u32 s76, 0
s_cbranch_scc1 {lk}""")
    get_epoch(a,VZ,EP,76)
    a(f"""{lk}:
s_mov_b32 s98, {1 if NOWAIT else 200000}
{lp}:
v_xor_b32 v{T+2}, s76, v{STR+1}
v_xor_b32 v{T+3}, s76, v{STR+3}
v_or_b32 v{T+2}, v{T+2}, v{T+3}
v_cmp_ne_u32 vcc, 0, v{T+2}
s_nop 1
s_cmp_eq_u64 vcc, 0
s_cbranch_scc1 {ld}
s_sub_u32 s98, s98, 1
s_cmp_eq_u32 s98, 0
s_cbranch_scc1 {ld}
s_sleep 2
buffer_load_dwordx4 v[{STR}:{STR+3}], v{T+1}, s[{SRD_WS}:{SRD_WS+3}], s71 offen sc0 sc1
s_waitcnt vmcnt(0)
s_branch {lp}
{ld}:
s_waitcnt lgkmcnt(0)
s_barrier""")
    stamp(a,4)
    if FUSED:
        a(f"""v_min_u32 v{T+1}, 11, v1
v_lshlrev_b32 v{T+1}, 7, v{T+1}
s_and_b32 s73, s55, 7
s_mul_i32 s73, s73, 48
s_mul_i32 s72, s{S_WAVE}, 12
s_add_u32 s73, s73, s72
s_lshl_b32 s73, s73, 7
s_add_u32 s73, s73, {FLW}
buffer_load_dword v252, v{T+1}, s[{SRD_WS}:{SRD_WS+3}], s73 offen sc0 sc1""")
    CV=XS
    BV=XS+48
    H=FR
    OUT=XS+96
    for ft in range(3):
        a(f"s_lshl_b32 s70, s{67+ft}, 7\ns_add_u32 s70, s70, {CSL}\nv_add_u32 v{T+2}, s70, v{T}")
        for q_ in range(4):
            a(f"ds_read_b128 v[{CV+16*ft+4*q_}:{CV+16*ft+4*q_+3}], v{T+2} offset:{32*q_}")
            a(f"ds_read_b128 v[{BV+16*ft+4*q_}:{BV+16*ft+4*q_+3}], v{T+2} offset:{512+32*q_}")
    a(f"""s_lshl_b32 s70, s56, 1
s_lshr_b32 s71, s{S_WAVE}, 1
s_add_u32 s70, s70, s71
s_mul_i32 s70, s70, 48
s_mul_i32 s71, s57, 3
s_add_u32 s70, s70, s71
s_and_b32 s71, s{S_WAVE}, 1
s_lshl_b32 s71, s71, 11
s_add_u32 s71, s71, {ACT_OFF}
v_and_b32 v{T+2}, 15, v1
v_lshlrev_b32 v{T+2}, 4, v{T+2}
v_lshlrev_b32 v{T+3}, 4, v{T}
v_add_u32 v{T+2}, v{T+2}, v{T+3}
v_bfe_u32 v{T+3}, v1, 4, 1
v_lshlrev_b32 v{T+3}, 10, v{T+3}
v_add_u32 v{T+2}, v{T+2}, v{T+3}
s_mov_b32 s74, 0x{LOG2E:08x}
s_mov_b32 s75, 0x{LOG2E:08x}
s_mov_b32 s78, 0x{f2u(28.0):08x}""")
    for ft in range(3):
        a(f"""s_add_u32 s72, s70, s{67+ft}
s_lshl_b32 s72, s72, 12
s_add_u32 s72, s72, s71
s_waitcnt lgkmcnt({min(15,8*(2-ft))})""")
        o=OUT+8*(ft&1)
        if FUSED and ft==int(opt.get("hinte",2)):
            lh=a.newlabel("L_hint")
            a(f"""s_lshl_b32 s73, s56, 4
s_add_u32 s73, s73, s57
s_lshl_b32 s73, s73, 7
s_add_u32 s73, s73, {FLA+64}
v_mov_b32 v{EP}, s76
s_cmp_lg_u32 s{S_WAVE}, 0
s_cbranch_scc1 {lh}
s_mov_b64 exec, 1
buffer_store_dword v{EP}, v{VZ}, s[{SRD_WS}:{SRD_WS+3}], s73 offen sc0 sc1
s_mov_b64 exec, -1
{lh}:""")
        stages=[
          lambda k,h,e,d,c: [f"v_pk_fma_f32 v[{h}:{h+1}], v[{CV+16*ft+2*k}:{CV+16*ft+2*k+1}], v[{STR+2}:{STR+3}], v[{BV+16*ft+2*k}:{BV+16*ft+2*k+1}] op_sel:[0,0,0] op_sel_hi:[1,0,1]"],
          lambda k,h,e,d,c: [f"v_pk_fma_f32 v[{h}:{h+1}], v[{c}:{c+1}], v[{STR}:{STR+1}], v[{h}:{h+1}] op_sel:[0,0,0] op_sel_hi:[1,0,1]"],
          lambda k,h,e,d,c: [f"v_pk_mul_f32 v[{e}:{e+1}], v[{h}:{h+1}], s[74:75]"],
          lambda k,h,e,d,c: [f"v_min_f32 v{e}, s78, v{e}", f"v_min_f32 v{e+1}, s78, v{e+1}"],
          lambda k,h,e,d,c: [f"v_exp_f32 v{e}, v{e}", f"v_exp_f32 v{e+1}, v{e+1}"],
          lambda k,h,e,d,c: [f"v_pk_add_f32 v[{d}:{d+1}], v[{e}:{e+1}], 2.0 op_sel_hi:[1,0]"],
          lambda k,h,e,d,c: [f"v_pk_fma_f32 v[{d}:{d+1}], v[{e}:{e+1}], v[{d}:{d+1}], 2.0 op_sel_hi:[1,1,0]"],
          lambda k,h,e,d,c: [f"v_rcp_f32 v{d}, v{d}", f"v_rcp_f32 v{d+1}, v{d+1}"],
          lambda k,h,e,d,c: [f"v_pk_mul_f32 v[{d}:{d+1}], v[{d}:{d+1}], v[{h}:{h+1}]"],
          lambda k,h,e,d,c: [f"v_pk_fma_f32 v[{h}:{h+1}], v[{d}:{d+1}], -2.0, v[{h}:{h+1}] op_sel_hi:[1,0,1]"],
          lambda k,h,e,d,c: [f"v_cvt_pk_bf16_f32 v{o+k}, v{h}, v{h+1}"],
        ]
        for stg in stages:
            for k in range(8):
                h=H+6*k
                for l in stg(k,h,h+2,h+4,ACC+16*ft+2*k): a(l)
        a(f"buffer_store_dwordx4 v[{o}:{o+3}], v{T+2}, s[{SRD_WS}:{SRD_WS+3}], s72 offen "+opt.get("asc","sc0+sc1").replace("+"," "))
        a(f"buffer_store_dwordx4 v[{o+4}:{o+7}], v{T+2}, s[{SRD_WS}:{SRD_WS+3}], s72 offen offset:512 "+opt.get("asc","sc0+sc1").replace("+"," "))

def gen_kernelA(opt):
    a=Asm()
    a(f"""s_cmp_ge_u32 s2, 512
s_cbranch_scc1 L_A_end
s_load_dwordx16 s[4:19], s[0:1], 0
s_load_dwordx16 s[20:35], s[0:1], 64
v_and_b32 v1, 63, v0
v_lshrrev_b32 v2, 6, v0
v_readfirstlane_b32 s{S_WAVE}, v2
s_waitcnt lgkmcnt(0)""")
    srd(a,SRD_WS,S_WS,WS_END); srd(a,SRD_X,S_X,2048*1280); srd(a,SRD_DBG,S_DBG,256)
    if PROF: a("v_mov_b32 v255, 0")
    stamp(a,0); stampc(a,14)
    SW=opt.get("swap","0")=="1"
    a(("s_cmp_lt_u32 s2, 256" if SW else "s_cmp_ge_u32 s2, 256")+"\ns_cbranch_scc1 L_A_gemm")
    if opt.get("only")=="gemm1": a("s_endpgm")
    PR=int(opt.get("prio",0))
    if PR: a(f"s_setprio {PR}")
    srd(a,SRD_W,S_W2,1536*1280)
    a(f"""s_and_b32 s53, s2, 255
s_and_b32 s54, s53, 7
s_mul_i32 s54, s54, 80
s_lshr_b32 s55, s53, 3
s_mul_i32 s56, s55, 3
s_lshl_b32 s57, s55, 1
s_add_u32 s57, s57, 16
s_cmp_lt_u32 s55, 16
s_cselect_b32 s63, 3, 2
s_cselect_b32 s56, s56, s57
s_add_u32 s64, s54, s56
s_cmp_eq_u32 s{S_WAVE}, 3
s_cbranch_scc1 L_A_aux
s_cmp_ge_u32 s{S_WAVE}, s63
s_cbranch_scc1 L_A_pend
s_add_u32 s54, s64, s{S_WAVE}
s_mul_i32 s55, s{S_WAVE}, {REG}""")
    SK=opt.get("skip","").split(",")
    global SKIP; SKIP=SK
    if "kgen" not in SK: gen_kgen(a)
    stampc(a,3)
    if "w2f" not in SK: gen_w2f(a)
    a("s_branch L_A_pend\nL_A_aux:")
    if "aux" not in SK: gen_aux(a)
    a("L_A_pend:")
    stamp(a,8); stamp_flush(a)
    a("s_endpgm\nL_A_gemm:")
    if int(opt.get("gprio",1)): a(f"s_setprio {int(opt.get('gprio',1))}")
    if opt.get("only")=="conv": a("s_endpgm")
    srd(a,SRD_W,S_W1,640*3072)
    gen_gemm1(a,opt)
    stamp(a,8); stamp_flush(a)
    a("L_A_end:\ns_endpgm")
    return a.text()

def gen_gemm2(a,vm,opt):
    NS=4; PRE=3
    T=2; VL=6; VL2=7; XA=8; ID=10
    VM4=16
    WA=[None,20,21,22]; RA=23; YA=24; FA_=25; VZ=26; EP=27
    ACC=28; SB=108
    SO=5 if FUSED else 0
    a(f"""s_lshl_b32 s56, s54, 2
s_lshr_b32 s57, s55, 3
s_add_u32 s56, s56, s57         ; tb
s_and_b32 s57, s55, 7           ; db
v_lshlrev_b32 v{VL}, 4, v1
v_add_u32 v{VL2}, 4096, v{VL}
s_mul_i32 s58, s{S_WAVE}, 12
s_mul_i32 s59, s56, 48
s_add_u32 s59, s59, s58
s_lshl_b32 s59, s59, 12
s_add_u32 s59, s59, {ACT_OFF}
s_mul_i32 s60, s57, 48
s_add_u32 s60, s60, s58
s_mul_i32 s60, s60, 5120
s_add_u32 s60, s60, {W2F_OFF}""")
    for k in range(4):
        a(f"""s_add_u32 s61, s{S_WAVE}, {k}
s_and_b32 s61, s61, 3
s_lshl_b32 s{66+k}, s61, 10
v_add_u32 v{VM4+k}, s{66+k}, v{VL}""")
    RB=opt.get("rotb","0")!="0"
    if RB:
        a("""s_and_b32 s70, s56, 3
s_mul_i32 s70, s70, 3
s_add_u32 s70, s70, s57
s_sub_u32 s71, s70, 12
s_cmp_ge_u32 s70, 12
s_cselect_b32 s70, s71, s70""")
        for j in range(12):
            a(f"""s_add_u32 s71, s70, {j}
s_sub_u32 s72, s71, 12
s_cmp_ge_u32 s71, 12
s_cselect_b32 s{86+j}, s72, s71""")
    def ldl(j):
        b=SB+36*(j%NS); L=[]
        seq=[("w",0),("a",0),("a",1),("w",1),("a",2),("a",3),("w",2),("w",3),("w",4)]
        for i,(kind,n) in enumerate(seq):
            pre = f"s_add_u32 s61, s60, {5120*j}\ns_add_u32 s62, s59, {4096*j}\n" if i==0 else ""
            if RB and i==0: pre = f"s_mul_i32 s61, s{86+j}, 5120\ns_add_u32 s61, s61, s60\ns_lshl_b32 s62, s{86+j}, 12\ns_add_u32 s62, s62, s59\n"
            if kind=="w":
                if n<4: L.append(pre+f"buffer_load_dwordx4 v[{b+4*n}:{b+4*n+3}], v{VL}, s[{SRD_WS}:{SRD_WS+3}], s61 offen offset:{1024*n}")
                else:   L.append(pre+f"buffer_load_dwordx4 v[{b+16}:{b+19}], v{VL2}, s[{SRD_WS}:{SRD_WS+3}], s61 offen")
            else:
                L.append(pre+f"buffer_load_dwordx4 v[{b+20+4*n}:{b+23+4*n}], v{VM4+n}, s[{SRD_WS}:{SRD_WS+3}], s62 offen")
        return [(l+" "+opt.get("bsc","sc0+sc1" if FUSED else "").replace("+"," "),("s",j)) for l in L]
    def ld(j):
        for l,t in ldl(j):
            a(l); vm.issue(t)
    if not FUSED: ld(0)
    for i in range(40): a(f"v_mov_b32 v{ACC+i}, 0")
    if not FUSED: ld(1)
    for i in range(40,80): a(f"v_mov_b32 v{ACC+i}, 0")
    a(f"""v_and_b32 v{T}, 15, v1
v_lshrrev_b32 v{T+1}, 4, v1
v_lshrrev_b32 v{T+2}, 2, v{T}
v_mul_u32_u24 v{T+2}, 20, v{T+2}
v_and_b32 v{T+3}, 3, v{T}
v_add_u32 v{T+2}, v{T+2}, v{T+3}
v_mul_u32_u24 v{T+2}, {GS}, v{T+2}
v_lshlrev_b32 v{T+3}, 4, v{T+1}
v_add_u32 v{YA}, v{T+2}, v{T+3}
s_mul_i32 s63, s57, {80*GS}
s_lshl_b32 s64, s56, 7
s_add_u32 s63, s63, s64
s_lshr_b32 s64, s{S_WAVE}, 1
s_lshl_b32 s64, s64, 6
s_add_u32 s63, s63, s64
s_add_u32 s63, s63, {Y_OFF}
v_mul_u32_u24 v{XA}, 1280, v{T}
v_mul_u32_u24 v{T+3}, 40, v{T+1}
v_add_u32 v{XA}, v{XA}, v{T+3}
s_lshl_b32 s64, s56, 2
s_add_u32 s64, s64, s{S_WAVE}
s_mul_i32 s64, s64, {16*1280}
s_mul_i32 s65, s57, 160
s_add_u32 s64, s64, s65
s_and_b32 s65, s{S_WAVE}, 1
s_lshl_b32 s65, s65, 4
v_add_u32 v{ID+4}, s65, v{T}
v_lshlrev_b32 v{T+3}, 3, v{T+1}
v_sub_u32 v{T+3}, v{ID+4}, v{T+3}
v_mov_b32 v{ID+4}, 0x3f80
v_mov_b32 v{ID+5}, 0x3f800000""")
    if not FUSED: ld(2)
    for k in range(4):
        a(f"""v_cmp_eq_u32 vcc, {2*k}, v{T+3}
v_cndmask_b32 v{ID+k}, 0, v{ID+4}, vcc
v_cmp_eq_u32 vcc, {2*k+1}, v{T+3}
v_cndmask_b32 v{ID+k}, v{ID+k}, v{ID+5}, vcc""")
    for k in range(1,4):
        a(f"""s_mul_i32 s70, s{66+k}, 15
s_add_u32 s70, s70, {(k-1)*5120}
v_add_u32 v{WA[k]}, s70, v{VL}""")
    a(f"""s_mul_i32 s70, s66, 15
v_add_u32 v{RA}, s70, v{VL}
v_mov_b32 v{VZ}, 0
v_min_u32 v{FA_}, 15, v1
v_lshlrev_b32 v{FA_}, 7, v{FA_}
v_lshlrev_b32 v{T}, 7, v1
s_mul_i32 s71, s57, {80*128}
s_add_u32 s71, s71, {FLY if FUSED else FL_OFF}
s_add_u32 s72, s71, 8192""")
    if FUSED:
        def poll(addr_v, soff, name):
            lp=a.newlabel("L_fp"+name); ld_=a.newlabel("L_fpd"+name)
            a(f"""s_mov_b32 s98, {1 if NOWAIT else 200000}
{lp}:
buffer_load_dword v{EP}, v{addr_v}, s[{SRD_WS}:{SRD_WS+3}], s{soff} offen sc0 sc1
s_waitcnt vmcnt(0)
v_cmp_ne_u32 vcc, s76, v{EP}
s_nop 1
s_cmp_eq_u64 vcc, 0
s_cbranch_scc1 {ld_}
s_sub_u32 s98, s98, 1
s_cmp_eq_u32 s98, 0
s_cbranch_scc1 {ld_}
s_sleep 2
s_branch {lp}
{ld_}:""")
        a(f"""v_min_u32 v{T+1}, 11, v1
v_lshlrev_b32 v{T+1}, 7, v{T+1}
s_mul_i32 s73, s57, 48
s_add_u32 s73, s73, s58
s_lshl_b32 s73, s73, 7
s_add_u32 s73, s73, {FLW}
v_and_b32 v{T+2}, 3, v1
v_lshlrev_b32 v{T+2}, 7, v{T+2}
v_bfe_u32 v{T+3}, v1, 2, 1
v_lshlrev_b32 v{T+3}, 2, v{T+3}
v_add_u32 v{T+2}, v{T+2}, v{T+3}
s_lshr_b32 s74, s56, 1
s_lshl_b32 s74, s74, 4
s_lshl_b32 s75, s{S_WAVE}, 2
s_add_u32 s74, s74, s75
s_lshl_b32 s74, s74, 7
s_and_b32 s75, s56, 1
s_lshl_b32 s75, s75, 3
s_add_u32 s74, s74, s75
s_add_u32 s74, s74, {FLA}""")
        lw_=a.newlabel("L_wok")
        a(f"""v_mov_b32 v253, s76
s_waitcnt vmcnt(0)
s_mov_b64 exec, 1
buffer_store_dword v253, v{VZ}, s[{SRD_WS}:{SRD_WS+3}], s79 offen sc0 sc1
s_andn2_b32 s79, s79, 127
buffer_store_dword v253, v{VZ}, s[{SRD_WS}:{SRD_WS+3}], s79 offen offset:64 sc0 sc1
s_mov_b64 exec, -1
v_cmp_ne_u32 vcc, s76, v252
s_nop 1
s_cmp_eq_u64 vcc, 0
s_cbranch_scc1 {lw_}""")
        poll(T+1,73,"w")
        a(f"{lw_}:")
        stamp(a,13)
        pres={}
        for j in range(3):
            L=ldl(j); pres[j]=L[0][0].split("buffer_load")[0]
            for l,t in L:
                if "s61 offen" in l: a(l)
        poll(T+2,74,"a")
        stamp(a,5)
        vm.q=[]
        for j in range(3):
            a(pres[j])
            for l,t in ldl(j):
                if "s62 offen" in l: a(l); vm.issue(t)
    XV=SB+0
    xl=[(f"buffer_load_dwordx4 v[{XV}:{XV+3}], v{XA}, s[{SRD_X}:{SRD_X+3}], s64 offen","x"),
        (f"buffer_load_dwordx4 v[{XV+4}:{XV+7}], v{XA}, s[{SRD_X}:{SRD_X+3}], s64 offen offset:16","x"),
        (f"buffer_load_dwordx2 v[{XV+8}:{XV+9}], v{XA}, s[{SRD_X}:{SRD_X+3}], s64 offen offset:32","x"),
        (f"buffer_load_dword v{EP}, v{VZ}, s[{SRD_DBG}:{SRD_DBG+3}], 0 offen sc0 sc1","ep")]
    FLG=SB+56
    fl=[(f"buffer_load_dword v{FLG}, v{T}, s[{SRD_WS}:{SRD_WS+3}], s71 offen sc0 sc1","fl"),
        (f"buffer_load_dword v{FLG+1}, v{FA_}, s[{SRD_WS}:{SRD_WS+3}], s72 offen sc0 sc1","fl")]
    for j in range(12):
        vm.wait_for(("s",j))
        if j==0: stamp(a,1+SO)
        if PROF and j%2==0 and not FUSED: a(f"s_memtime s[{74+j}:{75+j}]")
        b=SB+36*(j%NS)
        order=[(dt,k) for dt in range(5) for k in range(4)]
        if j==11: order=[(dt,k) for k in (1,2,3,0) for dt in range(5)]
        lq = ldl(j+PRE) if j+PRE<12 else (xl if j==9 else (fl if j==11 else []))
        LF_=int(opt.get("bl",2))
        if LF_==0:
            while lq:
                l,t=lq.pop(0); a(l); vm.issue(t)
        for n,(dt,k) in enumerate(order):
            c=ACC+(dt*4+k)*4
            a(f"v_mfma_f32_16x16x32_bf16 v[{c}:{c+3}], v[{b+4*dt}:{b+4*dt+3}], v[{b+20+4*k}:{b+23+4*k}], v[{c}:{c+3}]")
            if LF_ and n%LF_==LF_-1 and lq:
                l,t=lq.pop(0); a(l); vm.issue(t)
        assert not lq
    stamp(a,2+SO)
    if PROF and not FUSED:
        for j in range(2,12,2):
            a(f"s_sub_u32 s{74+j}, s{74+j}, s74\nv_writelane_b32 v255, s{74+j}, {8+j//2}")
    XF=SB+12
    YF=SB+36
    FLG=SB+56
    RD=SB+72
    lk=a.newlabel("L_bepk"); lp=a.newlabel("L_bp"); ldn=a.newlabel("L_bpd"); llate=a.newlabel("L_blate"); ljoin=a.newlabel("L_bjoin")
    def yloads():
        for dt in range(5):
            a(f"s_add_u32 s73, s63, {4*GS*dt}")
            a(f"buffer_load_dwordx4 v[{YF+4*dt}:{YF+4*dt+3}], v{YA}, s[{SRD_WS}:{SRD_WS+3}], s73 offen sc0 sc1")
    def flagchk():
        a(f"""v_xor_b32 v{FLG}, s67, v{FLG}
v_xor_b32 v{FLG+1}, s67, v{FLG+1}
v_or_b32 v{FLG}, v{FLG}, v{FLG+1}
v_cmp_ne_u32 vcc, 0, v{FLG}
s_nop 1
s_cmp_eq_u64 vcc, 0""")
    a(f"""s_waitcnt vmcnt(0)
v_readfirstlane_b32 s67, v{EP}
s_mov_b32 s79, 0
s_cmp_eq_u32 s67, 0
s_cbranch_scc1 {llate}""")
    flagchk()
    a(f"""s_cbranch_scc0 {llate}
s_mov_b32 s79, 1""")
    yloads()
    a(f"{llate}:")
    for k in range(1,4):
        for dt in range(5):
            c=ACC+(dt*4+k)*4
            a(f"ds_write_b128 v{WA[k]}, v[{c}:{c+3}] offset:{dt*1024}")
    for k in range(10):
        a(f"v_lshlrev_b32 v{XF+2*k}, 16, v{XV+k}")
        a(f"v_and_b32 v{XF+2*k+1}, 0xffff0000, v{XV+k}")
    a(f"""s_mov_b32 s98, {1 if NOWAIT else 200000}
s_waitcnt lgkmcnt(0)
s_barrier""")
    for p in range(3):
        for dt in range(5):
            r=RD+20*p+4*dt
            a(f"ds_read_b128 v[{r}:{r+3}], v{RA} offset:{p*5120+dt*1024}")
    a(f"""s_cmp_eq_u32 s79, 1
s_cbranch_scc1 {ljoin}
s_cmp_lg_u32 s67, 0
s_cbranch_scc1 {lp}""")
    get_epoch(a,VZ,EP,67)
    a(f"""s_mov_b32 s98, {1 if NOWAIT else 200000}
{lp}:
buffer_load_dword v{FLG}, v{T}, s[{SRD_WS}:{SRD_WS+3}], s71 offen sc0 sc1
buffer_load_dword v{FLG+1}, v{FA_}, s[{SRD_WS}:{SRD_WS+3}], s72 offen sc0 sc1
s_waitcnt vmcnt(0)""")
    flagchk()
    a(f"""s_cbranch_scc1 {ldn}
s_sub_u32 s98, s98, 1
s_cmp_eq_u32 s98, 0
s_cbranch_scc1 {ldn}
s_sleep 2
s_branch {lp}
{ldn}:""")
    yloads()
    a(f"{ljoin}:")
    stamp(a,4+SO+ (1 if FUSED else 0))
    for p in range(3):
        a(f"s_waitcnt lgkmcnt({5*(2-p)})")
        for k in range(10):
            a(f"v_pk_add_f32 v[{XF+2*k}:{XF+2*k+1}], v[{XF+2*k}:{XF+2*k+1}], v[{RD+20*p+2*k}:{RD+20*p+2*k+1}]")
    for dt in range(5):
        c=ACC+(dt*4)*4
        a(f"s_waitcnt vmcnt({4-dt})")
        a(f"v_mfma_f32_16x16x32_bf16 v[{c}:{c+3}], v[{YF+4*dt}:{YF+4*dt+3}], v[{ID}:{ID+3}], v[{c}:{c+3}]")
    for dt in range(5):
        c=ACC+(dt*4)*4
        for h in range(2):
            a(f"v_pk_add_f32 v[{XF+4*dt+2*h}:{XF+4*dt+2*h+1}], v[{XF+4*dt+2*h}:{XF+4*dt+2*h+1}], v[{c+2*h}:{c+2*h+1}]")
    for k in range(10):
        a(f"v_cvt_pk_bf16_f32 v{XV+k}, v{XF+2*k}, v{XF+2*k+1}")
    OS=opt.get("osc","").replace("+"," ")
    a(f"""buffer_store_dwordx4 v[{XV}:{XV+3}], v{XA}, s[{SRD_W}:{SRD_W+3}], s64 offen {OS}
buffer_store_dwordx4 v[{XV+4}:{XV+7}], v{XA}, s[{SRD_W}:{SRD_W+3}], s64 offen offset:16 {OS}
buffer_store_dwordx2 v[{XV+8}:{XV+9}], v{XA}, s[{SRD_W}:{SRD_W+3}], s64 offen offset:32 {OS}""")

def gen_kernelB(opt):
    a=Asm('b'); vm=VM(a)
    NS=4; PRE=3
    T=2; VL=6; VL2=7; XA=8; ID=10
    VM4=16
    WA=[None,20,21,22]; RA=23; YA=24; FA_=25; VZ=26; EP=27
    ACC=28
    SB=108
    a(f"""s_cmp_ge_u32 s2, 512
s_cbranch_scc1 L_B_end
s_load_dwordx2 s[4:5], s[0:1], 0
s_load_dwordx4 s[28:31], s[0:1], 104
s_load_dwordx2 s[8:9], s[0:1], 120
v_and_b32 v1, 63, v0
v_lshrrev_b32 v2, 6, v0
v_readfirstlane_b32 s{S_WAVE}, v2
s_and_b32 s53, s2, 255
s_and_b32 s54, s53, 7
s_lshr_b32 s55, s53, 3
s_waitcnt lgkmcnt(0)""")
    srd(a,SRD_WS,8,WS_END); srd(a,SRD_DBG,30,256)
    if PROF: a("v_mov_b32 v255, 0")
    stamp(a,0); stampc(a,14)
    a(f"""s_cmp_ge_u32 s2, 256
s_cbranch_scc1 L_B_gemm
s_mul_i32 s54, s54, 80
s_mul_i32 s56, s55, 3
s_lshl_b32 s57, s55, 1
s_add_u32 s57, s57, 16
s_cmp_lt_u32 s55, 16
s_cselect_b32 s63, 3, 2
s_cselect_b32 s56, s56, s57
s_add_u32 s64, s54, s56""")
    if int(opt.get("cprio",1)): a(f"s_setprio {int(opt.get('cprio',1))}")
    gen_stage(a)
    a(f"s_setprio {int(opt.get('cprio2',0))}")
    gen_conv(a)
    stamp(a,8); stamp_flush(a,1)
    a("s_endpgm\nL_B_gemm:")
    if int(opt.get("g2prio",0)): a(f"s_setprio {int(opt.get('g2prio',0))}")
    srd(a,SRD_X,4,2048*1280); srd(a,SRD_W,28,2048*1280)
    gen_gemm2(a,vm,opt)
    stamp(a,3); stamp_flush(a,1)
    if PROF and opt.get("dbgscan"):
        lq_=a.newlabel("L_dbgx")
        a(f"""v_readlane_b32 s70, v255, 3
v_readlane_b32 s71, v255, 0
s_not_b32 s71, s71
v_mov_b32 v2, s70
v_mov_b32 v3, s71
v_mov_b32 v4, 8
v_mov_b32 v5, 20
s_mov_b64 exec, 1
buffer_atomic_umax v2, v4, s[{SRD_DBG}:{SRD_DBG+3}], 0 offen sc1
buffer_atomic_umax v3, v5, s[{SRD_DBG}:{SRD_DBG+3}], 0 offen sc1
s_mov_b64 exec, -1
s_or_b32 s70, s53, s{S_WAVE}
s_cmp_lg_u32 s70, 0
s_cbranch_scc1 {lq_}
v_lshlrev_b32 v2, 6, v1
v_mov_b32 v6, 0
v_mov_b32 v7, 0""")
        for i in range(32):
            a(f"""s_mov_b32 s70, {TS_OFF+4096*i}
buffer_load_dword v3, v2, s[{SRD_WS}:{SRD_WS+3}], s70 offen
buffer_load_dword v4, v2, s[{SRD_WS}:{SRD_WS+3}], s70 offen offset:32
s_waitcnt vmcnt(0)
v_not_b32 v3, v3
v_max_u32 v6, v6, v3
v_max_u32 v7, v7, v4""")
        a(f"""v_mov_b32 v4, 12
v_mov_b32 v5, 16
buffer_atomic_umax v7, v4, s[{SRD_DBG}:{SRD_DBG+3}], 0 offen sc1
buffer_atomic_umax v6, v5, s[{SRD_DBG}:{SRD_DBG+3}], 0 offen sc1
{lq_}:""")
    a("L_B_end:\ns_endpgm")
    return a.text(), LDS_A

HEADER = open("parallel_sum__ssm_conv_s4__dense_activation_mish__prompt.s.ref").read().split("; Override launch")[0]

def kd(name, vgpr, accum, sgpr=102):
    return f""".amdhsa_kernel {name}
  .amdhsa_next_free_vgpr {vgpr}
  .amdhsa_next_free_sgpr {sgpr}
  .amdhsa_accum_offset {accum}
  .amdhsa_group_segment_fixed_size 0
  .amdhsa_kernarg_size 128
  .amdhsa_user_sgpr_count 2
  .amdhsa_user_sgpr_kernarg_segment_ptr 1
  .amdhsa_system_sgpr_workgroup_id_x 1
.end_amdhsa_kernel
"""

def gen_fused(opt):
    a=Asm()
    a(f"""s_cmp_ge_u32 s2, 512
s_cbranch_scc1 L_A_end
s_load_dwordx16 s[4:19], s[0:1], 0
s_load_dwordx16 s[20:35], s[0:1], 64
v_and_b32 v1, 63, v0
v_lshrrev_b32 v2, 6, v0
v_readfirstlane_b32 s{S_WAVE}, v2
s_waitcnt lgkmcnt(0)""")
    srd(a,SRD_WS,S_WS,WS_END); srd(a,SRD_X,S_X,2048*1280); srd(a,SRD_DBG,S_DBG,256)
    if PROF: a("v_mov_b32 v255, 0")
    stamp(a,0); stampc(a,14)
    a("s_cmp_ge_u32 s2, 256\ns_cbranch_scc1 L_A_gemm")
    srd(a,SRD_W,S_W2,1536*1280)
    a(f"""s_and_b32 s53, s2, 255
s_and_b32 s54, s53, 7
s_mul_i32 s54, s54, 80
s_lshr_b32 s55, s53, 3
s_mul_i32 s56, s55, 3
s_lshl_b32 s57, s55, 1
s_add_u32 s57, s57, 16
s_cmp_lt_u32 s55, 16
s_cselect_b32 s63, 3, 2
s_cselect_b32 s56, s56, s57
s_add_u32 s64, s54, s56
s_cmp_eq_u32 s{S_WAVE}, 3
s_cbranch_scc1 L_A_aux
s_cmp_ge_u32 s{S_WAVE}, s63
s_cbranch_scc1 L_A_stage
s_add_u32 s54, s64, s{S_WAVE}
s_mul_i32 s55, s{S_WAVE}, {REG}""")
    if int(opt.get("kprio",1)): a(f"s_setprio {int(opt.get('kprio',1))}")
    gen_kgen(a)
    stampc(a,3)
    a("s_branch L_A_stage\nL_A_aux:")
    a(f"s_setprio {int(opt.get('aprio',2))}")
    gen_aux(a)
    a(f"L_A_stage:\ns_setprio {int(opt.get('sprio',2))}")
    gen_stage(a)
    a(f"s_setprio {int(opt.get('cprio2',1))}")
    gen_conv(a)
    stamp(a,8); stamp_flush(a)
    a("s_endpgm\nL_A_gemm:")
    a(f"s_setprio {int(opt.get('gprio',1))}")
    srd(a,SRD_W,S_W1,640*3072)
    gen_gemm1(a,opt)
    a(f"s_setprio {int(opt.get('g2p',opt.get('gprio',1)))}")
    stamp(a,8)
    a(f"""s_lshl_b32 s79, s56, 4
s_add_u32 s79, s79, s57
s_lshl_b32 s79, s79, 7
s_lshl_b32 s71, s{S_WAVE}, 2
s_add_u32 s79, s79, s71
s_add_u32 s79, s79, {FLA}""")
    srd(a,SRD_W,S_OUT,2048*1280)
    vm=VM(a)
    gen_gemm2(a,vm,opt)
    stamp(a,12); stamp_flush(a)
    a("L_A_end:\ns_endpgm")
    return a.text()

def build_fused(opt):
    A=gen_fused(opt)
    KN="parallel_sum__ssm_conv_s4__dense_activation_mish__prompt_kernel"
    s=HEADER+f"; @launch grid=(512,1,1) block=(256,1,1) lds={LDS_A}\n"
    s+='.amdgcn_target "amdgcn-amd-amdhsa--gfx950"\n.text\n'
    s+=f".globl {KN}\n.p2align 8\n.type {KN},@function\n{KN}:\n{A}"
    s+='.section .rodata,"a"\n.p2align 6\n'+kd(KN,256,256)
    return s

def build(opt):
    A=gen_kernelA(opt); B,ldsB=gen_kernelB(opt)
    s=HEADER
    s+=f"; @launch kernel=stage_a_kernel grid=(512,1,1) block=(256,1,1) lds={LDS_A}\n"
    s+=f"; @launch kernel=stage_b_kernel grid=(512,1,1) block=(256,1,1) lds={ldsB}\n"
    if opt.get("rep2"): s+=f"; @launch kernel=stage_b_kernel grid=(512,1,1) block=(256,1,1) lds={ldsB}\n"
    s+='.amdgcn_target "amdgcn-amd-amdhsa--gfx950"\n.text\n'
    for name,body in (("stage_a_kernel",A),("stage_b_kernel",B)):
        s+=f".globl {name}\n.p2align 8\n.type {name},@function\n{name}:\n{body}"
    s+='.section .rodata,"a"\n.p2align 6\n'+kd("stage_a_kernel",256,256)+".p2align 6\n"+kd("stage_b_kernel",256,256)
    return s

if __name__=="__main__":
    opt={}
    out=sys.argv[1] if len(sys.argv)>1 else "parallel_sum__ssm_conv_s4__dense_activation_mish__prompt.s"
    for kv in sys.argv[2:]:
        k,v=kv.split("="); opt[k]=v
    PROF = opt.get("prof","0")=="1"
    NOWAIT = "only" in opt or "skip" in opt
    FUSED = opt.get("fused","0")=="1"
    CWAIT = opt.get("cwait","1")=="1"
    open(out,"w").write(build_fused(opt) if FUSED else build(opt))
    print("wrote",out)
```

```python
import sys, struct
from asmlib import Asm, VM

def f2u(x): return struct.unpack("<I", struct.pack("<f", x))[0]

GS      = 4160
G_OFF   = 0
ST_OFF  = 0x280000
FL_OFF  = 0x290000
Y_OFF   = 0x2B0000
W2F_OFF = 0x540000
ACT_OFF = 0x720000
KI_OFF  = 0xD20000
KIS     = 9216
WS_END  = 0x1500000
TS_OFF  = 0x1400000
TROW = 272
REG  = 17408
KC1  = 4576
YB   = 9120
U0   = 3*REG
UCH  = 8448
UC1  = 4224
LDS_A = 81920
LOG2E = 0x3fb8aa3b; LOG2E_LO = 0x32a5705f; LN2 = 0x3f317218

S_X=4; S_ARE=6; S_AIM=8; S_BRE=10; S_BIM=12; S_CRE=14; S_CIM=16; S_LDT=18
S_DSK=20; S_W1=24; S_B1=26; S_W2=28; S_OUT=30; S_DBG=32; S_WS=34
SRD_WS=36; SRD_X=40; SRD_W=44; SRD_DBG=48
S_WAVE=52
PROF=False
NOWAIT=False
FUSED=False
CWAIT=True
MAPX=False
W2LATE=False
W2MID=False
FLY=KI_OFF; FLW=KI_OFF+0x20000; FLA=KI_OFF+0x30000
SKIP=[]

def srd(a, dst, ptr, nbytes):
    a(f"""s_mov_b32 s{dst}, s{ptr}
s_and_b32 s{dst+1}, s{ptr+1}, 0xffff
s_mov_b32 s{dst+2}, {nbytes}
s_mov_b32 s{dst+3}, 0x00020000""")

def cmul(dst, z, m, t, conj=False):
    if not conj:
        return [f"v_pk_mul_f32 v[{t}:{t+1}], v[{z}:{z+1}], v[{m}:{m+1}] op_sel:[0,0] op_sel_hi:[0,1]",
                f"v_pk_fma_f32 v[{dst}:{dst+1}], v[{z}:{z+1}], v[{m}:{m+1}], v[{t}:{t+1}] op_sel:[1,1,0] op_sel_hi:[1,0,1] neg_lo:[0,1,0]"]
    return [f"v_pk_mul_f32 v[{t}:{t+1}], v[{z}:{z+1}], v[{m}:{m+1}] op_sel:[0,0] op_sel_hi:[0,1] neg_hi:[0,1]",
            f"v_pk_fma_f32 v[{dst}:{dst+1}], v[{z}:{z+1}], v[{m}:{m+1}], v[{t}:{t+1}] op_sel:[1,1,0] op_sel_hi:[1,0,1]"]

def stamp(a, idx, reg=255):
    if not PROF: return
    a(f"""s_memrealtime s[100:101]
s_waitcnt lgkmcnt(0)
v_writelane_b32 v{reg}, s100, {idx}""")
def stampc(a, idx, reg=255):
    if not PROF: return
    a(f"""s_memtime s[100:101]
s_waitcnt lgkmcnt(0)
v_writelane_b32 v{reg}, s100, {idx}""")
def stamp_flush(a, kern=0, reg=255, tmp=254):
    if not PROF: return
    stampc(a,15,reg)
    a(f"""s_lshl_b32 s100, s2, 2
s_add_u32 s100, s100, s{S_WAVE}
s_lshl_b32 s100, s100, 6
s_add_u32 s100, s100, {TS_OFF+kern*0x40000}
v_lshlrev_b32 v{tmp}, 2, v1
s_mov_b64 exec, 0xffff
buffer_store_dword v{reg}, v{tmp}, s[{SRD_WS}:{SRD_WS+3}], s100 offen
s_mov_b64 exec, -1""")

def get_epoch(a, vz, vt, sdst):
    lp=a.newlabel("L_ep"); ld=a.newlabel("L_epd")
    a(f"""s_mov_b32 s98, {1 if NOWAIT else 200000}
{lp}:
buffer_load_dword v{vt}, v{vz}, s[{SRD_DBG}:{SRD_DBG+3}], 0 offen sc0 sc1
s_waitcnt vmcnt(0)
v_readfirstlane_b32 s{sdst}, v{vt}
s_cmp_lg_u32 s{sdst}, 0
s_cbranch_scc1 {ld}
s_sleep 2
s_sub_u32 s98, s98, 1
s_cmp_lg_u32 s98, 0
s_cbranch_scc1 {lp}
{ld}:""")

def gen_kgen(a):
    RAW=2; P=14
    A2=20; B2=21; DT=22; VT=23
    Z=24; C=26; T=28; T2=30; E1=32; E2=34; E4=36; E8=38; E248=40; X=42; Y=43; S_=44; CO=45
    PKS=[46,47,48,49]; ONE=50
    FA=51; FB=52
    ACC=56
    FR=72
    arrs=[S_ARE,S_AIM,S_BRE,S_BIM,S_CRE,S_CIM]
    a(f"""s_mul_i32 s56, s54, 384
v_lshlrev_b32 v{X}, 2, v1
v_add_u32 v{X}, s56, v{X}
v_lshlrev_b32 v{Y}, 1, v1
v_add_u32 v{Y}, s56, v{Y}
s_lshr_b32 s57, s54, 1
s_lshl_b32 s57, s57, 2
s_load_dword s58, s[{S_LDT}:{S_LDT+1}], s57
s_load_dword s59, s[{S_DSK}:{S_DSK+1}], s57""")
    for i,s in enumerate(arrs):
        a(f"global_load_dword v{RAW+i}, v{X}, s[{s}:{s+1}]")
    for i in range(6): a(f"v_mov_b32 v{RAW+6+i}, 0")
    for i,s in enumerate(arrs):
        a(f"global_load_short_d16_hi v{RAW+6+i}, v{Y}, s[{s}:{s+1}] offset:256")
    a(f"""s_mov_b32 m0, s55
v_and_b32 v{FB}, 31, v1
v_mul_u32_u24 v{FB}, {TROW}, v{FB}
v_lshrrev_b32 v{FA}, 5, v1
v_lshlrev_b32 v{FA}, 4, v{FA}
v_add_u32 v{FB}, v{FB}, v{FA}
v_add_u32 v{FB}, s55, v{FB}
v_add_u32 v{FA}, {32*TROW}, v{FB}""")
    for i in range(16): a(f"v_mov_b32 v{ACC+i}, 0")
    a(f"""s_waitcnt lgkmcnt(0)
s_and_b32 s57, s54, 1
s_lshl_b32 s57, s57, 4
s_lshr_b32 s58, s58, s57
s_lshl_b32 s58, s58, 16
s_lshr_b32 s59, s59, s57
s_lshl_b32 s59, s59, 16
s_mov_b32 s60, 0x{LOG2E:08x}
s_mov_b32 s61, 0x{LOG2E_LO:08x}
s_mov_b32 s62, 0x{LN2:08x}
v_mov_b32 v{X}, s58
v_mul_f32 v{Y}, s60, v{X}
v_fma_f32 v{S_}, v{X}, s60, -v{Y}
v_fma_f32 v{S_}, v{X}, s61, v{S_}
v_exp_f32 v{Y}, v{Y}
v_mul_f32 v{S_}, s62, v{S_}
v_fma_f32 v{Y}, v{Y}, v{S_}, v{Y}
v_cvt_pk_bf16_f32 v{Y}, v{Y}, v{Y}
v_lshlrev_b32 v{DT}, 16, v{Y}
v_mov_b32 v{ONE}, 0x3f80
s_waitcnt vmcnt(6)""")
    stamp(a,1); stampc(a,2)
    DX=[136,137,138]; DY=[139,140,141]; DS=[142,143,144]; DC=[145,146,147]
    def setup(g):
        L=[]
        for i in range(6):
            if g==0: L.append(f"v_lshlrev_b32 v{P+i}, 16, v{RAW+i}")
            elif g==1: L.append(f"v_and_b32 v{P+i}, 0xffff0000, v{RAW+i}")
        src=[(P+i) if g<2 else (RAW+6+i) for i in range(6)]
        ar,ai,br,bi,cr,ci=src
        L+=[f"v_mul_f32 v{A2}, v{ar}, v{DT}", f"v_mul_f32 v{B2}, v{ai}, v{DT}",
            f"v_mul_f32 v{A2}, s60, v{A2}", f"v_mul_f32 v{B2}, 0.15915494, v{B2}"]
        lam=[1,8,248]; dst=[E1,E8,E248]
        for k in (1,2):
            L+=[f"v_mul_f32 v{DY[k]}, 0x{f2u(float(lam[k])):08x}, v{B2}", f"v_mul_f32 v{DX[k]}, 0x{f2u(float(lam[k])):08x}, v{A2}"]
        L+=[f"v_fract_f32 v{DY[0]}, v{B2}", f"v_fract_f32 v{DY[1]}, v{DY[1]}", f"v_fract_f32 v{DY[2]}, v{DY[2]}",
            f"v_exp_f32 v{DX[0]}, v{A2}", f"v_exp_f32 v{DX[1]}, v{DX[1]}", f"v_exp_f32 v{DX[2]}, v{DX[2]}"]
        for k in range(3): L+=[f"v_sin_f32 v{DS[k]}, v{DY[k]}", f"v_cos_f32 v{DC[k]}, v{DY[k]}"]
        L+=[f"v_mul_f32 v{Z}, v{cr}, v{br}", f"v_mul_f32 v{Z+1}, v{cr}, v{bi}",
            f"v_fma_f32 v{Z}, -v{ci}, v{bi}, v{Z}", f"v_fma_f32 v{Z+1}, v{ci}, v{br}, v{Z+1}",
            f"v_mul_f32 v{Z}, v{Z}, v{DT}", f"v_mul_f32 v{Z+1}, -v{Z+1}, v{DT}"]
        for k in range(3): L+=[f"v_mul_f32 v{dst[k]+1}, v{DX[k]}, v{DS[k]}", f"v_mul_f32 v{dst[k]}, v{DX[k]}, v{DC[k]}"]
        L+=cmul(E2,E1,E1,T)+cmul(E4,E2,E2,T)
        return L
    rowseq=[(E1,[1]),(E1,[2]),(E1,[3]),(E1,[4]),(E1,[5]),(E1,[6]),(E1,[7]),(E1,[]),
            (E248,[8]),(E2,[9]),(E2,[10,12]),(E2,[13]),(E2,[14]),
            (E248,[16]),(E4,[17,20]),(E4,[21]),(E248,[18]),(E4,[19,22]),(E4,[23]),
            (E248,[24]),(E8,[28]),(E248,[25]),(E8,[29]),(E248,[26]),(E8,[30]),(E248,[27]),(E8,[31])]
    for l in setup(0): a(l)
    pend=[]
    for g in range(3):
        if g==0: stampc(a,9)
        wq=[]
        pk=0
        def cvt(src, rows):
            nonlocal pk
            r=PKS[pk%4]; pk+=1
            a(f"v_cvt_pk_bf16_f32 v{r}, v{src}, v{src+1}")
            return [f"ds_write_addtid_b32 v{r} offset:{x*TROW}" for x in rows]
        a(f"ds_write_addtid_b32 v{ONE}")
        wq=cvt(Z,[32])+cvt(E8,[1])
        cur=E8
        for j in range(2,32):
            k=j-2
            c1=cmul(C,cur,E8,T); cur=C
            c2=cmul(Z,Z,rowseq[k][0],T2,conj=True) if k<len(rowseq) else []
            a(c1[0])
            if c2: a(c2[0])
            a(c1[1])
            if c2: a(c2[1])
            nq=cvt(C,[j])
            if c2 and rowseq[k][1]: nq+=cvt(Z,[32+r for r in rowseq[k][1]])
            while wq: a(wq.pop(0))
            if pend and j%3==0: a(pend.pop(0))
            wq=nq
        for w in wq: a(w)
        assert not pend
        if g==0: stampc(a,10)
        if g==1: a("s_waitcnt vmcnt(0)")
        a("s_waitcnt lgkmcnt(0)")
        for q in range(8):
            a(f"ds_read_b128 v[{FR+8*q}:{FR+8*q+3}], v{FA} offset:{32*q}")
            a(f"ds_read_b128 v[{FR+8*q+4}:{FR+8*q+7}], v{FB} offset:{32*q}")
        if g<2:
            for l in setup(g+1): a(l)
        a("s_waitcnt lgkmcnt(0)")
        stampc(a,11 if g==0 else (12 if g==1 else 13))
        pend=[f"v_mfma_f32_32x32x16_bf16 v[{ACC}:{ACC+15}], v[{FR+8*q}:{FR+8*q+3}], v[{FR+8*q+4}:{FR+8*q+7}], v[{ACC}:{ACC+15}]" for q in range(8)]
    for m in pend: a(m)
    a(f"""v_lshlrev_b32 v{Y}, 4, v1
s_lshl_b32 s56, s54, 11
s_add_u32 s56, s56, {KI_OFF}
s_mov_b64 exec, 1
v_add_f32 v{ACC}, s59, v{ACC}
s_mov_b64 exec, -1""")
    if FUSED:
        a("s_mov_b32 s65, s55")
        gen_kexpand(a, None, ACC, FR, X, Y, S_, CO, T)
        return
    for i in range(8): a(f"v_cvt_pk_bf16_f32 v{FR+i}, v{ACC+2*i}, v{ACC+2*i+1}")
    a(f"buffer_store_dwordx4 v[{FR}:{FR+3}], v{Y}, s[{SRD_WS}:{SRD_WS+3}], s56 offen sc0 sc1")
    a(f"buffer_store_dwordx4 v[{FR+4}:{FR+7}], v{Y}, s[{SRD_WS}:{SRD_WS+3}], s56 offen offset:1024 sc0 sc1")

def gen_kexpand(a, KP, ACC, Q, X, Y, S_, CO, Z):
    for i in range(4): a(f"v_mov_b32 v{Z+i}, 0")
    a(f"""v_lshlrev_b32 v{S_}, 4, v1
v_add_u32 v{S_}, s65, v{S_}
v_and_b32 v{X}, 31, v1
v_lshlrev_b32 v{X}, 4, v{X}
v_lshrrev_b32 v{Y}, 5, v1
v_lshlrev_b32 v{Y}, 3, v{Y}
v_add_u32 v{X}, v{X}, v{Y}
v_add_u32 v{X}, s65, v{X}
v_cmp_lt_u32 vcc, 31, v1
s_mov_b32 exec_hi, 0
ds_write_b128 v{S_}, v[{Z}:{Z+3}]
ds_write_b128 v{S_}, v[{Z}:{Z+3}] offset:{KC1}
s_mov_b64 exec, -1""")
    for i in range(8 if KP is not None else 0):
        a(f"v_lshlrev_b32 v{ACC+2*i}, 16, v{KP+i}")
        a(f"v_and_b32 v{ACC+2*i+1}, 0xffff0000, v{KP+i}")
    ac=lambda i: ACC+i
    a(f"v_cndmask_b32 v{S_}, v{ac(8)}, v{ac(9)}, vcc")
    a(f"v_cndmask_b32 v{CO}, v{ac(10)}, v{ac(11)}, vcc")
    blocks=[(0,[ac(0),ac(1),ac(2),ac(3)]),(256,[ac(4),ac(4),ac(5),ac(6)]),(512,[ac(8),ac(8),S_,ac(9)]),(768,[ac(10),ac(10),CO,ac(11)])]
    for n,(base,e) in enumerate(blocks):
        p=Q+4*n
        a(f"v_cvt_pk_bf16_f32 v{p}, v{e[0]}, v{e[1]}")
        a(f"v_cvt_pk_bf16_f32 v{p+1}, v{e[2]}, v{e[3]}")
        a(f"v_cvt_pk_bf16_f32 v{p+2}, v{e[1]}, v{e[2]}")
    for b in range(4):
        p=Q+16+2*b
        a(f"v_cvt_pk_bf16_f32 v{p}, v{ac(12+b)}, v{ac(12+b)}")
        a(f"v_mov_b32 v{p+1}, v{p}")
    for n,(base,e) in enumerate(blocks):
        p=Q+4*n
        a(f"ds_write_b64 v{X}, v[{p}:{p+1}] offset:{KC1+2*(base+224)}")
        a(f"ds_write_b16 v{X}, v{p} offset:{2*(base+225)}")
        a(f"ds_write_b32 v{X}, v{p+2} offset:{2*(base+226)}")
        a(f"ds_write_b16_d16_hi v{X}, v{p+1} offset:{2*(base+228)}")
    for b in range(4):
        p=Q+16+2*b; base=1024+256*b
        a(f"ds_write_b64 v{X}, v[{p}:{p+1}] offset:{KC1+2*(base+224)}")
        a(f"ds_write_b16 v{X}, v{p} offset:{2*(base+225)}")
        a(f"ds_write_b32 v{X}, v{p} offset:{2*(base+226)}")
        a(f"ds_write_b16 v{X}, v{p} offset:{2*(base+228)}")
    a("s_mov_b64 exec, 0x55555555")
    for b in range(4):
        p=Q+16+2*b
        a(f"ds_write_b16 v{X}, v{p} offset:{KC1+2*(1024+256*b+4+224)}")
        a(f"ds_write_b16 v{X}, v{p} offset:{2*(1024+256*b+4+225)}")
    a("s_mov_b64 exec, -1")

def gen_w2f(a):
    RAW=2; VA=100; VB=101; VC=102
    lx=a.newlabel("L_w2x")
    a(f"""s_mul_i32 s56, s54, 13108
s_lshr_b32 s56, s56, 16
s_mul_i32 s57, s56, 5
s_sub_u32 s57, s54, s57
s_cmp_ge_u32 s57, 3
s_cbranch_scc1 {lx}
s_mul_i32 s56, s56, 3
s_add_u32 s57, s56, s57
s_lshr_b32 s58, s57, 3
s_and_b32 s59, s57, 7
s_mul_i32 s60, s58, {32*1280}
s_mul_i32 s61, s59, 160
s_add_u32 s60, s60, s61
s_mul_i32 s59, s59, 48
s_add_u32 s59, s59, s58
s_mul_i32 s59, s59, 5120
s_add_u32 s68, s59, {W2F_OFF}""")
    for i in range(5):
        a(f"""v_add_u32 v{VA}, {64*i}, v1
v_mul_u32_u24 v{VB}, 6554, v{VA}
v_lshrrev_b32 v{VB}, 16, v{VB}
v_mul_u32_u24 v{VC}, 10, v{VB}
v_sub_u32 v{VC}, v{VA}, v{VC}
v_lshlrev_b32 v{VC}, 4, v{VC}
v_mul_u32_u24 v{VB}, 1280, v{VB}
v_add_u32 v{VB}, v{VB}, v{VC}
s_add_u32 m0, s55, {1024*i}
buffer_load_dwordx4 v{VB}, s[{SRD_W}:{SRD_W+3}], s60 offen lds""")
    a(f"""v_lshrrev_b32 v{VA}, 5, v1
v_lshlrev_b32 v{VA}, 4, v{VA}
v_bfe_u32 v{VB}, v1, 2, 3
v_add_u32 v{VA}, v{VA}, v{VB}
v_mul_u32_u24 v{VA}, 160, v{VA}
v_and_b32 v{VB}, 3, v1
v_mul_u32_u24 v{VB}, 40, v{VB}
v_add_u32 v{VA}, v{VA}, v{VB}
v_add_u32 v{VA}, s55, v{VA}
v_lshlrev_b32 v{VB}, 4, v1
v_add_u32 v{VC}, 4096, v{VB}
s_waitcnt vmcnt(0)""")
    for nt in range(5):
        r=RAW+4*nt
        a(f"ds_read_b64_tr_b16 v[{r}:{r+1}], v{VA} offset:{8*nt}")
        a(f"ds_read_b64_tr_b16 v[{r+2}:{r+3}], v{VA} offset:{8*nt+1280}")
    for nt in range(5):
        r=RAW+4*nt
        a(f"s_waitcnt lgkmcnt({2*(4-nt)})")
        if nt<4: a(f"buffer_store_dwordx4 v[{r}:{r+3}], v{VB}, s[{SRD_WS}:{SRD_WS+3}], s68 offen offset:{1024*nt} sc0 sc1")
        else: a(f"buffer_store_dwordx4 v[{r}:{r+3}], v{VC}, s[{SRD_WS}:{SRD_WS+3}], s68 offen sc0 sc1")
    a(f"{lx}:")

def w2f_dma(a, W2S, VA, VB, VC, D0=206):
    if not isinstance(W2S,list): W2S=[W2S,W2S+5120]
    for i in range(5):
        a(f"""v_add_u32 v{VA}, {64*i}, v1
v_mul_u32_u24 v{VB}, 6554, v{VA}
v_lshrrev_b32 v{VB}, 16, v{VB}
v_mul_u32_u24 v{VC}, 10, v{VB}
v_sub_u32 v{VC}, v{VA}, v{VC}
v_lshlrev_b32 v{VC}, 4, v{VC}
v_mul_u32_u24 v{VB}, 1280, v{VB}
v_add_u32 v{D0+i}, v{VB}, v{VC}""")
    l1=a.newlabel("L_w1u")
    for n in range(2):
        if n==1: a(f"s_cmp_lt_u32 s53, 128\ns_cbranch_scc1 {l1}")
        a(f"""s_add_u32 s57, s53, {128*n}
s_lshr_b32 s58, s57, 3
s_and_b32 s59, s57, 7
s_mul_i32 s60, s58, {32*1280}
s_mul_i32 s61, s59, 160
s_add_u32 s60, s60, s61
s_mul_i32 s59, s59, 48
s_add_u32 s{68+n}, s59, s58""")
        for i in range(5):
            a(f"s_mov_b32 m0, {W2S[n]+1024*i}")
            a(f"buffer_load_dwordx4 v{D0+i}, s[{SRD_W}:{SRD_W+3}], s60 offen lds")
    a(f"{l1}:")
def w2f_proc(a, W2S, VA, VB, VC, WR_):
    a(f"""v_lshrrev_b32 v{VA}, 5, v1
v_lshlrev_b32 v{VA}, 4, v{VA}
v_bfe_u32 v{VB}, v1, 2, 3
v_add_u32 v{VA}, v{VA}, v{VB}
v_mul_u32_u24 v{VA}, 160, v{VA}
v_and_b32 v{VB}, 3, v1
v_mul_u32_u24 v{VB}, 40, v{VB}
v_add_u32 v{VA}, v{VA}, v{VB}
v_add_u32 v{VA}, {W2S[0]}, v{VA}
v_lshlrev_b32 v{VB}, 4, v1
v_add_u32 v{VC}, 4096, v{VB}
s_waitcnt vmcnt(0)""")
    l1=a.newlabel("L_w2u")
    for n in range(2):
        if n==1: a(f"s_cmp_lt_u32 s53, 128\ns_cbranch_scc1 {l1}")
        a(f"s_mul_i32 s61, s{68+n}, 5120\ns_add_u32 s61, s61, {W2F_OFF}")
        for nt in range(5):
            r=WR_+20*n+4*nt
            a(f"ds_read_b64_tr_b16 v[{r}:{r+1}], v{VA} offset:{W2S[n]-W2S[0]+8*nt}")
            a(f"ds_read_b64_tr_b16 v[{r+2}:{r+3}], v{VA} offset:{W2S[n]-W2S[0]+8*nt+1280}")
        for nt in range(5):
            r=WR_+20*n+4*nt
            a(f"s_waitcnt lgkmcnt({2*(4-nt)})")
            if nt<4: a(f"buffer_store_dwordx4 v[{r}:{r+3}], v{VB}, s[{SRD_WS}:{SRD_WS+3}], s61 offen offset:{1024*nt} sc0 sc1")
            else: a(f"buffer_store_dwordx4 v[{r}:{r+3}], v{VC}, s[{SRD_WS}:{SRD_WS+3}], s61 offen sc0 sc1")
    a(f"{l1}:")
def w2f_flags(a, VE, VZ):
    l2=a.newlabel("L_w3u")
    a(f"""s_lshl_b32 s68, s68, 7
s_add_u32 s68, s68, {FLW}
s_lshl_b32 s69, s69, 7
s_add_u32 s69, s69, {FLW}
s_waitcnt vmcnt(0)
s_mov_b64 exec, 1
buffer_store_dword v{VE}, v{VZ}, s[{SRD_WS}:{SRD_WS+3}], s68 offen sc0 sc1
s_cmp_lt_u32 s53, 128
s_cbranch_scc1 {l2}
buffer_store_dword v{VE}, v{VZ}, s[{SRD_WS}:{SRD_WS+3}], s69 offen sc0 sc1
{l2}:
s_mov_b64 exec, -1""")

def gen_aux(a):
    RAW=2
    XC=130
    VA=200; VB=201; VC=202; VD=203; VZ=204; VX=205
    a(f"v_mov_b32 v{VZ}, 0")
    le=a.newlabel("L_noep")
    a(f"""s_cmp_lg_u32 s53, 0
s_cbranch_scc1 {le}
s_memrealtime s[56:57]
s_waitcnt lgkmcnt(0)
s_or_b32 s56, s56, 1
v_mov_b32 v{VA}, s56
s_mov_b64 exec, 1
buffer_store_dword v{VA}, v{VZ}, s[{SRD_DBG}:{SRD_DBG+3}], 0 offen sc0 sc1
s_mov_b64 exec, -1
{le}:""")
    if MAPX:
        a("""s_and_b32 s72, s53, 3
s_lshl_b32 s72, s72, 2
s_lshr_b32 s73, s53, 6
s_add_u32 s72, s72, s73
s_bfe_u32 s73, s53, 0x10002
s_lshl_b32 s73, s73, 3
s_bfe_u32 s56, s53, 0x30003
s_add_u32 s73, s73, s56""")
    else:
        a("""s_and_b32 s72, s53, 7
s_lshl_b32 s72, s72, 1
s_lshr_b32 s73, s53, 7
s_add_u32 s72, s72, s73
s_lshr_b32 s73, s53, 3
s_and_b32 s73, s73, 15""")
    a(f"""s_lshl_b32 s77, s72, 4
s_add_u32 s77, s77, s73
s_mul_i32 s56, s72, {128*1280}
s_mul_i32 s57, s73, 80
s_add_u32 s56, s56, s57""")
    for i in range(3):
        a(f"""v_add_u32 v{VA}, {64*i}, v1
v_mul_u32_u24 v{VB}, 10923, v{VA}
v_lshrrev_b32 v{VB}, 16, v{VB}
v_mul_u32_u24 v{VC}, 6, v{VB}
v_sub_u32 v{VC}, v{VA}, v{VC}
v_lshlrev_b32 v{VC}, 4, v{VC}
v_mul_u32_u24 v{VB}, 1280, v{VB}
v_add_u32 v{196+i}, v{VB}, v{VC}""")
    for qd in range(4):
        for i in range(3):
            a(f"s_mov_b32 m0, {U0+3072*qd+1024*i}")
            a(f"buffer_load_dwordx4 v{196+i}, s[{SRD_X}:{SRD_X+3}], s56 offen lds")
        if qd<3: a(f"s_add_u32 s56, s56, {32*1280}")
    LRW=2; XF=42; SM=122; TP=130
    a(f"v_mul_u32_u24 v{VA}, 20, v1\ns_mul_i32 s56, s77, {8*1280}")
    for r in range(8):
        a(f"buffer_load_dwordx4 v[{LRW+4*r}:{LRW+4*r+3}], v{VA}, s[{SRD_X}:{SRD_X+3}], s56 offen")
        a(f"buffer_load_dword v{LRW+32+r}, v{VA}, s[{SRD_X}:{SRD_X+3}], s56 offen offset:16")
        if r<7: a(f"s_add_u32 s56, s56, 1280")
    a(f"buffer_load_dword v{VD}, v{VZ}, s[{SRD_DBG}:{SRD_DBG+3}], 0 offen sc0 sc1")
    XR0=146
    a(f"""v_lshrrev_b32 v{VA}, 2, v1
v_mul_u32_u24 v{VA}, 96, v{VA}
v_and_b32 v{VB}, 3, v1
v_lshlrev_b32 v{VC}, 3, v{VB}
v_add_u32 v{VA}, v{VA}, v{VC}
v_add_u32 v{VA}, {U0}, v{VA}
v_and_b32 v196, 15, v1
v_lshlrev_b32 v196, 6, v196
v_lshrrev_b32 v197, 4, v1
v_lshlrev_b32 v197, 3, v197
v_add_u32 v196, v196, v197
v_add_u32 v196, {U0}, v196              ; b64 write addr
v_lshlrev_b32 v197, 4, v1
v_add_u32 v197, {U0}, v197
v_lshrrev_b32 v198, 2, v1
v_lshlrev_b32 v198, 12, v198
v_lshlrev_b32 v{VB}, 4, v{VB}
v_add_u32 v198, v198, v{VB}
s_mul_i32 s56, s73, {40*4096}
s_lshl_b32 s57, s72, 8
s_add_u32 s56, s56, s57
s_add_u32 s56, s56, {G_OFF}
s_add_u32 s57, s56, {16*4096}
s_add_u32 s58, s56, {32*4096}
s_waitcnt vmcnt(17)""")
    stamp(a,1)
    for half in range(2):
        for qd in (2*half,2*half+1):
            for hh in range(2):
                for ct in range(3):
                    r=XR0+12*(qd&1)+2*(3*hh+ct)
                    a(f"ds_read_b64_tr_b16 v[{r}:{r+1}], v{VA} offset:{3072*qd+hh*1536+ct*32}")
        a("s_waitcnt lgkmcnt(0)")
        for qd in (2*half,2*half+1):
            for hh in range(2):
                for ct in range(3):
                    r=XR0+12*(qd&1)+2*(3*hh+ct)
                    a(f"ds_write_b64 v196, v[{r}:{r+1}] offset:{3072*qd+ct*1024+hh*32}")
    a("s_waitcnt lgkmcnt(0)")
    for qd in range(4):
        for ct in range(3):
            r=XR0+12*qd+4*ct
            a(f"ds_read_b128 v[{r}:{r+3}], v197 offset:{3072*qd+ct*1024}")
    a("s_waitcnt vmcnt(0)")
    for qd in range(4):
        a(f"s_waitcnt lgkmcnt({3*(3-qd)})")
        for ct in range(3):
            r=XR0+12*qd+4*ct
            if ct==2: a("s_mov_b32 exec_hi, 0")
            a(f"buffer_store_dwordx4 v[{r}:{r+3}], v198, s[{SRD_WS}:{SRD_WS+3}], s{56+ct} offen offset:{64*qd} sc0 sc1")
            if ct==2: a("s_mov_b64 exec, -1")
    W2S=U0+12288
    if FUSED and not W2LATE and not W2MID: w2f_dma(a, W2S, VA, VB, VC)
    for r in range(8):
        for k in range(5):
            sr = LRW+4*r+k if k<4 else LRW+32+r
            a(f"v_lshlrev_b32 v{XF+10*r+2*k}, 16, v{sr}")
            a(f"v_and_b32 v{XF+10*r+2*k+1}, 0xffff0000, v{sr}")
    for r in range(8):
        b=XF+10*r; t=TP+2*r
        a(f"v_pk_add_f32 v[{t}:{t+1}], v[{b}:{b+1}], v[{b+2}:{b+3}]")
    for k in (4,6,8):
        for r in range(8):
            b=XF+10*r; t=TP+2*r
            a(f"v_pk_add_f32 v[{t}:{t+1}], v[{t}:{t+1}], v[{b+k}:{b+k+1}]")
    for r in range(8): a(f"v_add_f32 v{SM+r}, v{TP+2*r}, v{TP+2*r+1}")
    wave_sum(a,[SM+r for r in range(8)])
    for r in range(8): a(f"v_mul_f32 v{SM+r}, 0x{f2u(-1.0/640):08x}, v{SM+r}")
    for r in range(8): a(f"v_readlane_b32 s{78+2*r}, v{SM+r}, 63")
    for r in range(8):
        for k in range(5):
            b=XF+10*r+2*k
            a(f"v_pk_add_f32 v[{b}:{b+1}], v[{b}:{b+1}], s[{78+2*r}:{79+2*r}] op_sel_hi:[1,0]")
    for r in range(8):
        b=XF+10*r; t=TP+2*r
        a(f"v_pk_mul_f32 v[{t}:{t+1}], v[{b}:{b+1}], v[{b}:{b+1}]")
    for k in (2,4,6,8):
        for r in range(8):
            b=XF+10*r+k; t=TP+2*r
            a(f"v_pk_fma_f32 v[{t}:{t+1}], v[{b}:{b+1}], v[{b}:{b+1}], v[{t}:{t+1}]")
    for r in range(8): a(f"v_add_f32 v{SM+r}, v{TP+2*r}, v{TP+2*r+1}")
    wave_sum(a,[SM+r for r in range(8)])
    for r in range(8): a(f"v_readlane_b32 s{79+2*r}, v{SM+r}, 63")
    lk=a.newlabel("L_epk")
    a(f"""v_readfirstlane_b32 s67, v{VD}
s_cmp_lg_u32 s67, 0
s_cbranch_scc1 {lk}""")
    get_epoch(a,VZ,VD,67)
    a(f"""{lk}:
v_mov_b32 v{LRW+1}, s67
v_mov_b32 v{LRW+3}, s67
""")
    if FUSED:
        a(f"""s_lshl_b32 s56, s73, 4
s_add_u32 s56, s56, s72
s_lshl_b32 s56, s56, 7
s_add_u32 s56, s56, {FL_OFF}
s_waitcnt vmcnt(0)
s_mov_b64 exec, 1
buffer_store_dword v{LRW+1}, v{VZ}, s[{SRD_WS}:{SRD_WS+3}], s56 offen sc0 sc1
s_mov_b64 exec, -1""")
    for r in range(8):
        a(f"v_writelane_b32 v{LRW}, s{79+2*r}, {r}")
        a(f"v_writelane_b32 v{LRW+2}, s{78+2*r}, {r}")
    a(f"""s_mov_b32 s56, 0x{f2u(1.0/640):08x}
v_mov_b32 v{VB}, 0x{f2u(1e-5):08x}
v_fma_f32 v{LRW}, v{LRW}, s56, v{VB}
v_rsq_f32 v{LRW}, v{LRW}
v_lshlrev_b32 v{VB}, 4, v1
s_lshl_b32 s56, s77, 7
s_add_u32 s56, s56, {ST_OFF}
v_mul_f32 v{LRW+2}, v{LRW+2}, v{LRW}
s_mov_b64 exec, 0xff
buffer_store_dwordx4 v[{LRW}:{LRW+3}], v{VB}, s[{SRD_WS}:{SRD_WS+3}], s56 offen sc0 sc1
s_mov_b64 exec, -1""")
    stamp(a,2)
    if not FUSED or "w2f" in SKIP: return
    if not W2LATE and not W2MID: w2f_proc(a, [W2S, W2S+5120], VA, VB, VC, 42)
    a(f"""s_mul_i32 s56, s64, 1639
s_lshr_b32 s56, s56, 16
s_add_u32 s57, s64, s63
s_sub_u32 s57, s57, 1
s_mul_i32 s57, s57, 1639
s_lshr_b32 s57, s57, 16
s_lshl_b32 s56, s56, 11
s_lshl_b32 s57, s57, 11
v_mov_b32 v{VB}, s56
v_mov_b32 v{VC}, s57
v_and_b32 v{VD}, 16, v1
v_cmp_eq_u32 vcc, 0, v{VD}
v_cndmask_b32 v{VB}, v{VC}, v{VB}, vcc
v_and_b32 v{VD}, 15, v1
v_lshlrev_b32 v{VD}, 7, v{VD}
v_add_u32 v{VB}, v{VB}, v{VD}
s_mov_b32 s56, {FL_OFF}
""")
    if not W2LATE and not W2MID: w2f_flags(a, LRW+1, VZ)
    a(f"""s_mov_b32 s98, {1 if NOWAIT else 200000}""")
    stamp(a,3)
    lp=a.newlabel("L_poll"); ld=a.newlabel("L_polld")
    a(f"""{lp}:
buffer_load_dword v{RAW+4}, v{VB}, s[{SRD_WS}:{SRD_WS+3}], s56 offen sc0 sc1
s_waitcnt vmcnt(0)
v_cmp_ne_u32 vcc, s67, v{RAW+4}
s_nop 1
s_cmp_eq_u64 vcc, 0
s_cbranch_scc1 {ld}
s_sleep 4
s_sub_u32 s98, s98, 1
s_cmp_lg_u32 s98, 0
s_cbranch_scc1 {lp}
{ld}:""")
    stamp(a,4)
    if W2MID:
        w2f_dma(a, W2S, VA, VB, VC)
        w2f_proc(a, [W2S, W2S+5120], VA, VB, VC, 42)
        w2f_flags(a, LRW+1, VZ)

def gen_stage_head(a):
    RAW=2
    XC=34
    VA=46; VB=47; VX=48; VZ=49; TT=50
    le=a.newlabel("L_noep")
    a(f"""v_mov_b32 v{VZ}, 0
s_or_b32 s56, s53, s{S_WAVE}
s_cmp_lg_u32 s56, 0
s_cbranch_scc1 {le}
s_memrealtime s[56:57]
s_waitcnt lgkmcnt(0)
s_or_b32 s56, s56, 1
v_mov_b32 v{VA}, s56
s_mov_b64 exec, 1
buffer_store_dword v{VA}, v{VZ}, s[{SRD_DBG}:{SRD_DBG+3}], 0 offen sc0 sc1
s_mov_b64 exec, -1
{le}:
v_sub_u32 v{VA}, 63, v1
v_lshlrev_b32 v{VX}, 2, v{VA}
v_lshlrev_b32 v{VA}, 5, v{VA}
s_lshl_b32 s56, s{S_WAVE}, 2
s_sub_u32 s56, 12, s56
s_lshl_b32 s57, s56, 11
s_add_u32 s57, s57, {ST_OFF}
s_lshl_b32 s58, s56, 8
s_lshl_b32 s59, s64, 12
s_add_u32 s58, s58, s59
s_add_u32 s58, s58, {G_OFF}
s_add_u32 s59, s58, 4096
s_add_u32 s60, s58, 8192
s_add_u32 s61, s57, 4096""")
    KP=80
    a(f"""v_lshlrev_b32 v{VB}, 4, v1
s_min_u32 s62, s{S_WAVE}, 2
s_add_u32 s62, s64, s62
s_lshl_b32 s62, s62, 11
s_add_u32 s62, s62, {KI_OFF}
s_mul_i32 s65, s{S_WAVE}, {REG}
buffer_load_dwordx4 v[{KP}:{KP+3}], v{VB}, s[{SRD_WS}:{SRD_WS+3}], s62 offen
buffer_load_dwordx4 v[{KP+4}:{KP+7}], v{VB}, s[{SRD_WS}:{SRD_WS+3}], s62 offen offset:1024""")
    for jj in range(4):
        o=2048*(3-jj); sb=57 if o<4096 else 61; o%=4096
        a(f"buffer_load_dwordx4 v[{RAW+8*jj}:{RAW+8*jj+3}], v{VA}, s[{SRD_WS}:{SRD_WS+3}], s{sb} offen offset:{o}")
        a(f"buffer_load_dwordx4 v[{RAW+8*jj+4}:{RAW+8*jj+7}], v{VA}, s[{SRD_WS}:{SRD_WS+3}], s{sb} offen offset:{o+16}")
        for k in range(3):
            a(f"buffer_load_dword v{XC+4*k+jj}, v{VX}, s[{SRD_WS}:{SRD_WS+3}], s{58+k} offen offset:{256*(3-jj)}")
    lk=a.newlabel("L_nok")
    a(f"""s_cmp_ge_u32 s{S_WAVE}, s63
s_cbranch_scc1 {lk}
s_waitcnt vmcnt(20)""")
    gen_kexpand(a, KP, 88, 104, 128, 129, 130, 131, 132)
    a(f"""{lk}:
v_add_u32 v{VB}, {U0}, v{VB}""")

def gen_stage(a):
    RAW=2; XC=34; VA=46; VB=47; VX=48; VZ=49; TT=50
    if FUSED:
        lr=a.newlabel("L_sret"); lg=a.newlabel("L_sgo")
        a(f"""v_mov_b32 v{VZ}, 0
v_sub_u32 v{VA}, 63, v1
v_lshlrev_b32 v{VX}, 2, v{VA}
v_lshlrev_b32 v{VA}, 5, v{VA}
s_lshl_b32 s56, s{S_WAVE}, 2
s_sub_u32 s56, 12, s56
s_lshl_b32 s57, s56, 11
s_add_u32 s57, s57, {ST_OFF}
s_lshl_b32 s58, s56, 8
s_lshl_b32 s59, s64, 12
s_add_u32 s58, s58, s59
s_add_u32 s58, s58, {G_OFF}
s_add_u32 s59, s58, 4096
s_add_u32 s60, s58, 8192
s_add_u32 s61, s57, 4096
v_lshlrev_b32 v{VB}, 4, v1
v_add_u32 v{VB}, {U0}, v{VB}
s_mov_b32 s98, {1 if NOWAIT else 200000}
s_waitcnt lgkmcnt(0)""")
        stamp(a,9)
        a("s_barrier")
        a(f"buffer_load_dword v{TT+24}, v{VZ}, s[{SRD_DBG}:{SRD_DBG+3}], 0 offen sc0 sc1")
        for jj in range(4):
            for k in range(3):
                a(f"buffer_load_dword v{XC+4*k+jj}, v{VX}, s[{SRD_WS}:{SRD_WS+3}], s{58+k} offen offset:{256*(3-jj)} sc0 sc1")
        a(f"{lr}:")
        for jj in range(4):
            o=2048*(3-jj); sb=57 if o<4096 else 61; o%=4096
            a(f"buffer_load_dwordx4 v[{RAW+8*jj}:{RAW+8*jj+3}], v{VA}, s[{SRD_WS}:{SRD_WS+3}], s{sb} offen offset:{o} sc0 sc1")
            a(f"buffer_load_dwordx4 v[{RAW+8*jj+4}:{RAW+8*jj+7}], v{VA}, s[{SRD_WS}:{SRD_WS+3}], s{sb} offen offset:{o+16} sc0 sc1")
        a(f"s_waitcnt vmcnt(0)\nv_readfirstlane_b32 s67, v{TT+24}\nv_mov_b32 v{TT}, 0")
        for i in range(8):
            r=RAW+4*i
            a(f"v_xor_b32 v{TT+1}, s67, v{r+1}\nv_xor_b32 v{TT+2}, s67, v{r+3}\nv_or3_b32 v{TT}, v{TT}, v{TT+1}, v{TT+2}")
        a(f"""v_cmp_ne_u32 vcc, 0, v{TT}
s_nop 1
s_cmp_eq_u64 vcc, 0
s_cbranch_scc1 {lg}
s_sub_u32 s98, s98, 1
s_cmp_eq_u32 s98, 0
s_cbranch_scc1 {lg}
s_sleep 4
s_branch {lr}
{lg}:""")
    else:
        gen_stage_head(a)
    for i in range(4): a(f"v_mov_b32 v{TT+20+i}, 0")
    lz=a.newlabel("L_noz")
    a(f"""s_cmp_lg_u32 s{S_WAVE}, 3
s_cbranch_scc1 {lz}
s_mov_b64 exec, 0xf""")
    for k in range(3):
        a(f"ds_write_b128 v{VB}, v[{TT+20}:{TT+23}] offset:{k*UCH+UC1+4096}")
        a(f"ds_write_b128 v{VB}, v[{TT+20}:{TT+23}] offset:{k*UCH+4096}")
    a(f"""s_mov_b64 exec, -1
{lz}:
s_lshl_b32 s56, s{S_WAVE}, 10
s_add_u32 s56, s56, {U0}
s_mov_b32 m0, s56
s_waitcnt vmcnt(0)""")
    stamp(a,1)
    for jj in range(4):
        r=RAW+8*jj; t=TT+9*(jj%2)
        for k in range(3):
            a(f"v_lshlrev_b32 v{t+2*k}, 16, v{XC+4*k+jj}")
            a(f"v_and_b32 v{t+2*k+1}, 0xffff0000, v{XC+4*k+jj}")
        for k in range(3):
            a(f"v_fma_f32 v{t+2*k}, v{t+2*k}, v{r}, v{r+2}")
            a(f"v_fma_f32 v{t+2*k+1}, v{t+2*k+1}, v{r+4}, v{r+6}")
        for k in range(3):
            a(f"v_cvt_pk_bf16_f32 v{t+6+k}, v{t+2*k+1}, v{t+2*k}")
        if jj>0:
            tp=TT+9*((jj-1)%2)
            for k in range(3):
                a(f"ds_write_addtid_b32 v{tp+6+k} offset:{k*UCH+UC1+256*(jj-1)}")
                a(f"ds_write_addtid_b32 v{tp+6+k} offset:{k*UCH+256*(jj-1)+4}")
    tp=TT+9
    for k in range(3):
        a(f"ds_write_addtid_b32 v{tp+6+k} offset:{k*UCH+UC1+256*3}")
        a(f"ds_write_addtid_b32 v{tp+6+k} offset:{k*UCH+256*3+4}")
    a(f"buffer_load_dword v7, v{VZ}, s[{SRD_DBG}:{SRD_DBG+3}], 0 offen sc0 sc1")

def gen_conv(a):
    VA0=2; VB0=3; VF=4; VAu=5; VBu=6; T=8
    ACC=12
    F=[44,108]
    a(f"""v_and_b32 v{T}, 15, v1
v_lshrrev_b32 v{T+1}, 4, v1
v_and_b32 v{T+2}, 1, v1
v_mul_u32_u24 v{VA0}, {KC1}, v{T+2}
v_lshrrev_b32 v{T+3}, 1, v{T}
v_lshlrev_b32 v{T+3}, 6, v{T+3}
v_add_u32 v{VA0}, v{VA0}, v{T+3}
v_lshlrev_b32 v{T+3}, 4, v{T+1}
v_add_u32 v{VA0}, v{VA0}, v{T+3}
v_mul_u32_u24 v{VB0}, {UC1}, v{T+2}
v_add_u32 v{VB0}, v{VB0}, v{T+3}
v_add_u32 v{T+3}, v{T}, v{T+2}
v_lshlrev_b32 v{T+3}, 2, v{T+3}
v_sub_u32 v{VB0}, v{VB0}, v{T+3}
v_add_u32 v{VB0}, {U0+2*(1824-1792)}, v{VB0}
v_lshlrev_b32 v{VF}, 4, v1
v_add_u32 v{VF}, {YB}, v{VF}
s_lshl_b32 s54, s63, 1
s_mul_i32 s55, s54, s{S_WAVE}
s_add_u32 s56, s55, s54""")
    for i in range(32): a(f"v_mov_b32 v{ACC+i}, 0")
    def addr(su):
        return f"""s_lshr_b32 s57, s{su}, 3
s_and_b32 s58, s{su}, 7
s_lshl_b32 s58, s58, 6
s_mul_i32 s59, s57, {REG}
s_mul_i32 s60, s57, {UCH}
s_add_u32 s59, s59, s58
s_add_u32 s60, s60, s58
v_add_u32 v{VAu}, s59, v{VA0}
v_add_u32 v{VBu}, s60, v{VB0}"""
    def reads(b):
        L=[]
        for k in range(8):
            L.append(f"ds_read_b128 v[{F[b]+4*k}:{F[b]+4*k+3}], v{VAu} offset:{512*k}")
            L.append(f"ds_read_b64 v[{F[b]+32+4*k}:{F[b]+32+4*k+1}], v{VBu} offset:{512*(7-k)}")
            L.append(f"ds_read_b64 v[{F[b]+32+4*k+2}:{F[b]+32+4*k+3}], v{VBu} offset:{512*(7-k)+8}")
        return L
    def mfmas(b):
        prs=[(i,c-i) for c in range(8) for i in range(c+1)]
        prs.sort(key=lambda p:(p[0], p[1]))
        return [f"v_mfma_f32_16x16x32_bf16 v[{ACC+4*(i+c)}:{ACC+4*(i+c)+3}], v[{F[b]+4*i}:{F[b]+4*i+3}], v[{F[b]+32+4*c}:{F[b]+32+4*c+3}], v[{ACC+4*(i+c)}:{ACC+4*(i+c)+3}]" for i,c in prs]
    if FUSED and CWAIT:
        lx_=a.newlabel("L_cw"); lp_=a.newlabel("L_cwp")
        a(f"""s_cmp_lg_u32 s{S_WAVE}, 3
s_cbranch_scc1 {lx_}""")
        if W2LATE:
            w2f_dma(a,[YB,REG+YB],180,181,182,184)
            w2f_proc(a,[YB,REG+YB],180,181,182,190)
            a("v_mov_b32 v183, s67\nv_mov_b32 v189, 0")
            w2f_flags(a,183,189)
        a(f"""s_lshl_b32 s57, s77, 7
s_add_u32 s57, s57, {FLA}
v_mov_b32 v{T}, 64
s_mov_b32 s98, {1 if NOWAIT else 200000}
{lp_}:
buffer_load_dword v{T+1}, v{T}, s[{SRD_WS}:{SRD_WS+3}], s57 offen sc0 sc1
s_waitcnt vmcnt(0)
v_cmp_ne_u32 vcc, s67, v{T+1}
s_nop 1
s_cmp_eq_u64 vcc, 0
s_cbranch_scc1 {lx_}
s_sub_u32 s98, s98, 1
s_cmp_eq_u32 s98, 0
s_cbranch_scc1 {lx_}
s_sleep 4
s_branch {lp_}
{lx_}:""")
    a("s_waitcnt lgkmcnt(0)")
    stamp(a,5)
    a("s_barrier")
    stamp(a,6)
    a(addr(55))
    for l in reads(0): a(l)
    lloop=a.newlabel("L_cv"); lfl=a.newlabel("L_fl"); lend=a.newlabel("L_cve"); lnofl=a.newlabel("L_nofl")
    a(f"{lloop}:")
    for b in range(2):
        a("s_add_u32 s55, s55, 1")
        a(addr(55))
        a("s_waitcnt lgkmcnt(0)")
        rd=reads(1-b); mf=mfmas(b)
        while mf:
            a(mf.pop(0))
            if rd: a(rd.pop(0))
            if mf and len(rd)<=12:
                a(mf.pop(0))
    a(f"""s_cmp_eq_u32 s55, s56
s_cbranch_scc1 {lend}
s_and_b32 s58, s55, 7
s_cmp_lg_u32 s58, 0
s_cbranch_scc1 {lloop}
s_lshr_b32 s57, s55, 3
s_sub_u32 s57, s57, 1
s_mul_i32 s57, s57, {REG}
v_add_u32 v{T}, s57, v{VF}""")
    a.nop(6)
    for c in range(8): a(f"ds_write_b128 v{T}, v[{ACC+4*c}:{ACC+4*c+3}] offset:{1024*c}")
    for i in range(32): a(f"v_mov_b32 v{ACC+i}, 0")
    a(f"""s_branch {lloop}
{lend}:
s_setprio 3
s_sub_u32 s57, s56, 1
s_lshr_b32 s57, s57, 3
s_mul_i32 s58, s57, {REG}
v_add_u32 v{T}, s58, v{VF}
s_and_b32 s59, s{S_WAVE}, 1
s_cmp_eq_u32 s{S_WAVE}, 2
s_cselect_b32 s60, 1, 0
s_cmp_eq_u32 s63, 3
s_cselect_b32 s59, s60, s59
s_cmp_eq_u32 s59, 0
s_cbranch_scc1 {lnofl}""")
    a.nop(9)
    for c in range(8): a(f"ds_write_b128 v{T}, v[{ACC+4*c}:{ACC+4*c+3}] offset:{1024*c}")
    a(f"""{lnofl}:
s_waitcnt lgkmcnt(0)""")
    stamp(a,7)
    lx=a.newlabel("L_cvx")
    a(f"""s_barrier
s_cmp_lg_u32 s59, 0
s_cbranch_scc1 {lx}""")
    P=F[0]
    for c in range(8): a(f"ds_read_b128 v[{P+4*c}:{P+4*c+3}], v{T} offset:{1024*c}")
    a(f"""v_lshrrev_b32 v{T+1}, 4, v1
v_lshlrev_b32 v{T+1}, 7, v{T+1}
v_and_b32 v{T+2}, 15, v1
v_lshlrev_b32 v{T+2}, 2, v{T+2}
v_add_u32 v{T+1}, v{T+2}, v{T+1}
s_add_u32 s61, s57, s64
s_mul_i32 s57, s61, {GS}
s_add_u32 s57, s57, {Y_OFF}""")
    for c in range(8):
        a(f"s_waitcnt lgkmcnt({7-c})")
        a(f"v_pk_add_f32 v[{P+4*c}:{P+4*c+1}], v[{P+4*c}:{P+4*c+1}], v[{ACC+4*c}:{ACC+4*c+1}]")
        a(f"v_pk_add_f32 v[{P+4*c+2}:{P+4*c+3}], v[{P+4*c+2}:{P+4*c+3}], v[{ACC+4*c+2}:{ACC+4*c+3}]")
        a(f"v_cvt_pk_bf16_f32 v{ACC+4*c}, v{P+4*c}, v{P+4*c+1}")
        a(f"v_cvt_pk_bf16_f32 v{ACC+4*c+1}, v{P+4*c+2}, v{P+4*c+3}")
        if c>0:
            a(f"buffer_store_dword v{ACC+4*(c-1)}, v{T+1}, s[{SRD_WS}:{SRD_WS+3}], s57 offen offset:{512*(c-1)} sc0 sc1")
            a(f"buffer_store_dword v{ACC+4*(c-1)+1}, v{T+1}, s[{SRD_WS}:{SRD_WS+3}], s57 offen offset:{512*(c-1)+64} sc0 sc1")
    a(f"buffer_store_dword v{ACC+28}, v{T+1}, s[{SRD_WS}:{SRD_WS+3}], s57 offen offset:{512*7} sc0 sc1")
    a(f"buffer_store_dword v{ACC+29}, v{T+1}, s[{SRD_WS}:{SRD_WS+3}], s57 offen offset:{512*7+64} sc0 sc1")
    lk=a.newlabel("L_cepk")
    a(f"""v_mov_b32 v{T}, 0
s_waitcnt vmcnt(0)
v_readfirstlane_b32 s67, v7
s_cmp_lg_u32 s67, 0
s_cbranch_scc1 {lk}""")
    get_epoch(a,T,7,67)
    a(f"""{lk}:
s_lshl_b32 s61, s61, 7
s_add_u32 s61, s61, {FLY if FUSED else FL_OFF}
v_mov_b32 v7, s67
s_mov_b64 exec, 1
buffer_store_dword v7, v{T}, s[{SRD_WS}:{SRD_WS+3}], s61 offen sc0 sc1
s_mov_b64 exec, -1""")
    a(f"{lx}:")

def wave_sum(a, regs):
    for mod in ("row_shr:1","row_shr:2","row_shr:4","row_shr:8"):
        for r in regs:
            a(f"v_add_f32_dpp v{r}, v{r}, v{r} {mod} row_mask:0xf bank_mask:0xf bound_ctrl:1")
    for r in regs:
        a(f"v_add_f32_dpp v{r}, v{r}, v{r} row_bcast:15 row_mask:0xa bank_mask:0xf")
    for r in regs:
        a(f"v_add_f32_dpp v{r}, v{r}, v{r} row_bcast:31 row_mask:0xc bank_mask:0xf")

def gen_gemm1(a, opt):
    NXS=7; WR=4
    XL=WR*12288
    XG=2; XW=3; XR=4; WS=5; WRD=8; T=11
    VZ=15; ONES=16; ACC=20; CS=68; FR=84; XS=132; EP=244; STR=246
    B1R=250
    vm=VM(a)
    a("s_and_b32 s53, s2, 255\ns_and_b32 s54, s53, 7\ns_lshr_b32 s55, s53, 3")
    if opt.get("map1","loc")=="loc":
        a("s_lshl_b32 s56, s54, 1\ns_lshr_b32 s57, s55, 4\ns_add_u32 s56, s56, s57\ns_and_b32 s57, s55, 15")
    else:
        a("""s_and_b32 s56, s54, 3
s_lshl_b32 s56, s56, 2
s_lshr_b32 s57, s55, 3
s_add_u32 s56, s56, s57
s_lshr_b32 s57, s54, 2
s_lshl_b32 s57, s57, 3
s_and_b32 s58, s55, 7
s_add_u32 s57, s57, s58""")
    a(f"""s_lshl_b32 s60, s56, 7
s_lshl_b32 s61, s{S_WAVE}, 5
s_add_u32 s60, s60, s61
s_mul_i32 s61, s60, 1280
v_lshrrev_b32 v{T}, 3, v1
v_mul_u32_u24 v{XG}, 1280, v{T}
v_and_b32 v{T+1}, 7, v1
v_lshlrev_b32 v{T+2}, 4, v{T+1}
v_add_u32 v{XG}, v{XG}, v{T+2}
v_add_u32 v{XG}, s61, v{XG}""")
    ROT=opt.get("rot","2")
    if opt.get("map1","loc")=="loc":
        a("s_and_b32 s70, s56, 1\ns_mul_i32 s70, s70, 5\ns_add_u32 s70, s70, s57")
    else:
        a("s_and_b32 s70, s56, 3\ns_mul_i32 s70, s70, 3\ns_and_b32 s71, s57, 7\ns_add_u32 s70, s70, s71")
    if ROT=="2": a("s_add_u32 s70, s70, s54")
    if ROT=="0": a("s_mov_b32 s70, 0")
    a("""s_mul_i32 s71, s70, 6554
s_lshr_b32 s71, s71, 16
s_mul_i32 s71, s71, 10
s_sub_u32 s70, s70, s71
s_lshl_b32 s70, s70, 7""")
    for S in range(10):
        a(f"""s_add_u32 s71, s70, {128*S}
s_sub_u32 s72, s71, 1280
s_cmp_ge_u32 s71, 1280
s_cselect_b32 s{80+S}, s72, s71""")
    items=[]
    for S in range(10):
        items+=[("x",S,0),("w",S,0),("x",S,1),("w",S,1),("x",S,2),("w",S,2),("x",S,3)]
    st={"wr":-1,"bar":-1,"wok":False}
    def can(it):
        k,n,_=it
        if k=="x": return n-NXS<=st["wr"]
        if not st["wok"]: return False
        return n<WR or st["bar"]>=n-WR+1
    def pump(n=1):
        c=0
        while c<n:
            idx=next((i for i,it in enumerate(items) if can(it)),None)
            if idx is None: return
            k,m,h=items.pop(idx)
            if k=="x":
                r=XS+16*(m%NXS)+4*h
                a(f"s_add_u32 s65, s{80+m}, {h*8*1280}")
                a(f"buffer_load_dwordx4 v[{r}:{r+3}], v{XG}, s[{SRD_X}:{SRD_X+3}], s65 offen")
            else:
                a(f"s_mul_i32 s65, s{80+m}, 1536")
                a(f"s_add_u32 m0, s64, {(m%WR)*12288+1024*h}")
                a(f"buffer_load_dwordx4 v{WS+h}, s[{SRD_W}:{SRD_W+3}], s65 offen lds")
            vm.issue((k,m)); c+=1
    def spaced(lines, every):
        for i,l in enumerate(lines):
            a(l)
            if every and i%every==every-1: pump(1)
    pump(4)
    a(f"s_mul_i32 s62, s57, 192\ns_mul_i32 s63, s{S_WAVE}, {16*3072}\ns_add_u32 s62, s62, s63\ns_mul_i32 s64, s{S_WAVE}, 3072")
    for i in range(3):
        a(f"""v_add_u32 v{T}, {64*i}, v1
v_mul_u32_u24 v{T+1}, 5462, v{T}
v_lshrrev_b32 v{T+1}, 16, v{T+1}
v_mul_u32_u24 v{T+2}, 12, v{T+1}
v_sub_u32 v{T+2}, v{T}, v{T+2}
v_lshlrev_b32 v{T+2}, 4, v{T+2}
v_mul_u32_u24 v{T+1}, 3072, v{T+1}
v_add_u32 v{T+1}, v{T+1}, v{T+2}
v_add_u32 v{WS+i}, s62, v{T+1}""")
    st["wok"]=True
    pump(3)
    setup=f"""s_lshl_b32 s66, s{S_WAVE}, 13
s_add_u32 s66, s66, {XL}
v_lshrrev_b32 v{T}, 3, v1
v_lshrrev_b32 v{T+1}, 1, v{T}
v_and_b32 v{T+2}, 7, v1
v_xor_b32 v{T+1}, v{T+1}, v{T+2}
v_lshlrev_b32 v{T+1}, 4, v{T+1}
v_lshlrev_b32 v{T}, 7, v{T}
v_add_u32 v{XW}, v{T}, v{T+1}
v_add_u32 v{XW}, s66, v{XW}
v_and_b32 v{T}, 31, v1
v_bfe_u32 v{T+1}, v1, 1, 3
v_lshrrev_b32 v{T+2}, 5, v1
v_xor_b32 v{T+1}, v{T+1}, v{T+2}
v_lshlrev_b32 v{T+1}, 4, v{T+1}
v_lshlrev_b32 v{T}, 7, v{T}
v_add_u32 v{XR}, v{T}, v{T+1}
v_add_u32 v{XR}, s66, v{XR}
s_cmp_eq_u32 s{S_WAVE}, 3
s_cselect_b32 s67, 0, s{S_WAVE}
s_add_u32 s68, s67, 1
s_cmp_eq_u32 s68, 3
s_cselect_b32 s68, 0, s68
s_add_u32 s69, s68, 1
s_cmp_eq_u32 s69, 3
s_cselect_b32 s69, 0, s69
v_lshrrev_b32 v{T}, 5, v1
v_lshlrev_b32 v{T}, 3, v{T}
v_bfe_u32 v{T+1}, v1, 2, 2
v_add_u32 v{T}, v{T}, v{T+1}
v_mul_u32_u24 v{T}, 192, v{T}
v_bfe_u32 v{T+1}, v1, 4, 1
v_lshlrev_b32 v{T+1}, 5, v{T+1}
v_add_u32 v{T}, v{T}, v{T+1}
v_and_b32 v{T+1}, 3, v1
v_lshlrev_b32 v{T+1}, 3, v{T+1}
v_add_u32 v{T}, v{T}, v{T+1}
v_mov_b32 v{VZ}, 0""".split("\n")
    for ft in range(3):
        setup+=[f"s_lshl_b32 s71, s{67+ft}, 6", f"v_add_u32 v{WRD+ft}, s71, v{T}"]
    setup+=[f"v_mov_b32 v{ONES+i}, 0x3f803f80" for i in range(4)]+[f"v_mov_b32 v{ACC+i}, 0" for i in range(64)]
    spaced(setup, int(opt.get("e1",16)))
    def wrx(S,h):
        assert not any(it[0]=="x" and it[1]==S for it in items), ("x not issued",S)
        if h==0: vm.wait_for(("x",S))
        r=XS+16*(S%NXS)+4*h
        a(f"ds_write_b128 v{XW if h%2==0 else F2}, v[{r}:{r+3}] offset:{(S&1)*4096+1024*h}")
        if h==3: st["wr"]=S
    F2=251
    a(f"v_xor_b32 v{F2}, 64, v{XW}")
    def reads(u):
        S=u//4; ks=u%4; fb=FR+16*(u%3)
        wo=(S%WR)*12288+ks*16*192
        out=[f"ds_read_b128 v[{fb+12}:{fb+15}], v{XRK[ks]} offset:{(S&1)*4096}"]
        for i in range(3):
            out.append(f"ds_read_b64_tr_b16 v[{fb+4*i}:{fb+4*i+1}], v{WRD+i} offset:{wo}")
            out.append(f"ds_read_b64_tr_b16 v[{fb+4*i+2}:{fb+4*i+3}], v{WRD+i} offset:{wo+768}")
        return out
    XRK=[XR,252,253,254]
    for ks in range(1,4): a(f"v_xor_b32 v{XRK[ks]}, {32*ks}, v{XR}")
    def mfmas(u):
        fb=FR+16*(u%3); out=[]
        for ft in range(3):
            c=ACC+16*ft
            out.append(f"v_mfma_f32_32x32x16_bf16 v[{c}:{c+15}], v[{fb+4*ft}:{fb+4*ft+3}], v[{fb+12}:{fb+15}], v[{c}:{c+15}]")
        out.append(f"v_mfma_f32_32x32x16_bf16 v[{CS}:{CS+15}], v[{fb}:{fb+3}], v[{ONES}:{ONES+3}], v[{CS}:{CS+15}]")
        return out
    for h in range(4): wrx(0,h)
    vm.wait_for(("w",0))
    a("s_waitcnt lgkmcnt(0)\ns_barrier")
    st["bar"]=0
    stamp(a,1)
    for l in reads(0)+reads(1): a(l)
    pump(2)
    Q=int(opt.get("q",2))
    lq=14
    for u in range(40):
        S=u//4; ks=u%4
        if u==20: stamp(a,2)
        PU=int(opt.get("pu",28))
        if PROF and PU<=u<PU+4: a(f"s_memtime s[{90+2*(u-PU)}:{91+2*(u-PU)}]")
        if PROF and u==PU+4:
            a("s_memtime s[70:71]\ns_waitcnt lgkmcnt(0)")
            for i in range(1,4): a(f"s_sub_u32 s{90+2*i}, s{90+2*i}, s90\nv_writelane_b32 v255, s{90+2*i}, {8+i}")
            a("s_sub_u32 s70, s70, s90\nv_writelane_b32 v255, s70, 12")
        nb = (u+2)<40
        isbar = nb and (u+2)%4==0
        mf=mfmas(u); rd=reads(u+2) if nb else []
        a(f"s_waitcnt lgkmcnt({min(15,st.get('after',7))})")
        Sw=(u+6)//4; hw=(u+6)%4
        wr=[(Sw,hw)] if Sw<10 else []
        if u<2: wr=[(1,2*u),(1,2*u+1)]
        after=0
        q=Q
        for i in range(4):
            a(mf[i])
            if isbar:
                if i==0 and q>0: pump(1); q-=1
                if i==1:
                    assert not any(it[0]=="w" and it[1]==S+1 for it in items), ("w not issued",S+1)
                    vm.wait_for(("w",S+1))
                    a("s_waitcnt lgkmcnt(0)\ns_barrier")
                    st["bar"]=S+1; after=0
                nr = 0 if i<1 else (3 if i<3 else 1)
            else:
                nr = 2
            for _ in range(nr):
                if rd: a(rd.pop(0)); after+=1
            if not isbar and q>0 and i in (1,2): pump(1); q-=1
            if isbar and i==2 and q>0: pump(1); q-=1
            if (i==3 or (i==2 and len(wr)>1)) and wr:
                wrx(*wr.pop(0)); after+=1
        assert not rd and not wr
        st["after"]=after; lq=1
        if u==24:
            a(f"buffer_load_dword v{EP}, v{VZ}, s[{SRD_DBG}:{SRD_DBG+3}], 0 offen sc0 sc1"); vm.issue("ep")
            a(f"""v_lshlrev_b32 v{T}, 2, v1
s_mul_i32 s70, s57, 192
v_add_u32 v{T}, s70, v{T}
global_load_dword v{B1R}, v{T}, s[{S_B1}:{S_B1+1}]""".replace("v_lshlrev_b32 v%d, 2, v1"%T, "v_min_u32 v%d, 47, v1\nv_lshlrev_b32 v%d, 2, v%d"%(T,T,T)))
            vm.issue("b1")
        if u==int(opt.get("hint",99)) and FUSED:
            lh=a.newlabel("L_hint")
            vm.wait_for("ep")
            a(f"""v_readfirstlane_b32 s76, v{EP}
s_lshl_b32 s72, s56, 4
s_add_u32 s72, s72, s57
s_lshl_b32 s72, s72, 7
s_add_u32 s72, s72, {FLA+64}
s_cmp_lg_u32 s{S_WAVE}, 0
s_cbranch_scc1 {lh}
s_mov_b64 exec, 1
buffer_store_dword v{EP}, v{VZ}, s[{SRD_WS}:{SRD_WS+3}], s72 offen sc0 sc1
s_mov_b64 exec, -1
{lh}:""")
        if u==34:
            a(f"""v_and_b32 v{T+1}, 31, v1
v_lshlrev_b32 v{T+1}, 4, v{T+1}
s_lshl_b32 s71, s60, 4
s_add_u32 s71, s71, {ST_OFF}
buffer_load_dwordx4 v[{STR}:{STR+3}], v{T+1}, s[{SRD_WS}:{SRD_WS+3}], s71 offen sc0 sc1""")
            vm.issue("st")
    assert not items
    stamp(a,3)
    CSL=XL+16384; B1L=CSL+512
    lk=a.newlabel("L_gek"); lp=a.newlabel("L_gp"); ld=a.newlabel("L_gpd")
    a(f"""s_waitcnt vmcnt(0)
v_lshrrev_b32 v{T}, 5, v1
v_lshlrev_b32 v{T}, 4, v{T}                ; 16h
s_lshl_b32 s70, s67, 7
s_add_u32 s70, s70, {CSL}
v_add_u32 v{T+2}, s70, v{T}
v_lshlrev_b32 v{FR}, 16, v{B1R}
v_and_b32 v{FR+1}, 0xffff0000, v{B1R}
v_lshlrev_b32 v{T+3}, 3, v1
v_add_u32 v{T+3}, {B1L}, v{T+3}
v_readfirstlane_b32 s76, v{EP}
s_mov_b32 exec_lo, 1
s_mov_b32 exec_hi, 1""")
    for q_ in range(4): a(f"ds_write_b128 v{T+2}, v[{CS+4*q_}:{CS+4*q_+3}] offset:{32*q_}")
    a(f"""s_mov_b32 exec_lo, -1
s_mov_b32 exec_hi, 0xffff
ds_write_b64 v{T+3}, v[{FR}:{FR+1}]
s_mov_b64 exec, -1
s_cmp_lg_u32 s76, 0
s_cbranch_scc1 {lk}""")
    get_epoch(a,VZ,EP,76)
    a(f"""{lk}:
s_mov_b32 s98, {1 if NOWAIT else 200000}
{lp}:
v_xor_b32 v{T+2}, s76, v{STR+1}
v_xor_b32 v{T+3}, s76, v{STR+3}
v_or_b32 v{T+2}, v{T+2}, v{T+3}
v_cmp_ne_u32 vcc, 0, v{T+2}
s_nop 1
s_cmp_eq_u64 vcc, 0
s_cbranch_scc1 {ld}
s_sub_u32 s98, s98, 1
s_cmp_eq_u32 s98, 0
s_cbranch_scc1 {ld}
s_sleep 2
buffer_load_dwordx4 v[{STR}:{STR+3}], v{T+1}, s[{SRD_WS}:{SRD_WS+3}], s71 offen sc0 sc1
s_waitcnt vmcnt(0)
s_branch {lp}
{ld}:
s_waitcnt lgkmcnt(0)
s_barrier""")
    stamp(a,4)
    DBX = "s_lshr_b32 s73, s54, 2\ns_lshl_b32 s73, s73, 2\ns_and_b32 s72, s55, 3\ns_add_u32 s73, s73, s72" if (MAPX and opt.get("map2","x")=="x") else "s_and_b32 s73, s55, 7"
    if FUSED:
        a(f"""v_min_u32 v{T+1}, 11, v1
v_lshlrev_b32 v{T+1}, 7, v{T+1}
{DBX}
s_mul_i32 s73, s73, 48
s_mul_i32 s72, s{S_WAVE}, 12
s_add_u32 s73, s73, s72
s_lshl_b32 s73, s73, 7
s_add_u32 s73, s73, {FLW}
buffer_load_dword v252, v{T+1}, s[{SRD_WS}:{SRD_WS+3}], s73 offen sc0 sc1""")
    CV=XS
    BV=XS+48
    H=FR
    OUT=XS+96
    for ft in range(3):
        a(f"s_lshl_b32 s70, s{67+ft}, 7\ns_add_u32 s70, s70, {CSL}\nv_add_u32 v{T+2}, s70, v{T}")
        for q_ in range(4):
            a(f"ds_read_b128 v[{CV+16*ft+4*q_}:{CV+16*ft+4*q_+3}], v{T+2} offset:{32*q_}")
            a(f"ds_read_b128 v[{BV+16*ft+4*q_}:{BV+16*ft+4*q_+3}], v{T+2} offset:{512+32*q_}")
    a(f"""s_lshl_b32 s70, s56, 1
s_lshr_b32 s71, s{S_WAVE}, 1
s_add_u32 s70, s70, s71
s_mul_i32 s70, s70, 48
s_mul_i32 s71, s57, 3
s_add_u32 s70, s70, s71
s_and_b32 s71, s{S_WAVE}, 1
s_lshl_b32 s71, s71, 11
s_add_u32 s71, s71, {ACT_OFF}
v_and_b32 v{T+2}, 15, v1
v_lshlrev_b32 v{T+2}, 4, v{T+2}
v_lshlrev_b32 v{T+3}, 4, v{T}
v_add_u32 v{T+2}, v{T+2}, v{T+3}
v_bfe_u32 v{T+3}, v1, 4, 1
v_lshlrev_b32 v{T+3}, 10, v{T+3}
v_add_u32 v{T+2}, v{T+2}, v{T+3}
s_mov_b32 s74, 0x{LOG2E:08x}
s_mov_b32 s75, 0x{LOG2E:08x}
s_mov_b32 s78, 0x{f2u(28.0):08x}""")
    for ft in range(3):
        a(f"""s_add_u32 s72, s70, s{67+ft}
s_lshl_b32 s72, s72, 12
s_add_u32 s72, s72, s71
s_waitcnt lgkmcnt({min(15,8*(2-ft))})""")
        o=OUT+8*(ft&1)
        if FUSED and ft==int(opt.get("hinte",2)):
            lh=a.newlabel("L_hint")
            a(f"""s_lshl_b32 s73, s56, 4
s_add_u32 s73, s73, s57
s_lshl_b32 s73, s73, 7
s_add_u32 s73, s73, {FLA+64}
v_mov_b32 v{EP}, s76
s_cmp_lg_u32 s{S_WAVE}, 0
s_cbranch_scc1 {lh}
s_mov_b64 exec, 1
buffer_store_dword v{EP}, v{VZ}, s[{SRD_WS}:{SRD_WS+3}], s73 offen sc0 sc1
s_mov_b64 exec, -1
{lh}:""")
        stages=[
          lambda k,h,e,d,c: [f"v_pk_fma_f32 v[{h}:{h+1}], v[{CV+16*ft+2*k}:{CV+16*ft+2*k+1}], v[{STR+2}:{STR+3}], v[{BV+16*ft+2*k}:{BV+16*ft+2*k+1}] op_sel:[0,0,0] op_sel_hi:[1,0,1]"],
          lambda k,h,e,d,c: [f"v_pk_fma_f32 v[{h}:{h+1}], v[{c}:{c+1}], v[{STR}:{STR+1}], v[{h}:{h+1}] op_sel:[0,0,0] op_sel_hi:[1,0,1]"],
          lambda k,h,e,d,c: [f"v_pk_mul_f32 v[{e}:{e+1}], v[{h}:{h+1}], s[74:75]"],
          lambda k,h,e,d,c: [f"v_min_f32 v{e}, s78, v{e}", f"v_min_f32 v{e+1}, s78, v{e+1}"],
          lambda k,h,e,d,c: [f"v_exp_f32 v{e}, v{e}", f"v_exp_f32 v{e+1}, v{e+1}"],
          lambda k,h,e,d,c: [f"v_pk_add_f32 v[{d}:{d+1}], v[{e}:{e+1}], 2.0 op_sel_hi:[1,0]"],
          lambda k,h,e,d,c: [f"v_pk_fma_f32 v[{d}:{d+1}], v[{e}:{e+1}], v[{d}:{d+1}], 2.0 op_sel_hi:[1,1,0]"],
          lambda k,h,e,d,c: [f"v_rcp_f32 v{d}, v{d}", f"v_rcp_f32 v{d+1}, v{d+1}"],
          lambda k,h,e,d,c: [f"v_pk_mul_f32 v[{d}:{d+1}], v[{d}:{d+1}], v[{h}:{h+1}]"],
          lambda k,h,e,d,c: [f"v_pk_fma_f32 v[{h}:{h+1}], v[{d}:{d+1}], -2.0, v[{h}:{h+1}] op_sel_hi:[1,0,1]"],
          lambda k,h,e,d,c: [f"v_cvt_pk_bf16_f32 v{o+k}, v{h}, v{h+1}"],
        ]
        for stg in stages:
            for k in range(8):
                h=H+6*k
                for l in stg(k,h,h+2,h+4,ACC+16*ft+2*k): a(l)
        a(f"buffer_store_dwordx4 v[{o}:{o+3}], v{T+2}, s[{SRD_WS}:{SRD_WS+3}], s72 offen "+opt.get("asc","sc0+sc1").replace("+"," "))
        a(f"buffer_store_dwordx4 v[{o+4}:{o+7}], v{T+2}, s[{SRD_WS}:{SRD_WS+3}], s72 offen offset:512 "+opt.get("asc","sc0+sc1").replace("+"," "))

def gen_kernelA(opt):
    a=Asm()
    a(f"""s_cmp_ge_u32 s2, 512
s_cbranch_scc1 L_A_end
s_load_dwordx16 s[4:19], s[0:1], 0
s_load_dwordx16 s[20:35], s[0:1], 64
v_and_b32 v1, 63, v0
v_lshrrev_b32 v2, 6, v0
v_readfirstlane_b32 s{S_WAVE}, v2
s_waitcnt lgkmcnt(0)""")
    srd(a,SRD_WS,S_WS,WS_END); srd(a,SRD_X,S_X,2048*1280); srd(a,SRD_DBG,S_DBG,256)
    if PROF: a("v_mov_b32 v255, 0")
    stamp(a,0); stampc(a,14)
    SW=opt.get("swap","0")=="1"
    a(("s_cmp_lt_u32 s2, 256" if SW else "s_cmp_ge_u32 s2, 256")+"\ns_cbranch_scc1 L_A_gemm")
    if opt.get("only")=="gemm1": a("s_endpgm")
    PR=int(opt.get("prio",0))
    if PR: a(f"s_setprio {PR}")
    srd(a,SRD_W,S_W2,1536*1280)
    a(f"""s_and_b32 s53, s2, 255
s_and_b32 s54, s53, 7
s_mul_i32 s54, s54, 80
s_lshr_b32 s55, s53, 3
s_mul_i32 s56, s55, 3
s_lshl_b32 s57, s55, 1
s_add_u32 s57, s57, 16
s_cmp_lt_u32 s55, 16
s_cselect_b32 s63, 3, 2
s_cselect_b32 s56, s56, s57
s_add_u32 s64, s54, s56
s_cmp_eq_u32 s{S_WAVE}, 3
s_cbranch_scc1 L_A_aux
s_cmp_ge_u32 s{S_WAVE}, s63
s_cbranch_scc1 L_A_pend
s_add_u32 s54, s64, s{S_WAVE}
s_mul_i32 s55, s{S_WAVE}, {REG}""")
    SK=opt.get("skip","").split(",")
    global SKIP; SKIP=SK
    if "kgen" not in SK: gen_kgen(a)
    stampc(a,3)
    if "w2f" not in SK: gen_w2f(a)
    a("s_branch L_A_pend\nL_A_aux:")
    if "aux" not in SK: gen_aux(a)
    a("L_A_pend:")
    stamp(a,8); stamp_flush(a)
    a("s_endpgm\nL_A_gemm:")
    if int(opt.get("gprio",1)): a(f"s_setprio {int(opt.get('gprio',1))}")
    if opt.get("only")=="conv": a("s_endpgm")
    srd(a,SRD_W,S_W1,640*3072)
    gen_gemm1(a,opt)
    stamp(a,8); stamp_flush(a)
    a("L_A_end:\ns_endpgm")
    return a.text()

def gen_gemm2(a,vm,opt):
    NS=4; PRE=3
    T=2; VL=6; VL2=7; XA=8; ID=10
    VM4=16
    WA=[None,20,21,22]; RA=23; YA=24; FA_=25; VZ=26; EP=27
    ACC=28; SB=108
    SO=5 if FUSED else 0
    if MAPX and opt.get("map2","x")=="x":
        a("""s_and_b32 s56, s54, 3
s_lshl_b32 s56, s56, 3
s_lshr_b32 s57, s55, 2
s_add_u32 s56, s56, s57
s_lshr_b32 s57, s54, 2
s_lshl_b32 s57, s57, 2
s_and_b32 s58, s55, 3
s_add_u32 s57, s57, s58""")
    else:
        a("""s_lshl_b32 s56, s54, 2
s_lshr_b32 s57, s55, 3
s_add_u32 s56, s56, s57
s_and_b32 s57, s55, 7""")
    a(f"""v_lshlrev_b32 v{VL}, 4, v1
v_add_u32 v{VL2}, 4096, v{VL}
s_mul_i32 s58, s{S_WAVE}, 12
s_mul_i32 s59, s56, 48
s_add_u32 s59, s59, s58
s_lshl_b32 s59, s59, 12
s_add_u32 s59, s59, {ACT_OFF}
s_mul_i32 s60, s57, 48
s_add_u32 s60, s60, s58
s_mul_i32 s60, s60, 5120
s_add_u32 s60, s60, {W2F_OFF}""")
    for k in range(4):
        a(f"""s_add_u32 s61, s{S_WAVE}, {k}
s_and_b32 s61, s61, 3
s_lshl_b32 s{66+k}, s61, 10
v_add_u32 v{VM4+k}, s{66+k}, v{VL}""")
    RB=opt.get("rotb","0")!="0"
    if RB:
        a("""s_and_b32 s70, s56, 3
s_mul_i32 s70, s70, 3
s_add_u32 s70, s70, s57
s_sub_u32 s71, s70, 12
s_cmp_ge_u32 s70, 12
s_cselect_b32 s70, s71, s70""")
        for j in range(12):
            a(f"""s_add_u32 s71, s70, {j}
s_sub_u32 s72, s71, 12
s_cmp_ge_u32 s71, 12
s_cselect_b32 s{86+j}, s72, s71""")
    def ldl(j):
        b=SB+36*(j%NS); L=[]
        seq=[("w",0),("a",0),("a",1),("w",1),("a",2),("a",3),("w",2),("w",3),("w",4)]
        for i,(kind,n) in enumerate(seq):
            pre = f"s_add_u32 s61, s60, {5120*j}\ns_add_u32 s62, s59, {4096*j}\n" if i==0 else ""
            if RB and i==0: pre = f"s_mul_i32 s61, s{86+j}, 5120\ns_add_u32 s61, s61, s60\ns_lshl_b32 s62, s{86+j}, 12\ns_add_u32 s62, s62, s59\n"
            if kind=="w":
                if n<4: L.append(pre+f"buffer_load_dwordx4 v[{b+4*n}:{b+4*n+3}], v{VL}, s[{SRD_WS}:{SRD_WS+3}], s61 offen offset:{1024*n}")
                else:   L.append(pre+f"buffer_load_dwordx4 v[{b+16}:{b+19}], v{VL2}, s[{SRD_WS}:{SRD_WS+3}], s61 offen")
            else:
                L.append(pre+f"buffer_load_dwordx4 v[{b+20+4*n}:{b+23+4*n}], v{VM4+n}, s[{SRD_WS}:{SRD_WS+3}], s62 offen")
        return [(l+" "+opt.get("bsc","sc0+sc1" if FUSED else "").replace("+"," "),("s",j)) for l in L]
    def ld(j):
        for l,t in ldl(j):
            a(l); vm.issue(t)
    if not FUSED: ld(0)
    for i in range(40): a(f"v_mov_b32 v{ACC+i}, 0")
    if not FUSED: ld(1)
    for i in range(40,80): a(f"v_mov_b32 v{ACC+i}, 0")
    a(f"""v_and_b32 v{T}, 15, v1
v_lshrrev_b32 v{T+1}, 4, v1
v_lshrrev_b32 v{T+2}, 2, v{T}
v_mul_u32_u24 v{T+2}, 20, v{T+2}
v_and_b32 v{T+3}, 3, v{T}
v_add_u32 v{T+2}, v{T+2}, v{T+3}
v_mul_u32_u24 v{T+2}, {GS}, v{T+2}
v_lshlrev_b32 v{T+3}, 4, v{T+1}
v_add_u32 v{YA}, v{T+2}, v{T+3}
s_mul_i32 s63, s57, {80*GS}
s_lshl_b32 s64, s56, 7
s_add_u32 s63, s63, s64
s_lshr_b32 s64, s{S_WAVE}, 1
s_lshl_b32 s64, s64, 6
s_add_u32 s63, s63, s64
s_add_u32 s63, s63, {Y_OFF}
v_mul_u32_u24 v{XA}, 1280, v{T}
v_mul_u32_u24 v{T+3}, 40, v{T+1}
v_add_u32 v{XA}, v{XA}, v{T+3}
s_lshl_b32 s64, s56, 2
s_add_u32 s64, s64, s{S_WAVE}
s_mul_i32 s64, s64, {16*1280}
s_mul_i32 s65, s57, 160
s_add_u32 s64, s64, s65
s_and_b32 s65, s{S_WAVE}, 1
s_lshl_b32 s65, s65, 4
v_add_u32 v{ID+4}, s65, v{T}
v_lshlrev_b32 v{T+3}, 3, v{T+1}
v_sub_u32 v{T+3}, v{ID+4}, v{T+3}
v_mov_b32 v{ID+4}, 0x3f80
v_mov_b32 v{ID+5}, 0x3f800000""")
    if not FUSED: ld(2)
    for k in range(4):
        a(f"""v_cmp_eq_u32 vcc, {2*k}, v{T+3}
v_cndmask_b32 v{ID+k}, 0, v{ID+4}, vcc
v_cmp_eq_u32 vcc, {2*k+1}, v{T+3}
v_cndmask_b32 v{ID+k}, v{ID+k}, v{ID+5}, vcc""")
    for k in range(1,4):
        a(f"""s_mul_i32 s70, s{66+k}, 15
s_add_u32 s70, s70, {(k-1)*5120}
v_add_u32 v{WA[k]}, s70, v{VL}""")
    a(f"""s_mul_i32 s70, s66, 15
v_add_u32 v{RA}, s70, v{VL}
v_mov_b32 v{VZ}, 0
v_min_u32 v{FA_}, 15, v1
v_lshlrev_b32 v{FA_}, 7, v{FA_}
v_lshlrev_b32 v{T}, 7, v1
s_mul_i32 s71, s57, {80*128}
s_add_u32 s71, s71, {FLY if FUSED else FL_OFF}
s_add_u32 s72, s71, 8192""")
    if FUSED:
        def poll(addr_v, soff, name):
            lp=a.newlabel("L_fp"+name); ld_=a.newlabel("L_fpd"+name)
            a(f"""s_mov_b32 s98, {1 if NOWAIT else 200000}
{lp}:
buffer_load_dword v{EP}, v{addr_v}, s[{SRD_WS}:{SRD_WS+3}], s{soff} offen sc0 sc1
s_waitcnt vmcnt(0)
v_cmp_ne_u32 vcc, s76, v{EP}
s_nop 1
s_cmp_eq_u64 vcc, 0
s_cbranch_scc1 {ld_}
s_sub_u32 s98, s98, 1
s_cmp_eq_u32 s98, 0
s_cbranch_scc1 {ld_}
s_sleep 2
s_branch {lp}
{ld_}:""")
        a(f"""v_min_u32 v{T+1}, 11, v1
v_lshlrev_b32 v{T+1}, 7, v{T+1}
s_mul_i32 s73, s57, 48
s_add_u32 s73, s73, s58
s_lshl_b32 s73, s73, 7
s_add_u32 s73, s73, {FLW}
v_and_b32 v{T+2}, 3, v1
v_lshlrev_b32 v{T+2}, 7, v{T+2}
v_bfe_u32 v{T+3}, v1, 2, 1
v_lshlrev_b32 v{T+3}, 2, v{T+3}
v_add_u32 v{T+2}, v{T+2}, v{T+3}
s_lshr_b32 s74, s56, 1
s_lshl_b32 s74, s74, 4
s_lshl_b32 s75, s{S_WAVE}, 2
s_add_u32 s74, s74, s75
s_lshl_b32 s74, s74, 7
s_and_b32 s75, s56, 1
s_lshl_b32 s75, s75, 3
s_add_u32 s74, s74, s75
s_add_u32 s74, s74, {FLA}""")
        lw_=a.newlabel("L_wok")
        a(f"""v_mov_b32 v253, s76
s_waitcnt vmcnt(0)
s_mov_b64 exec, 1
buffer_store_dword v253, v{VZ}, s[{SRD_WS}:{SRD_WS+3}], s79 offen sc0 sc1
s_andn2_b32 s79, s79, 127
buffer_store_dword v253, v{VZ}, s[{SRD_WS}:{SRD_WS+3}], s79 offen offset:64 sc0 sc1
s_mov_b64 exec, -1
v_cmp_ne_u32 vcc, s76, v252
s_nop 1
s_cmp_eq_u64 vcc, 0
s_cbranch_scc1 {lw_}""")
        poll(T+1,73,"w")
        a(f"{lw_}:")
        stamp(a,13)
        pres={}
        for j in range(3):
            L=ldl(j); pres[j]=L[0][0].split("buffer_load")[0]
            for l,t in L:
                if "s61 offen" in l: a(l)
        poll(T+2,74,"a")
        stamp(a,5)
        vm.q=[]
        for j in range(3):
            a(pres[j])
            for l,t in ldl(j):
                if "s62 offen" in l: a(l); vm.issue(t)
    XV=SB+0
    xl=[(f"buffer_load_dwordx4 v[{XV}:{XV+3}], v{XA}, s[{SRD_X}:{SRD_X+3}], s64 offen","x"),
        (f"buffer_load_dwordx4 v[{XV+4}:{XV+7}], v{XA}, s[{SRD_X}:{SRD_X+3}], s64 offen offset:16","x"),
        (f"buffer_load_dwordx2 v[{XV+8}:{XV+9}], v{XA}, s[{SRD_X}:{SRD_X+3}], s64 offen offset:32","x"),
        (f"buffer_load_dword v{EP}, v{VZ}, s[{SRD_DBG}:{SRD_DBG+3}], 0 offen sc0 sc1","ep")]
    FLG=SB+56
    fl=[(f"buffer_load_dword v{FLG}, v{T}, s[{SRD_WS}:{SRD_WS+3}], s71 offen sc0 sc1","fl"),
        (f"buffer_load_dword v{FLG+1}, v{FA_}, s[{SRD_WS}:{SRD_WS+3}], s72 offen sc0 sc1","fl")]
    for j in range(12):
        vm.wait_for(("s",j))
        if j==0: stamp(a,1+SO)
        if PROF and j%2==0 and not FUSED: a(f"s_memtime s[{74+j}:{75+j}]")
        b=SB+36*(j%NS)
        order=[(dt,k) for dt in range(5) for k in range(4)]
        if j==11: order=[(dt,k) for k in (1,2,3,0) for dt in range(5)]
        lq = ldl(j+PRE) if j+PRE<12 else (xl if j==9 else (fl if j==11 else []))
        LF_=int(opt.get("bl",2))
        if LF_==0:
            while lq:
                l,t=lq.pop(0); a(l); vm.issue(t)
        for n,(dt,k) in enumerate(order):
            c=ACC+(dt*4+k)*4
            a(f"v_mfma_f32_16x16x32_bf16 v[{c}:{c+3}], v[{b+4*dt}:{b+4*dt+3}], v[{b+20+4*k}:{b+23+4*k}], v[{c}:{c+3}]")
            if LF_ and n%LF_==LF_-1 and lq:
                l,t=lq.pop(0); a(l); vm.issue(t)
        assert not lq
    stamp(a,2+SO)
    if PROF and not FUSED:
        for j in range(2,12,2):
            a(f"s_sub_u32 s{74+j}, s{74+j}, s74\nv_writelane_b32 v255, s{74+j}, {8+j//2}")
    XF=SB+12
    YF=SB+36
    FLG=SB+56
    RD=SB+72
    lk=a.newlabel("L_bepk"); lp=a.newlabel("L_bp"); ldn=a.newlabel("L_bpd"); llate=a.newlabel("L_blate"); ljoin=a.newlabel("L_bjoin")
    def yloads():
        for dt in range(5):
            a(f"s_add_u32 s73, s63, {4*GS*dt}")
            a(f"buffer_load_dwordx4 v[{YF+4*dt}:{YF+4*dt+3}], v{YA}, s[{SRD_WS}:{SRD_WS+3}], s73 offen sc0 sc1")
    def flagchk():
        a(f"""v_xor_b32 v{FLG}, s67, v{FLG}
v_xor_b32 v{FLG+1}, s67, v{FLG+1}
v_or_b32 v{FLG}, v{FLG}, v{FLG+1}
v_cmp_ne_u32 vcc, 0, v{FLG}
s_nop 1
s_cmp_eq_u64 vcc, 0""")
    a(f"""s_waitcnt vmcnt(0)
v_readfirstlane_b32 s67, v{EP}
s_mov_b32 s79, 0
s_cmp_eq_u32 s67, 0
s_cbranch_scc1 {llate}""")
    flagchk()
    a(f"""s_cbranch_scc0 {llate}
s_mov_b32 s79, 1""")
    yloads()
    a(f"{llate}:")
    for k in range(1,4):
        for dt in range(5):
            c=ACC+(dt*4+k)*4
            a(f"ds_write_b128 v{WA[k]}, v[{c}:{c+3}] offset:{dt*1024}")
    for k in range(10):
        a(f"v_lshlrev_b32 v{XF+2*k}, 16, v{XV+k}")
        a(f"v_and_b32 v{XF+2*k+1}, 0xffff0000, v{XV+k}")
    a(f"""s_mov_b32 s98, {1 if NOWAIT else 200000}
s_waitcnt lgkmcnt(0)
s_barrier""")
    for p in range(3):
        for dt in range(5):
            r=RD+20*p+4*dt
            a(f"ds_read_b128 v[{r}:{r+3}], v{RA} offset:{p*5120+dt*1024}")
    a(f"""s_cmp_eq_u32 s79, 1
s_cbranch_scc1 {ljoin}
s_cmp_lg_u32 s67, 0
s_cbranch_scc1 {lp}""")
    get_epoch(a,VZ,EP,67)
    a(f"""s_mov_b32 s98, {1 if NOWAIT else 200000}
{lp}:
buffer_load_dword v{FLG}, v{T}, s[{SRD_WS}:{SRD_WS+3}], s71 offen sc0 sc1
buffer_load_dword v{FLG+1}, v{FA_}, s[{SRD_WS}:{SRD_WS+3}], s72 offen sc0 sc1
s_waitcnt vmcnt(0)""")
    flagchk()
    a(f"""s_cbranch_scc1 {ldn}
s_sub_u32 s98, s98, 1
s_cmp_eq_u32 s98, 0
s_cbranch_scc1 {ldn}
s_sleep 2
s_branch {lp}
{ldn}:""")
    yloads()
    a(f"{ljoin}:")
    stamp(a,4+SO+ (1 if FUSED else 0))
    for p in range(3):
        a(f"s_waitcnt lgkmcnt({5*(2-p)})")
        for k in range(10):
            a(f"v_pk_add_f32 v[{XF+2*k}:{XF+2*k+1}], v[{XF+2*k}:{XF+2*k+1}], v[{RD+20*p+2*k}:{RD+20*p+2*k+1}]")
    for dt in range(5):
        c=ACC+(dt*4)*4
        a(f"s_waitcnt vmcnt({4-dt})")
        a(f"v_mfma_f32_16x16x32_bf16 v[{c}:{c+3}], v[{YF+4*dt}:{YF+4*dt+3}], v[{ID}:{ID+3}], v[{c}:{c+3}]")
    for dt in range(5):
        c=ACC+(dt*4)*4
        for h in range(2):
            a(f"v_pk_add_f32 v[{XF+4*dt+2*h}:{XF+4*dt+2*h+1}], v[{XF+4*dt+2*h}:{XF+4*dt+2*h+1}], v[{c+2*h}:{c+2*h+1}]")
    for k in range(10):
        a(f"v_cvt_pk_bf16_f32 v{XV+k}, v{XF+2*k}, v{XF+2*k+1}")
    OS=opt.get("osc","").replace("+"," ")
    a(f"""buffer_store_dwordx4 v[{XV}:{XV+3}], v{XA}, s[{SRD_W}:{SRD_W+3}], s64 offen {OS}
buffer_store_dwordx4 v[{XV+4}:{XV+7}], v{XA}, s[{SRD_W}:{SRD_W+3}], s64 offen offset:16 {OS}
buffer_store_dwordx2 v[{XV+8}:{XV+9}], v{XA}, s[{SRD_W}:{SRD_W+3}], s64 offen offset:32 {OS}""")

def gen_kernelB(opt):
    a=Asm('b'); vm=VM(a)
    NS=4; PRE=3
    T=2; VL=6; VL2=7; XA=8; ID=10
    VM4=16
    WA=[None,20,21,22]; RA=23; YA=24; FA_=25; VZ=26; EP=27
    ACC=28
    SB=108
    a(f"""s_cmp_ge_u32 s2, 512
s_cbranch_scc1 L_B_end
s_load_dwordx2 s[4:5], s[0:1], 0
s_load_dwordx4 s[28:31], s[0:1], 104
s_load_dwordx2 s[8:9], s[0:1], 120
v_and_b32 v1, 63, v0
v_lshrrev_b32 v2, 6, v0
v_readfirstlane_b32 s{S_WAVE}, v2
s_and_b32 s53, s2, 255
s_and_b32 s54, s53, 7
s_lshr_b32 s55, s53, 3
s_waitcnt lgkmcnt(0)""")
    srd(a,SRD_WS,8,WS_END); srd(a,SRD_DBG,30,256)
    if PROF: a("v_mov_b32 v255, 0")
    stamp(a,0); stampc(a,14)
    a(f"""s_cmp_ge_u32 s2, 256
s_cbranch_scc1 L_B_gemm
s_mul_i32 s54, s54, 80
s_mul_i32 s56, s55, 3
s_lshl_b32 s57, s55, 1
s_add_u32 s57, s57, 16
s_cmp_lt_u32 s55, 16
s_cselect_b32 s63, 3, 2
s_cselect_b32 s56, s56, s57
s_add_u32 s64, s54, s56""")
    if int(opt.get("cprio",1)): a(f"s_setprio {int(opt.get('cprio',1))}")
    gen_stage(a)
    a(f"s_setprio {int(opt.get('cprio2',0))}")
    gen_conv(a)
    stamp(a,8); stamp_flush(a,1)
    a("s_endpgm\nL_B_gemm:")
    if int(opt.get("g2prio",0)): a(f"s_setprio {int(opt.get('g2prio',0))}")
    srd(a,SRD_X,4,2048*1280); srd(a,SRD_W,28,2048*1280)
    gen_gemm2(a,vm,opt)
    stamp(a,3); stamp_flush(a,1)
    if PROF and opt.get("dbgscan"):
        lq_=a.newlabel("L_dbgx")
        a(f"""v_readlane_b32 s70, v255, 3
v_readlane_b32 s71, v255, 0
s_not_b32 s71, s71
v_mov_b32 v2, s70
v_mov_b32 v3, s71
v_mov_b32 v4, 8
v_mov_b32 v5, 20
s_mov_b64 exec, 1
buffer_atomic_umax v2, v4, s[{SRD_DBG}:{SRD_DBG+3}], 0 offen sc1
buffer_atomic_umax v3, v5, s[{SRD_DBG}:{SRD_DBG+3}], 0 offen sc1
s_mov_b64 exec, -1
s_or_b32 s70, s53, s{S_WAVE}
s_cmp_lg_u32 s70, 0
s_cbranch_scc1 {lq_}
v_lshlrev_b32 v2, 6, v1
v_mov_b32 v6, 0
v_mov_b32 v7, 0""")
        for i in range(32):
            a(f"""s_mov_b32 s70, {TS_OFF+4096*i}
buffer_load_dword v3, v2, s[{SRD_WS}:{SRD_WS+3}], s70 offen
buffer_load_dword v4, v2, s[{SRD_WS}:{SRD_WS+3}], s70 offen offset:32
s_waitcnt vmcnt(0)
v_not_b32 v3, v3
v_max_u32 v6, v6, v3
v_max_u32 v7, v7, v4""")
        a(f"""v_mov_b32 v4, 12
v_mov_b32 v5, 16
buffer_atomic_umax v7, v4, s[{SRD_DBG}:{SRD_DBG+3}], 0 offen sc1
buffer_atomic_umax v6, v5, s[{SRD_DBG}:{SRD_DBG+3}], 0 offen sc1
{lq_}:""")
    a("L_B_end:\ns_endpgm")
    return a.text(), LDS_A

HEADER = open("parallel_sum__ssm_conv_s4__dense_activation_mish__prompt.s.ref").read().split("; Override launch")[0]

def kd(name, vgpr, accum, sgpr=102):
    return f""".amdhsa_kernel {name}
  .amdhsa_next_free_vgpr {vgpr}
  .amdhsa_next_free_sgpr {sgpr}
  .amdhsa_accum_offset {accum}
  .amdhsa_group_segment_fixed_size 0
  .amdhsa_kernarg_size 128
  .amdhsa_user_sgpr_count 2
  .amdhsa_user_sgpr_kernarg_segment_ptr 1
  .amdhsa_system_sgpr_workgroup_id_x 1
.end_amdhsa_kernel
"""

def gen_fused(opt):
    a=Asm()
    a(f"""s_cmp_ge_u32 s2, 512
s_cbranch_scc1 L_A_end
s_load_dwordx16 s[4:19], s[0:1], 0
s_load_dwordx16 s[20:35], s[0:1], 64
v_and_b32 v1, 63, v0
v_lshrrev_b32 v2, 6, v0
v_readfirstlane_b32 s{S_WAVE}, v2
s_waitcnt lgkmcnt(0)""")
    srd(a,SRD_WS,S_WS,WS_END); srd(a,SRD_X,S_X,2048*1280); srd(a,SRD_DBG,S_DBG,256)
    if PROF: a("v_mov_b32 v255, 0")
    stamp(a,0); stampc(a,14)
    a("s_cmp_ge_u32 s2, 256\ns_cbranch_scc1 L_A_gemm")
    srd(a,SRD_W,S_W2,1536*1280)
    a(f"""s_and_b32 s53, s2, 255
s_and_b32 s54, s53, 7
s_mul_i32 s54, s54, 80
s_lshr_b32 s55, s53, 3
s_mul_i32 s56, s55, 3
s_lshl_b32 s57, s55, 1
s_add_u32 s57, s57, 16
s_cmp_lt_u32 s55, 16
s_cselect_b32 s63, 3, 2
s_cselect_b32 s56, s56, s57
s_add_u32 s64, s54, s56
s_cmp_eq_u32 s{S_WAVE}, 3
s_cbranch_scc1 L_A_aux
s_cmp_ge_u32 s{S_WAVE}, s63
s_cbranch_scc1 L_A_stage
s_add_u32 s54, s64, s{S_WAVE}
s_mul_i32 s55, s{S_WAVE}, {REG}""")
    global SKIP; SKIP=opt.get("skip","").split(",")
    if int(opt.get("kprio",1)): a(f"s_setprio {int(opt.get('kprio',1))}")
    if "kgen" in SKIP: a("s_endpgm")
    gen_kgen(a)
    if "conv" in SKIP: a("s_endpgm")
    stampc(a,3)
    a("s_branch L_A_stage\nL_A_aux:")
    a(f"s_setprio {int(opt.get('aprio',2))}")
    if "aux" in SKIP: a("s_endpgm")
    gen_aux(a)
    a(f"L_A_stage:\ns_setprio {int(opt.get('sprio',2))}")
    if "conv" in SKIP: a("s_endpgm")
    gen_stage(a)
    a(f"s_setprio {int(opt.get('cprio2',1))}")
    gen_conv(a)
    stamp(a,8); stamp_flush(a)
    a("s_endpgm\nL_A_gemm:")
    a(f"s_setprio {int(opt.get('gprio',1))}")
    srd(a,SRD_W,S_W1,640*3072)
    gen_gemm1(a,opt)
    a(f"s_setprio {int(opt.get('g2p',opt.get('gprio',1)))}")
    stamp(a,8)
    a(f"""s_lshl_b32 s79, s56, 4
s_add_u32 s79, s79, s57
s_lshl_b32 s79, s79, 7
s_lshl_b32 s71, s{S_WAVE}, 2
s_add_u32 s79, s79, s71
s_add_u32 s79, s79, {FLA}""")
    srd(a,SRD_W,S_OUT,2048*1280)
    vm=VM(a)
    gen_gemm2(a,vm,opt)
    stamp(a,12); stamp_flush(a)
    a("L_A_end:\ns_endpgm")
    return a.text()

def build_fused(opt):
    A=gen_fused(opt)
    KN="parallel_sum__ssm_conv_s4__dense_activation_mish__prompt_kernel"
    s=HEADER+f"; @launch grid=(512,1,1) block=(256,1,1) lds={LDS_A}\n"
    s+='.amdgcn_target "amdgcn-amd-amdhsa--gfx950"\n.text\n'
    s+=f".globl {KN}\n.p2align 8\n.type {KN},@function\n{KN}:\n{A}"
    s+='.section .rodata,"a"\n.p2align 6\n'+kd(KN,256,256)
    return s

def build(opt):
    A=gen_kernelA(opt); B,ldsB=gen_kernelB(opt)
    s=HEADER
    s+=f"; @launch kernel=stage_a_kernel grid=(512,1,1) block=(256,1,1) lds={LDS_A}\n"
    s+=f"; @launch kernel=stage_b_kernel grid=(512,1,1) block=(256,1,1) lds={ldsB}\n"
    if opt.get("rep2"): s+=f"; @launch kernel=stage_b_kernel grid=(512,1,1) block=(256,1,1) lds={ldsB}\n"
    s+='.amdgcn_target "amdgcn-amd-amdhsa--gfx950"\n.text\n'
    for name,body in (("stage_a_kernel",A),("stage_b_kernel",B)):
        s+=f".globl {name}\n.p2align 8\n.type {name},@function\n{name}:\n{body}"
    s+='.section .rodata,"a"\n.p2align 6\n'+kd("stage_a_kernel",256,256)+".p2align 6\n"+kd("stage_b_kernel",256,256)
    return s

if __name__=="__main__":
    opt={}
    out=sys.argv[1] if len(sys.argv)>1 else "parallel_sum__ssm_conv_s4__dense_activation_mish__prompt.s"
    for kv in sys.argv[2:]:
        k,v=kv.split("="); opt[k]=v
    PROF = opt.get("prof","0")=="1"
    NOWAIT = "only" in opt or "skip" in opt
    FUSED = opt.get("fused","0")=="1"
    CWAIT = opt.get("cwait","1")=="1"
    MAPX = opt.get("map1","loc")!="loc"
    W2LATE = opt.get("w2late","0")=="1"
    W2MID = opt.get("w2late","0")=="2"
    txt=build_fused(opt) if FUSED else build(opt)
    if opt.get("sc")=="1": txt=txt.replace("sc0 sc1","sc1")
    open(out,"w").write(txt)
    print("wrote",out)
```
